```python
import torch

def _softmax(x, axis=-1):
    return torch.softmax(x, dim=axis)
def _gelu(x):
    return torch.nn.functional.gelu(x, approximate="tanh")
def _silu(x):
    return torch.nn.functional.silu(x)
def _sigmoid(x):
    return torch.sigmoid(x)
def _layernorm(x, axis=-1, eps=1e-5):
    m = x.mean(dim=axis, keepdim=True)
    v = x.var(dim=axis, keepdim=True, unbiased=False)
    return (x - m) / torch.sqrt(v + eps)
def _scatter_add(tgt, idx, src, axis=0):
    return tgt.clone().index_add_(axis, idx, src)
def _segment_sum(src, seg, n):
    out = torch.zeros((n,) + src.shape[1:], dtype=src.dtype)
    return out.index_add_(0, seg, src)
def _pad(x, pw):
    flat = tuple(v for pair in reversed(pw) for v in pair)
    return torch.nn.functional.pad(x, flat)

kernel_name = 'recurrent_scan__mha_block_cached__glu_gated_swiglu__prompt'

def setup_inputs():

    _w = (lambda a: (lambda t: t.to(torch.bfloat16) if t.is_floating_point() else t)(torch.as_tensor(a)))
    def _A_setup():
        B, Sq, D = 1, 2048, 448
        H, Sk, Dh = 16, 2048, 256
        return {
            "x": _w((lambda *s: torch.randn(*s, dtype=torch.bfloat16) * 0.05)(B, Sq, D)),
            "k_cache": _w((lambda *s: torch.randn(*s, dtype=torch.bfloat16) * 1.6)(B, H, Sk, Dh)),
            "v_cache": _w((lambda *s: torch.randn(*s, dtype=torch.bfloat16) * 1.6)(B, H, Sk, Dh)),
            "wq": _w((lambda *s: torch.randn(*s, dtype=torch.bfloat16) * 1.6)(D, H * Dh) * (D ** -0.5)),
            "wo": _w((lambda *s: torch.randn(*s, dtype=torch.bfloat16) * 1.6)(H * Dh, D) * ((H * Dh) ** -0.5)),
        }
    _A_in = _A_setup()

    def _B_setup():
        B, S, D, F = 1, 2048, 448, 1792
        return {
            "x": _w((lambda *s: torch.randn(*s, dtype=torch.bfloat16) * 0.05)(B, S, D)),
            "w1": _w((lambda *s: torch.randn(*s, dtype=torch.bfloat16) * 0.2)(D, F) * (2.0 / D) ** 0.5),
            "w3": _w((lambda *s: torch.randn(*s, dtype=torch.bfloat16) * 0.2)(D, F) * (2.0 / D) ** 0.5),
            "w2": _w((lambda *s: torch.randn(*s, dtype=torch.bfloat16) * 0.2)(F, D) * (2.0 / F) ** 0.5),
        }
    _B_in = _B_setup()

    return {
        "A_x": _A_in["x"],
        "A_k_cache": _A_in["k_cache"],
        "A_v_cache": _A_in["v_cache"],
        "A_wq": _A_in["wq"],
        "A_wo": _A_in["wo"],
        "B_x": _B_in["x"],
        "B_w1": _B_in["w1"],
        "B_w3": _B_in["w3"],
        "B_w2": _B_in["w2"],
    }

def reference(A_x, A_k_cache, A_v_cache, A_wq, A_wo, B_x, B_w1, B_w3, B_w2):
    def _A_ref(x, k_cache, v_cache, wq, wo):
        B, Sq, D = x.shape
        H, Dh = 16, 256
        q = (lambda x, *d: x.permute(*d))((x @ wq).reshape(B, Sq, H, Dh), 0, 2, 1, 3)
        scores = torch.einsum("bhqd,bhkd->bhqk", q, k_cache) * (Dh ** -0.5)
        p = _softmax(scores, axis=-1)
        o = torch.einsum("bhqk,bhkd->bhqd", p, v_cache)
        return (lambda x, *d: x.permute(*d))(o, 0, 2, 1, 3).reshape(B, Sq, H * Dh) @ wo

    def _B_ref(x, w1, w3, w2):
        gate = torch.einsum("bsd,df->bsf", x, w1)
        up = torch.einsum("bsd,df->bsf", x, w3)
        h = _silu(gate) * up
        out = torch.einsum("bsf,fd->bsd", h, w2)
        return out

    x = A_x
    xn = _layernorm(x, axis=-1)
    s = _A_ref(xn, A_k_cache, A_v_cache, A_wq, A_wo)
    g = _silu(_B_ref(xn, B_w1, B_w3, B_w2))
    return x + s * g
```

```python
import re

def R(kind, lo, n=1):
    return [f"{kind}{i}" for i in range(lo, lo + n)]

def rs(kind, lo, n=1):
    return f"{kind}{lo}" if n == 1 else f"{kind}[{lo}:{lo+n-1}]"

class Reg:
    __slots__ = ("k", "lo", "n")
    def __init__(self, k, lo, n=1):
        self.k, self.lo, self.n = k, lo, n
    def __str__(self): return rs(self.k, self.lo, self.n)
    def regs(self): return R(self.k, self.lo, self.n)
    def __getitem__(self, i):
        if isinstance(i, slice):
            st = i.start or 0
            en = self.n if i.stop is None else i.stop
            assert 0 <= st < en <= self.n, (st, en, self.n)
            return Reg(self.k, self.lo + st, en - st)
        assert 0 <= i < self.n, (i, self.n)
        return Reg(self.k, self.lo + i, 1)
def V(lo, n=1): return Reg("v", lo, n)
def A(lo, n=1): return Reg("a", lo, n)
def S(lo, n=1): return Reg("s", lo, n)

COST = dict(mfma=8, valu=4, trans=8, salu=4, dsr=4, dsw=8, vmem=8, dma=8, wait=4, nop=4, barrier=4,
            branch=4, label=0, perm=4, pseudo=0, smem=4)

class Op:
    __slots__ = ("text", "kind", "rd", "wr", "cost", "tag", "srcc", "extra")
    def __init__(self, text, kind, rd=(), wr=(), tag=None, cost=None, srcc=None, extra=None):
        self.text, self.kind = text, kind
        self.rd, self.wr = list(rd), list(wr)
        self.tag = tag
        self.cost = COST[kind] if cost is None else cost
        self.srcc = srcc
        self.extra = extra
    def __repr__(self): return self.text

def _regs_of(x):
    if isinstance(x, Reg): return x.regs()
    if isinstance(x, str):
        if x in ("vcc", "m0", "exec", "scc"): return [x]
        m = re.fullmatch(r"-?(?:abs\()?([vas])(\d+)\)?", x)
        if m: return [m.group(1) + m.group(2)]
        m = re.fullmatch(r"([vas])\[(\d+):(\d+)\]", x)
        if m: return R(m.group(1), int(m.group(2)), int(m.group(3)) - int(m.group(2)) + 1)
    return []

def fmt(x):
    if isinstance(x, float):
        import struct
        if x in (0.5, 1.0, 2.0, 4.0, -0.5, -1.0, -2.0, -4.0): return repr(x)
        if x == 0.0: return "0"
        return "0x%08x" % struct.unpack("<I", struct.pack("<f", x))[0]
    if isinstance(x, int):
        if -16 <= x <= 64: return str(x)
        return "0x%x" % (x & 0xffffffff)
    return str(x)

TRANS = ("v_exp_f32", "v_log_f32", "v_rcp_f32", "v_rsq_f32", "v_sqrt_f32")

def mfma(d, a, b, c):
    cr = _regs_of(c)
    nm = "v_mfma_f32_32x32x16_bf16" if d.n == 16 else "v_mfma_f32_16x16x32_bf16"
    return Op(f"{nm} {d}, {a}, {b}, {fmt(c)}", "mfma", rd=a.regs() + b.regs() + cr, wr=d.regs(),
              srcc=cr, extra=(a.regs() + b.regs()))

def valu(op, d, *src, mods="", rmw=False):
    k = "trans" if op in TRANS else "valu"
    rd = []
    for s_ in src: rd += _regs_of(s_)
    wr = _regs_of(d)
    if rmw or op.startswith("v_fmac") or op.startswith("v_dot2c"): rd += wr
    if op.startswith("v_cndmask") and len(src) == 2: rd.append("vcc")
    t = f"{op} {fmt(d)}, " + ", ".join(fmt(s_) for s_ in src)
    if op.startswith("v_cndmask") and len(src) == 2: t += ", vcc"
    return Op(t + (" " + mods if mods else ""), k, rd=rd, wr=wr)

def perm32(x, y):
    return Op(f"v_permlane32_swap_b32 {x}, {y}", "perm", rd=x.regs() + y.regs(), wr=x.regs() + y.regs())

def perm16(x, y):
    return Op(f"v_permlane16_swap_b32 {x}, {y}", "perm", rd=x.regs() + y.regs(), wr=x.regs() + y.regs())

def salu(op, d, *src, scc=True):
    rd = []
    for s_ in src: rd += _regs_of(s_)
    wr = _regs_of(d)
    if op in ("s_addk_i32", "s_mulk_i32"): rd += wr
    if op.startswith("s_cmp"):
        rd += wr; wr = ["scc"]
    elif op in ("s_mov_b32", "s_mov_b64", "s_mul_i32", "s_movk_i32", "s_getpc_b64", "s_mul_hi_u32", "s_cselect_b32"):
        pass
    else:
        wr = wr + ["scc"]
    if op in ("s_addc_u32", "s_subb_u32", "s_cselect_b32"): rd.append("scc")
    t = f"{op} {fmt(d)}" + "".join(", " + fmt(s_) for s_ in src)
    return Op(t, "salu", rd=rd, wr=wr)

def dsr(op, d, addr, off=0, tag=None):
    assert 0 <= off < 65536, off
    return Op(f"{op} {d}, {addr}" + (f" offset:{off}" if off else ""), "dsr", rd=addr.regs(), wr=d.regs(), tag=tag)

def dsw(op, addr, data, off=0, tag=None):
    assert 0 <= off < 65536, off
    return Op(f"{op} {addr}, {data}" + (f" offset:{off}" if off else ""), "dsw", rd=addr.regs() + data.regs(), tag=tag)

def dma(voff, srd, soff, off=0, tag=None, flags=""):
    assert 0 <= off < 4096
    return Op(f"buffer_load_dwordx4 {voff}, {srd}, {fmt(soff)} offen" + (f" offset:{off}" if off else "") + (" " + flags if flags else "") + " lds",
              "dma", rd=voff.regs() + srd.regs() + _regs_of(soff) + ["m0"], tag=tag)

def bload(d, voff, srd, soff, off=0, tag=None, flags=""):
    assert 0 <= off < 4096
    op = {1: "buffer_load_dword", 2: "buffer_load_dwordx2", 4: "buffer_load_dwordx4"}[d.n]
    return Op(f"{op} {d}, {voff}, {srd}, {fmt(soff)} offen" + (f" offset:{off}" if off else "") + (" " + flags if flags else ""),
              "vmem", rd=voff.regs() + srd.regs() + _regs_of(soff), wr=d.regs(), tag=tag)

def bstore(data, voff, srd, soff, off=0, tag=None, flags=""):
    assert 0 <= off < 4096
    op = {1: "buffer_store_dword", 2: "buffer_store_dwordx2", 4: "buffer_store_dwordx4"}[data.n]
    return Op(f"{op} {data}, {voff}, {srd}, {fmt(soff)} offen" + (f" offset:{off}" if off else "") + (" " + flags if flags else ""),
              "vmem", rd=voff.regs() + srd.regs() + _regs_of(soff) + data.regs(), tag=tag, extra=("store", data.regs()))

def raw(text, kind="salu", rd=(), wr=(), cost=None): return Op(text, kind, rd=rd, wr=wr, cost=cost)
def label(name): return Op(f"{name}:", "label")
def nop(n): return Op(f"s_nop {n}", "nop", extra=n + 1, cost=4 * (n + 1))
def barrier(): return Op("s_barrier", "barrier")
def wait_vm_tag(tags, lgkm0=False):
    return Op("", "pseudo", tag=("waitvm", tuple(tags), lgkm0), cost=4)
def wait_all(): return Op("", "pseudo", tag=("waitall",), cost=4)
def wait_lgkm0(): return Op("", "pseudo", tag=("waitvm", (), True), cost=4)
def wait_regs(regs):
    return Op("", "pseudo", rd=regs, tag=("waitregs",), cost=4)
def marker(name): return Op("", "pseudo", tag=("mark", name))

def insert_waits(ops):
    out = []
    lds = []
    vm = []
    def emit_wait(nl, nv):
        parts = []
        if nv is not None: parts.append(f"vmcnt({min(nv,63)})")
        if nl is not None: parts.append(f"lgkmcnt({min(nl,15)})")
        out.append(Op("s_waitcnt " + " ".join(parts), "wait"))
    for op in ops:
        nl = nv = None
        if op.kind == "pseudo" and op.tag and op.tag[0] == "waitall":
            emit_wait(0, 0); lds.clear(); vm.clear(); continue
        if op.kind == "pseudo" and op.tag and op.tag[0] == "waitvm":
            tags, l0 = op.tag[1], op.tag[2]
            idx = [i for i, (d, t) in enumerate(vm) if t in tags]
            if idx: nv = len(vm) - 1 - max(idx)
            if l0 and lds: nl = 0
            if nl is not None or nv is not None:
                emit_wait(nl, nv)
                if nl is not None: lds.clear()
                if nv is not None: del vm[:len(vm) - min(nv, 63)]
            continue
        touched = set(op.rd) | set(op.wr)
        idx = [i for i, d in enumerate(lds) if d & touched]
        if idx: nl = len(lds) - 1 - max(idx)
        idx = [i for i, (d, t) in enumerate(vm) if d & touched]
        if idx: nv = len(vm) - 1 - max(idx)
        if nl is not None or nv is not None:
            emit_wait(nl, nv)
            if nl is not None: del lds[:len(lds) - min(nl, 15)]
            if nv is not None: del vm[:len(vm) - min(nv, 63)]
        if op.kind == "pseudo" and op.tag and op.tag[0] == "waitregs": continue
        out.append(op)
        if op.kind == "dsr": lds.append(set(op.wr))
        elif op.kind == "dsw": lds.append(set())
        elif op.kind in ("vmem", "dma"): vm.append((set(op.wr), op.tag))
        assert len(vm) <= 63, "too many outstanding VMEM"
    return out

VALU_KINDS = ("valu", "trans", "perm")
def need_states(p, c):
    n = 0
    pw, pr = set(p.wr), set(p.rd)
    cr, cw = set(c.rd), set(c.wr)
    if p.kind in VALU_KINDS:
        vw = {r for r in pw if r[0] in "va" and r not in ("vcc",)}
        sw = {r for r in pw if r[0] == "s" and r != "scc"} | ({"vcc"} & pw)
        if c.kind == "mfma" and vw & cr: n = max(n, 2)
        if c.kind == "perm" and vw & cr: n = max(n, 2)
        if p.kind == "trans" and c.kind in VALU_KINDS and c.kind != "trans" and vw & (cr | cw): n = max(n, 1)
        if p.kind == "trans" and c.kind == "trans" and vw & cr: n = max(n, 1)
        if c.kind in VALU_KINDS and sw & cr: n = max(n, 2)
        if c.kind in ("vmem", "dma") and sw & cr: n = max(n, 5)
        if c.text.startswith("v_readfirstlane") or c.text.startswith("v_readlane"):
            if vw & cr: n = max(n, 1)
        if "exec" in pw and c.kind == "mfma": n = max(n, 4)
        if p.text.startswith("v_dot2"):
            same = c.text.split()[0] == p.text.split()[0]
            if vw & (cr | cw):
                if not same: n = max(n, 3)
                else:
                    srcs = set(c.rd) - set(c.wr)
                    if vw & srcs: n = max(n, 3)
    if p.kind == "mfma":
        big = len(p.wr) == 16
        RAW, OVL, WARC = (12, 10, 7) if big else (8, 6, 3)
        if c.kind == "mfma":
            if pw & set(c.extra): n = max(n, RAW)
            if pw & set(c.srcc):
                if set(c.srcc) != pw: n = max(n, OVL)
            if (pw & cw) and set(c.srcc) != pw and cw != pw: n = max(n, RAW)
        elif c.kind in VALU_KINDS or c.kind in ("vmem", "dma", "dsr", "dsw"):
            if pw & (cr | cw): n = max(n, RAW)
            if c.kind in VALU_KINDS and set(p.srcc) & cw: n = max(n, WARC)
            if c.kind in ("dsr", "vmem") and set(p.srcc) & cw: n = max(n, WARC)
    if p.kind == "salu" and "m0" in pw and c.kind == "dma": n = max(n, 1)
    if p.kind == "vmem" and p.extra and p.extra[0] == "store" and len(p.extra[1]) >= 3:
        if set(p.extra[1]) & cw: n = max(n, 2)
    if p.kind == "dsw" and len(p.rd) >= 4 and (set(p.rd) & cw) and c.kind in VALU_KINDS: n = max(n, 2)
    return n

def states_of(op):
    if op.kind in ("label", "pseudo"): return 0
    if op.kind == "nop": return op.extra
    return 1

def pad_hazards(ops, window=14, report=None):
    out = []
    for op in ops:
        if op.kind not in ("label", "pseudo"):
            dist = 0; need = 0
            for p in reversed(out):
                if dist >= window: break
                if p.kind not in ("label", "pseudo", "nop", "wait"):
                    n = need_states(p, op)
                    if n > dist: need = max(need, n - dist)
                dist += states_of(p)
            if need > 0:
                if report is not None: report.append((need, op.text))
                while need > 0:
                    k = min(need, 16); out.append(nop(k - 1)); need -= k
        out.append(op)
    return out

class Item:
    __slots__ = ("ops", "rel", "dl", "stream", "cost")
    def __init__(self, ops, rel=-1, dl=10**9, stream=None):
        self.ops = ops if isinstance(ops, list) else [ops]
        self.rel, self.dl, self.stream = rel, dl, stream
        self.cost = sum(o.cost for o in self.ops)

def schedule(backbone, streams, budget=32, fixed=None, verbose=False, first_budget=0):
    fixed = fixed or {}
    heads = {k: 0 for k in streams}
    out = []
    n = len(backbone)
    loads = []
    for g in range(-1, n):
        if g >= 0: out += backbone[g][1]
        used = 0
        nxt = (backbone[g + 1][0] + sum(o.cost for o in backbone[g + 1][1])) if g + 1 < n else 8
        cap = (budget if g >= 0 else first_budget) - nxt
        for o in fixed.get(g, []):
            out.append(o); used += o.cost
        while True:
            cands = []
            for k, lst in streams.items():
                i = heads[k]
                if i < len(lst) and lst[i].rel <= g:
                    dl = min(it.dl for it in lst[i:i + 64])
                    cands.append((dl, k))
            if not cands: break
            cands.sort(key=lambda x: x[0])
            placed = False
            for dl, k in cands:
                it = streams[k][heads[k]]
                if dl <= g or used + it.cost <= cap or g == n - 1:
                    out += it.ops; used += it.cost; heads[k] += 1; placed = True
                    break
            if not placed: break
        loads.append(used + nxt)
    for k in streams: assert heads[k] == len(streams[k]), (k, heads[k], len(streams[k]))
    if verbose: print("gap loads:", loads)
    return out

def text_of(ops):
    return "\n".join(("" if o.kind == "label" else "    ") + o.text for o in ops if o.kind != "pseudo" and o.text)


def cls_of(op):
    if op.kind in ("dsr", "dsw", "vmem", "dma"): return "M"
    if op.kind in ("valu", "trans", "perm"): return "V"
    return "S"

def schedule2(backbone, streams, cap, post=None, verbose=False, tail_cap=None):
    post = post or {}
    heads = {k: 0 for k in streams}
    out = []
    n = len(backbone)
    loads = []
    for g in range(-1, n):
        if g >= 0: out.append(backbone[g])
        front = list(post.get(g, []))
        mids, vs, back = [], [], []
        used = max(0, sum(o.cost for o in front if o.kind != "label") - 4) if front else 0
        free = (g >= 0) and not front
        rank = {}
        blocked = set()
        while True:
            cands = []
            for k, lst in streams.items():
                i = heads[k]
                if k not in blocked and i < len(lst) and lst[i].rel <= g:
                    cands.append((min(it.dl for it in lst[i:i + 64]), k))
            if not cands: break
            cands.sort(key=lambda x: x[0])
            placed = False
            for dl, k in cands:
                it = streams[k][heads[k]]
                if not it.ops:
                    heads[k] += 1; placed = True; break
                c = cls_of(it.ops[0])
                r0 = rank.get(k, 0)
                cost = it.cost
                if c == "S":
                    if r0 == 0:
                        r = 0
                        if free: cost -= 4
                    else: r = 3
                else:
                    r = 1 if c == "M" else 2
                force = dl <= g or g == n - 1
                if r < r0:
                    if not force:
                        blocked.add(k); continue
                    r = 3
                if force or used + cost <= (cap if g >= 0 else -1):
                    (front, mids, vs, back)[r].extend(it.ops)
                    if c == "S" and r == 0: free = False
                    rank[k] = r; used += cost; heads[k] += 1; placed = True
                    break
            if not placed: break
        out += front + mids + vs + back
        loads.append(used)
    for k in streams: assert heads[k] == len(streams[k]), (k, heads[k], len(streams[k]))
    if verbose: print("gap loads:", loads, "over:", sum(max(0, l - cap) for l in loads[1:]))
    return out
```

```python
import sys
from asmlib import *

OPT = dict(cap=8, bardelay=4, verbose=0, brk=78, split=16, stamps=0, dbg=0)
for a in sys.argv[2:]:
    k, v = a.split("="); OPT[k] = int(v)

BSTR = 1056
SLOT = 16 * BSTR
STG = 2 * SLOT
RB = [0, 2 * STG, STG, 3 * STG]
HALF = 2 * STG
SPARE = 4 * STG
THR = 16.0
QSCALE = 1.4426950408889634 / 16.0
LOG2E = 1.4426950408889634
PART = 2048 * 448 * 2 * 16

vLane = V(0)
vKaddr, vVaddr, vDma = V(1), V(2), V(3)
vL = [V(4 + i) for i in range(4)]
vTmax = V(8)
vT = [V(9 + i) for i in range(7)]
FRV = [V(16 + 4 * i, 4) for i in range(4)]
vY = [V(32 + i) for i in range(8)]
vF = [V(40 + i) for i in range(4)]
vX = [V(44 + i) for i in range(4)]
NEGM = [V(48 + 4 * u, 4) for u in range(4)]
SBUF = [[V(64 + 32 * p + 8 * u, 8) for u in range(4)] for p in range(2)]
Q = [[V(128 + 32 * u + 4 * ks, 4) for ks in range(8)] for u in range(4)]
O = [[A((4 * dt + u) * 4, 4) for u in range(4)] for dt in range(16)]
XN = [[V(128 + 56 * u + 4 * ks, 4) for ks in range(14)] for u in range(2)]
GU = [[[V(16 + ((m * 7 + ft) * 2 + u) * 4, 4) for u in range(2)] for ft in range(7)] for m in range(2)]
QT = [[A((2 * dt + u) * 4, 4) for u in range(2)] for dt in range(16)]
FRA = [A(128 + 4 * i, 4) for i in range(8)]
HB = [[A(160 + (u * 4 + kf) * 4, 4) for kf in range(4)] for u in range(2)]
vP = [V(240 + i) for i in range(16)]
vNaddrLo, vNaddrHi = V(4), V(5)
vPaddrLo, vPaddrHi = V(6), V(7)
vDmaU, vDmaP, vDmaN = V(8), V(9), V(10)
vSt = V(11)
ACCD = [[[V(16 + ((b * 4 + nt) * 2 + u) * 4, 4) for u in range(2)] for nt in range(4)] for b in range(2)]
vPk = [V(80 + 4 * i, 4) for i in range(4)]

sX, sK, sV, sWQ, sWO, sU, sW2, sWS = [S(8 + 4 * i, 4) for i in range(8)]
sRet = S(40, 2)
sWave, sHead, sQblk, sM0, sCnt = S(42), S(43), S(44), S(45), S(46)
sKoff, sVoff, sUoff, sPoff, sDoff, sWoff = S(47), S(48), S(49), S(50), S(51), S(52)
sStF, sStS = [S(53), S(54)], [S(55), S(56)]
sTmp = [S(57 + i) for i in range(7)]
sKh = S(80)
sStamp = 82

STAGES = [("U", i) for i in range(7)] + [("P", i) for i in range(7)] + [("D", i) for i in range(4)] + [("X", 0), ("X", 1)]
K0 = len(STAGES)
STAGES += [("K", 0)]
for j in range(31): STAGES += [("K", j + 1), ("V", j)]
STAGES += [("V", 31)]
V31 = len(STAGES) - 1
W0 = len(STAGES)
STAGES += [("W", i) for i in range(7)]
NST = len(STAGES)
def stK(j): return K0 if j == 0 else K0 + 2 * j - 1
def stV(j): return V31 if j == 31 else K0 + 2 * j + 2
assert STAGES[stK(5)] == ("K", 5) and STAGES[stV(5)] == ("V", 5) and stK(1) % 4 == 1 and V31 % 4 == 3

def has_dma(st): return st < NST and STAGES[st][0] != "X"
def next_dma_stage(st):
    st += 1
    while st < NST and not has_dma(st): st += 1
    return st
def m0_init(st):
    return [salu("s_add_u32", "m0", sM0, RB[st % 4])] if st < NST else []

def dma_ops(st):
    ty, i = STAGES[st]
    groups = []
    nxt = m0_init(next_dma_stage(st))
    for ii in range(8):
        if ty in "KV":
            srd, soff = (sK, sKoff) if ty == "K" else (sV, sVoff)
            g = [dma(vDma, srd, soff, off=ii * 512, tag=st)]
            g += [salu("s_add_u32", "m0", "m0", BSTR - 512)] if ii < 7 else nxt + [salu("s_add_u32", soff, soff, 32768)]
        else:
            if ty == "U":   srd, soff, vo, rowb = sU, sUoff, vDmaU, 3584
            elif ty == "P": srd, soff, vo, rowb = sWQ, sPoff, vDmaP, 8192
            elif ty == "D": srd, soff, vo, rowb = sW2, sDoff, vDmaN, 896
            else:           srd, soff, vo, rowb = sWO, sWoff, vDmaN, 896
            g = [dma(vo, srd, soff, tag=st)]
            if ty in "UP":
                step = [1, 1, 1, 5, 1, 1, 1, 64 - 11][ii] * rowb
            elif ty == "D":
                step = rowb if ii < 7 else 256 - 7 * rowb
            else:
                step = rowb if ii < 7 else 128 - 7 * rowb
            g += [salu("s_add_u32", "m0", "m0", BSTR)] if ii < 7 else nxt
            g.append(salu("s_add_u32", soff, soff, step & 0xffffffff))
        groups.append(g)
    return groups

def dma_items(st, lo, hi):
    if not has_dma(st): return []
    items = []
    for ii, g in enumerate(dma_ops(st)):
        r = lo + (hi - lo) * ii // 8
        items.append(Item(g[0], rel=r, dl=min(r + 3, hi - 1)))
        for o in g[1:]: items.append(Item(o, rel=min(r + 1, hi - 1), dl=min(r + 5, hi - 1)))
    return items

def bar_ops(st): return [wait_vm_tag([st], lgkm0=True), barrier()]

class Frag:
    def __init__(self, st, buf, reads, mfmas, first=False):
        self.st, self.buf, self.reads, self.mfmas, self.first = st, buf, reads, mfmas, first

def tr2(buf, lo, hi, addr, o0, o1):
    a, base = (lo, 0) if addr < HALF else (hi, HALF)
    return [dsr("ds_read_b64_tr_b16", buf[0:2], a, addr - base + o0), dsr("ds_read_b64_tr_b16", buf[2:4], a, addr - base + o1)]

_fa = [0]
def nextA():
    b = FRA[_fa[0] % 8]; _fa[0] += 1; return b

def frags_U():
    out = []
    for i in range(7):
        st = i
        for sl in range(2):
            ks = 2 * i + sl
            for ft in range(7):
                for m in range(2):
                    b = nextA()
                    base = RB[st % 4] + sl * SLOT + m * 8 * BSTR + ft * 32
                    out.append(Frag(st, b, tr2(b, vNaddrLo, vNaddrHi, base, 0, 256),
                                    [mfma(GU[m][ft][u], b, XN[u][ks], 0 if ks == 0 else GU[m][ft][u]) for u in range(2)],
                                    first=(sl == 0 and ft == 0 and m == 0)))
    return out

def frags_P():
    out = []
    for i in range(7):
        st = 7 + i
        for sl in range(2):
            ks = 2 * i + sl
            for dt in range(16):
                b = nextA()
                base = RB[st % 4] + sl * SLOT + dt * 32
                out.append(Frag(st, b, tr2(b, vNaddrLo, vNaddrHi, base, 0, 8 * BSTR),
                                [mfma(QT[dt][u], b, XN[u][ks], 0 if ks == 0 else QT[dt][u]) for u in range(2)],
                                first=(sl == 0 and dt == 0)))
    return out

def frags_D():
    out = []
    for grp in range(7):
        st, sl = 14 + grp // 2, grp % 2
        acc = ACCD[grp & 1]
        for kf in range(4):
            for nt in range(4):
                b = nextA()
                base = RB[st % 4] + sl * SLOT + 2 * kf * 128 + nt * 32
                out.append(Frag(st, b, tr2(b, vPaddrLo, vPaddrHi, base, 0, 128),
                                [mfma(acc[nt][u], b, HB[u][kf], 0 if kf == 0 else acc[nt][u]) for u in range(2)],
                                first=(sl == 0 and kf == 0 and nt == 0)))
    return out

def frags_K(j, Sn, cinit, kaddr=None):
    st = stK(j)
    out = []
    for f in range(16):
        kt, ks = f >> 3, f & 7
        b = FRV[f % 4]
        rb = RB[st % 4]
        a, base = (vKaddr, HALF) if kaddr is None else (kaddr, 0)
        rd = [dsr("ds_read_b128", b, a, rb - base + kt * 512 + ks * 64)]
        mf = []
        for u in range(4):
            d = Sn[u][4 * kt:4 * kt + 4]
            mf.append(mfma(d, b, Q[u][ks], cinit[u] if ks == 0 else d))
        out.append(Frag(st, b, rd, mf, first=(f == 0)))
    return out

def frags_V(j, Sc, zero=False, vaddr=None):
    st = stV(j)
    out = []
    for f in range(16):
        b = FRV[f % 4]
        rb = RB[st % 4]
        a, base = (vVaddr, 0) if vaddr is None else (vaddr, HALF)
        rd = [dsr("ds_read_b64_tr_b16", b[2 * jj:2 * jj + 2], a, rb - base + jj * 512 + f * 32) for jj in range(2)]
        out.append(Frag(st, b, rd, [mfma(O[f][u], b, Sc[u][0:4], 0 if zero else O[f][u]) for u in range(4)], first=(f == 0)))
    return out

OB = [[V(128 + (u * 8 + ks) * 4, 4) for ks in range(8)] for u in range(2)]
FRW = [V(96 + 4 * i, 4) for i in range(8)]
def frags_W():
    out = []
    n = 0
    for grp in range(7):
        st = W0 + grp
        acc = ACCD[grp & 1]
        for ks in range(8):
            sl, kq = ks >> 2, ks & 3
            for nt in range(4):
                b = FRW[n % 8]; n += 1
                base = RB[st % 4] + sl * SLOT + 2 * kq * 128 + nt * 32
                out.append(Frag(st, b, tr2(b, vPaddrLo, vPaddrHi, base, 0, 128),
                                [mfma(acc[nt][u], b, OB[u][ks], 0 if ks == 0 else acc[nt][u]) for u in range(2)],
                                first=(ks == 0 and nt == 0)))
    return out

def section(frags, npre, nxt, extra=None, post_extra=None, dma_first=None, verbose=False, no_dma_after=None):
    bb = []; first = []; last = []
    for f in frags:
        first.append(len(bb)); bb += f.mfmas; last.append(len(bb) - 1)
    n = len(bb)
    lastuse = {}
    rel_of = {}
    seq = list(frags) + list(nxt)
    for i, f in enumerate(seq):
        key = str(f.buf)
        rel_of[i] = lastuse.get(key, -1)
        if i < len(frags): lastuse[key] = last[i]
        else: lastuse[key] = n - 1
    rd = []; bar = {}
    prev = -1
    for i in range(npre, len(seq)):
        f = seq[i]
        rel = max(rel_of[i], prev)
        if f.first:
            rel = min(n - 1, max(rel, prev + OPT["bardelay"]))
            rd.append(Item(bar_ops(f.st), rel=rel, dl=rel)); bar[f.st] = rel
        for o in f.reads: rd.append(Item(o, rel=min(rel, n - 1), dl=min(n - 1, rel + 2)))
        prev = rel
    post = {}
    for i in range(1, len(frags)): post[first[i] - 1] = [wait_regs(frags[i].buf.regs())]
    if nxt: post[n - 1] = [wait_regs(nxt[0].buf.regs())]
    dm = []
    bars = sorted(bar.items(), key=lambda x: x[1])
    if dma_first is not None:
        hi = bars[0][1] if bars else n
        dm += dma_items(dma_first, 0, max(hi - 1, 8))
    carry = None
    for k, (s_, g) in enumerate(bars):
        if k + 1 < len(bars):
            if no_dma_after is None or s_ + 3 <= no_dma_after: dm += dma_items(s_ + 3, g + 1, bars[k + 1][1] - 1)
        else: carry = s_ + 3
    class Info: pass
    info = Info(); info.first, info.last, info.bar, info.n = first, last, bar, n
    streams = dict(rd=rd, dma=dm)
    if extra: streams.update(extra(info))
    if post_extra:
        for g, ops in post_extra(info).items():
            post[g] = post.get(g, []) + ops
    return schedule2(bb, streams, OPT["cap"], post=post, verbose=verbose), carry

def xreduce(op, x, t):
    return [valu("v_mov_b32", t, x), perm16(x, t), valu(op, x, x, t), valu("v_mov_b32", t, x), perm32(x, t), valu(op, x, x, t)]

def round_bf16(x):
    return [valu("v_cvt_pk_bf16_f32", x, x, x), valu("v_and_b32", x, 0xffff0000, x)]

def stamp(k):
    if not OPT["stamps"]: return []
    return [raw(f"s_memtime s[{sStamp + 2 * k}:{sStamp + 2 * k + 1}]", "smem"), raw("s_waitcnt lgkmcnt(0)", "wait")]

def setup():
    o = []; e = o.append
    e(raw("s_cmp_ge_u32 s2, 256")); e(raw("s_cbranch_scc1 L_done", "branch"))
    e(raw("s_load_dwordx16 s[64:79], s[0:1], 0", "smem"))
    e(raw("s_load_dwordx2 s[4:5], s[0:1], 64", "smem"))
    e(raw("s_load_dwordx2 s[6:7], s[0:1], 88", "smem"))
    if OPT["stamps"]: e(raw(f"s_memtime s[{sStamp}:{sStamp+1}]", "smem"))
    e(valu("v_lshrrev_b32", vP[0], 6, V(0)))
    e(valu("v_and_b32", vLane, 63, V(0)))
    e(valu("v_readfirstlane_b32", sWave, vP[0]))
    e(salu("s_and_b32", sHead, S(2), 7)); e(salu("s_lshl_b32", sHead, sHead, 1))
    e(salu("s_bfe_u32", sTmp[0], S(2), 0x10003)); e(salu("s_add_u32", sHead, sHead, sTmp[0]))
    e(salu("s_lshr_b32", sQblk, S(2), 4))
    g, q16 = vP[1], vP[2]
    e(valu("v_lshrrev_b32", g, 4, vLane)); e(valu("v_and_b32", q16, 15, vLane))
    sHi, sLo = sTmp[1], sTmp[2]
    e(salu("s_lshr_b32", sHi, sWave, 1)); e(salu("s_and_b32", sLo, sWave, 1))
    e(salu("s_lshl_b32", sTmp[0], sQblk, 7)); e(salu("s_lshl_b32", sTmp[3], sWave, 5)); e(salu("s_add_u32", sTmp[0], sTmp[0], sTmp[3]))
    e(valu("v_add_u32", vP[3], sTmp[0], q16)); e(valu("v_mul_u32_u24", vP[3], 896, vP[3])); e(valu("v_lshl_add_u32", vP[3], g, 4, vP[3]))
    e(raw("s_waitcnt lgkmcnt(0)", "wait"))
    def srd(d, lo, size):
        e(salu("s_mov_b32", d[0], S(lo))); e(salu("s_mov_b32", d[1], S(lo + 1)))
        e(salu("s_mov_b32", d[2], size)); e(salu("s_mov_b32", d[3], 0x20000))
    srd(sX, 64, 2048 * 896)
    e(salu("s_movk_i32", sTmp[3], 14336))
    for u in range(2):
        for ks in range(14): e(bload(XN[u][ks], vP[3], sX, 0 if u == 0 else sTmp[3], off=ks * 64))
    e(salu("s_cmp_eq_u32", sLo, 0))
    e(salu("s_cselect_b32", sU[0], S(76), S(78))); e(salu("s_cselect_b32", sU[1], S(77), S(79)))
    e(salu("s_mov_b32", sU[2], 448 * 3584)); e(salu("s_mov_b32", sU[3], 0x20000))
    e(valu("v_and_b32", vP[4], 1, g)); e(valu("v_lshrrev_b32", vP[5], 1, g))
    e(valu("v_lshlrev_b32", vP[6], 2, vP[4])); e(valu("v_lshl_add_u32", vP[6], vP[5], 4, vP[6]))
    e(valu("v_mul_u32_u24", vDmaU, 3584, vP[6])); e(valu("v_lshl_add_u32", vDmaU, q16, 4, vDmaU))
    e(salu("s_mul_i32", sM0, sHi, SLOT)); e(salu("s_mul_i32", sTmp[0], sLo, 8 * BSTR)); e(salu("s_add_u32", sM0, sM0, sTmp[0]))
    e(salu("s_mul_i32", sUoff, sHi, 32 * 3584)); e(salu("s_mul_i32", sTmp[0], sHead, 224)); e(salu("s_add_u32", sUoff, sUoff, sTmp[0]))
    o += m0_init(0)
    for st in range(3):
        for grp in dma_ops(st): o += grp
    e(salu("s_lshl_b32", sTmp[0], sHead, 20))
    for d, lo in ((sK, 66), (sV, 68)):
        e(salu("s_add_u32", d[0], S(lo), sTmp[0])); e(salu("s_addc_u32", d[1], S(lo + 1), 0))
        e(salu("s_mov_b32", d[2], 1 << 20)); e(salu("s_mov_b32", d[3], 0x20000))
    srd(sWQ, 70, 448 * 8192); srd(sWO, 72, 4096 * 896); srd(sW2, 4, 1792 * 896); srd(sWS, 6, 2 * PART + (1 << 22 if OPT["stamps"] or OPT["dbg"] else 0))
    e(salu("s_lshl_b32", sKoff, sHi, 14)); e(salu("s_lshl_b32", sTmp[0], sLo, 12)); e(salu("s_add_u32", sKoff, sKoff, sTmp[0]))
    e(salu("s_mov_b32", sVoff, sKoff))
    e(salu("s_lshl_b32", sPoff, sHi, 18)); e(salu("s_lshl_b32", sTmp[0], sLo, 15)); e(salu("s_add_u32", sPoff, sPoff, sTmp[0]))
    e(salu("s_lshl_b32", sTmp[0], sHead, 9)); e(salu("s_add_u32", sPoff, sPoff, sTmp[0]))
    e(salu("s_mul_i32", sDoff, sHead, 112 * 896)); e(salu("s_mul_i32", sTmp[0], sLo, 8 * 896)); e(salu("s_add_u32", sDoff, sDoff, sTmp[0]))
    e(salu("s_lshl_b32", sTmp[3], sHi, 7)); e(salu("s_add_u32", sDoff, sDoff, sTmp[3]))
    e(salu("s_mul_i32", sWoff, sHead, 256 * 896)); e(salu("s_add_u32", sWoff, sWoff, sTmp[0]))
    e(salu("s_mul_i32", sTmp[3], sHi, 128 * 896)); e(salu("s_add_u32", sWoff, sWoff, sTmp[3]))
    e(salu("s_mul_i32", sKh, sLo, SLOT))
    e(salu("s_lshl_b32", sTmp[0], sQblk, 3)); e(salu("s_lshl_b32", sTmp[3], sWave, 1)); e(salu("s_add_u32", sTmp[0], sTmp[0], sTmp[3]))
    e(salu("s_mul_i32", sTmp[0], sTmp[0], 14 * 16384)); e(salu("s_lshl_b32", sTmp[3], sHead, 10)); e(salu("s_add_u32", sStF[0], sTmp[0], sTmp[3]))
    e(salu("s_add_u32", sStF[1], sStF[0], 14 * 16384))
    e(salu("s_add_u32", sStS[0], sStF[0], PART)); e(salu("s_add_u32", sStS[1], sStF[1], PART))
    e(valu("v_lshrrev_b32", vP[6], 5, vLane)); e(valu("v_and_b32", vP[7], 31, vLane))
    e(valu("v_lshlrev_b32", vDma, 13, vP[6])); e(valu("v_lshl_add_u32", vDma, vP[7], 4, vDma))
    e(valu("v_lshlrev_b32", vDmaP, 17, vP[6])); e(valu("v_lshl_add_u32", vDmaP, vP[7], 4, vDmaP))
    e(valu("v_lshrrev_b32", vP[6], 3, vLane)); e(valu("v_and_b32", vP[7], 7, vLane))
    e(valu("v_mul_u32_u24", vDmaN, 16 * 896, vP[6])); e(valu("v_lshl_add_u32", vDmaN, vP[7], 4, vDmaN))
    e(valu("v_lshlrev_b32", vSt, 4, vLane))
    e(valu("v_bfe_u32", vP[6], vLane, 2, 2)); e(valu("v_lshl_add_u32", vP[6], vP[4], 2, vP[6]))
    e(valu("v_and_b32", vP[7], 3, vLane))
    e(valu("v_mul_u32_u24", vNaddrLo, BSTR, vP[6])); e(valu("v_lshl_add_u32", vNaddrLo, vP[5], 9, vNaddrLo))
    e(valu("v_lshl_add_u32", vNaddrLo, vP[7], 3, vNaddrLo)); e(valu("v_add_u32", vNaddrHi, HALF, vNaddrLo))
    e(valu("v_lshrrev_b32", vP[6], 2, vLane)); e(valu("v_mul_u32_u24", vPaddrLo, BSTR, vP[6]))
    e(valu("v_lshl_add_u32", vPaddrLo, vP[7], 3, vPaddrLo)); e(valu("v_add_u32", vPaddrHi, HALF, vPaddrLo))
    e(valu("v_add_u32", vVaddr, sKh, vPaddrLo))
    e(valu("v_mul_u32_u24", vKaddr, BSTR, q16)); e(valu("v_lshl_add_u32", vKaddr, g, 4, vKaddr))
    e(valu("v_add_u32", vKaddr, sKh, vKaddr)); e(valu("v_add_u32", vKaddr, HALF, vKaddr))
    return o

vR = [vP[12], vP[13]]; vNB = [vP[14], vP[15]]
def ln_stats():
    o = []; e = o.append
    ones = sTmp[4]
    e(salu("s_mov_b32", ones, 0x3f803f80))
    for u in range(2):
        a = [vP[4 * u + i] for i in range(4)]
        for i in range(4): e(valu("v_mov_b32", a[i], 0))
    for ks in range(14):
        for u in range(2):
            a = [vP[4 * u + i] for i in range(4)]
            for i in range(4):
                x = XN[u][ks][i]
                e(valu("v_dot2c_f32_bf16", a[i & 1], ones, x)); e(valu("v_dot2c_f32_bf16", a[2 + (i & 1)], x, x))
    for u in range(2):
        a = [vP[4 * u + i] for i in range(4)]
        t = vP[8 + u]
        e(valu("v_add_f32", a[0], a[0], a[1])); e(valu("v_add_f32", a[2], a[2], a[3]))
        o += xreduce("v_add_f32", a[0], t) + xreduce("v_add_f32", a[2], t)
        mean, var = a[0], a[2]
        e(valu("v_mul_f32", mean, 1.0 / 448, mean)); e(valu("v_mul_f32", var, 1.0 / 448, var))
        e(valu("v_fma_f32", var, f"-{mean}", mean, var)); e(valu("v_max_f32", var, 0, var))
        o += round_bf16(var)
        e(valu("v_add_f32", var, 1e-5, var)); o += round_bf16(var)
        e(valu("v_sqrt_f32", var, var)); o += round_bf16(var)
        e(valu("v_rcp_f32", vR[u], var))
        o += round_bf16(mean)
        e(valu("v_mul_f32", vNB[u], mean, vR[u])); e(valu("v_sub_f32", vNB[u], 0, vNB[u]))
    return o

def ln_apply(ks):
    o = []; e = o.append
    n = 0
    for u in range(2):
        for i in range(4):
            x = XN[u][ks][i]
            lo, hi = vP[(2 * n) % 8], vP[(2 * n) % 8 + 1]; n += 1
            e(valu("v_lshlrev_b32", lo, 16, x)); e(valu("v_and_b32", hi, 0xffff0000, x))
            e(valu("v_fma_f32", lo, lo, vR[u], vNB[u])); e(valu("v_fma_f32", hi, hi, vR[u], vNB[u]))
            e(valu("v_cvt_pk_bf16_f32", x, lo, hi))
    return o

def silu_ops():
    o = []; e = o.append
    for ft in range(7):
        for u in range(2):
            g, up = GU[0][ft][u], GU[1][ft][u]
            t = [vP[4 * (u & 1) + i] for i in range(4)]
            for r in range(4): e(valu("v_mul_f32", t[r], -LOG2E, g[r]))
            for r in range(4): e(valu("v_exp_f32", t[r], t[r]))
            for r in range(4): e(valu("v_mul_f32", g[r], g[r], up[r]))
            for r in range(4): e(valu("v_add_f32", t[r], 1.0, t[r]))
            for r in range(4): e(valu("v_rcp_f32", t[r], t[r]))
            for r in range(4): e(valu("v_mul_f32", g[r], g[r], t[r]))
            for p in range(2):
                e(valu("v_cvt_pk_bf16_f32", up[p], g[2 * p], g[2 * p + 1]))
            for p in range(2):
                e(valu("v_accvgpr_write_b32", HB[u][ft >> 1][2 * (ft & 1) + p], up[p]))
    for u in range(2):
        for p in range(2): e(valu("v_accvgpr_write_b32", HB[u][3][2 + p], 0))
    return o

vXaddr = vT[3]
def qconv_ops(xbase_own):
    o = []; e = o.append
    for u in range(2):
        for ks in range(8):
            q = Q[u][ks]
            t = [vP[8 * (ks & 1) + i] for i in range(8)]
            for h in range(2):
                for r in range(4): e(valu("v_accvgpr_read_b32", t[4 * h + r], QT[2 * ks + h][u][r]))
            for i in range(8): e(valu("v_mul_f32", t[i], QSCALE, t[i]))
            for p in range(4): e(valu("v_cvt_pk_bf16_f32", q[p], t[2 * p], t[2 * p + 1]))
            e(perm32(q[0], q[2])); e(perm32(q[1], q[3])); e(perm16(q[0], q[2])); e(perm16(q[1], q[3]))
            e(dsw("ds_write_b128", vXaddr, q, (u * 8 + ks) * 1024))
    return o

def outconv_ops(acc, grp, sbase, k0):
    o = []; e = o.append
    for u in range(2):
        for half in range(2):
            pk = vPk[(k0 + 2 * u + half) % 4]
            for t in range(2):
                a = acc[2 * half + t][u]
                e(valu("v_cvt_pk_bf16_f32", pk[2 * t], a[0], a[1])); e(valu("v_cvt_pk_bf16_f32", pk[2 * t + 1], a[2], a[3]))
            st = sTmp[(2 * u + half) % 4]
            e(salu("s_add_u32", st, sbase[u], (grp * 2 + half) * 16384))
            e(bstore(pk, vSt, sWS, st, tag="st"))
    return o

def items(ops, rel, dl): return [Item(o, rel=rel, dl=dl) for o in ops]

def exp_groups(Sc):
    groups = []
    for u in range(4):
        for hp in range(2):
            r = 4 * hp; x = Sc[u]
            groups.append([valu("v_exp_f32", x[r], x[r]), valu("v_exp_f32", x[r + 1], x[r + 1]), valu("v_exp_f32", x[r + 2], x[r + 2]),
                           valu("v_add_f32", vL[u], vL[u], x[r]), valu("v_add_f32", vL[u], vL[u], x[r + 1]),
                           valu("v_exp_f32", x[r + 3], x[r + 3]),
                           valu("v_cvt_pk_bf16_f32", x[2 * hp], x[r], x[r + 1]),
                           valu("v_add_f32", vL[u], vL[u], x[r + 2]), valu("v_add_f32", vL[u], vL[u], x[r + 3]),
                           valu("v_cvt_pk_bf16_f32", x[2 * hp + 1], x[r + 2], x[r + 3])])
    return groups
NG1 = OPT["split"] // 4
def sm_part(Sc, part, rel, dl):
    g = exp_groups(Sc)
    g = g[:NG1] if part == 0 else g[NG1:]
    return [Item(o, rel=rel, dl=dl) for grp in g for o in grp]

def max_items(Sn, rel0, rel1, dl):
    r0 = [Sn[u][r] for u in range(4) for r in range(4)]
    r1 = [Sn[u][4 + r] for u in range(4) for r in range(4)]
    seq = [(valu("v_max3_f32", vTmax, r0[0], r0[1], r0[2]), rel0)]
    for i in range(3, 15, 2): seq.append((valu("v_max3_f32", vTmax, vTmax, r0[i], r0[i + 1]), rel0))
    seq.append((valu("v_max3_f32", vTmax, vTmax, r0[15], r1[0]), rel1))
    for i in range(1, 15, 2): seq.append((valu("v_max3_f32", vTmax, vTmax, r1[i], r1[i + 1]), rel1))
    seq.append((valu("v_max_f32", vTmax, vTmax, r1[15]), rel1))
    seq.append((valu("v_cmp_lt_f32", "vcc", THR, vTmax), rel1))
    return [Item(o, rel=r, dl=dl) for o, r in seq]

stubs = []
def branch(kind, site, par):
    nm = f"{kind}_{site}"
    if nm not in [s[0] for s in stubs]: stubs.append((nm, f"L_r1_{par}" if kind == "r1" else "L_r2"))
    return [raw(f"s_cbranch_vccnz L_stub_{nm}", "branch", rd=["vcc"]), label(f"L_ret_{nm}")]

def rowmax(x, tm, t2):
    return [valu("v_max3_f32", tm, x[0], x[1], x[2]), valu("v_max3_f32", tm, tm, x[3], x[4]), valu("v_max3_f32", tm, tm, x[5], x[6]),
            valu("v_max_f32", tm, tm, x[7])] + xreduce("v_max_f32", tm, t2)

def rare1(par):
    Sx = SBUF[par]
    ops = [label(f"L_r1_{par}"), nop(7)]
    for u in range(4):
        tm, t2 = vX[0], vX[1]
        ops += rowmax(Sx[u], tm, t2)
        ops.append(valu("v_max_f32", tm, 0, tm))
        for r in range(8): ops.append(valu("v_sub_f32", Sx[u][r], Sx[u][r], tm))
        for r in range(4): ops.append(valu("v_sub_f32", NEGM[u][r], NEGM[u][r], tm))
        ops.append(valu("v_exp_f32", vF[u], f"-{tm}"))
        ops.append(valu("v_mul_f32", vL[u], vL[u], vF[u]))
    return ops + [nop(3), raw(f"s_setpc_b64 {sRet}", "branch", rd=sRet.regs())]

def rare2():
    ops = [label("L_r2"), nop(15)]
    for dt in range(16):
        for u in range(4):
            for i in range(4): ops.append(valu("v_accvgpr_read_b32", vX[i], O[dt][u][i]))
            for i in range(4): ops.append(valu("v_mul_f32", vX[i], vX[i], vF[u]))
            for i in range(4): ops.append(valu("v_accvgpr_write_b32", O[dt][u][i], vX[i]))
    return ops + [nop(3), raw(f"s_setpc_b64 {sRet}", "branch", rd=sRet.regs())]

vV31 = vT[6]
LOOP_LO, LOOP_HI = 2, 28
def iteration(j, carry):
    Sc, Sn = SBUF[j & 1], SBUF[(j + 1) & 1]
    ops = [marker(("iter", j))]
    site = f"{j & 1}" if LOOP_LO <= j < LOOP_HI else f"p{j}"
    if j > 0: ops += branch("r2", site, 0)
    brk = OPT["brk"]
    fr = frags_K(j + 1, Sn, NEGM) + frags_V(j, Sc, zero=(j == 0))
    nxt = frags_K(j + 2, Sc, NEGM)[:4] if j < 30 else frags_V(31, Sn, vaddr=vV31)[:4]
    def extra(info):
        return dict(sm=sm_part(Sc, 1, -1, 61) + sm_part(Sn, 0, brk, 127), mx=max_items(Sn, 36, 67, brk - 1))
    def pe(info): return {brk: branch("r1", site, (j + 1) & 1)}
    body, carry = section(fr, 4, nxt, extra=extra, post_extra=pe, dma_first=carry if carry is not None and carry <= V31 else None,
                          verbose=OPT["verbose"] and j == 2, no_dma_after=V31)
    return ops + body, carry

XA = lambda w: 0
def last_iteration():
    Sc = SBUF[1]
    ops = [marker(("iter", 31))] + branch("r2", "p31", 0)
    fr = frags_V(31, Sc, vaddr=vV31)
    vOa, vOb = vY[0], vY[1]
    pre = [valu("v_lshlrev_b32", vOa, 4, vLane), salu("s_mul_i32", sTmp[0], sWave, 24576), salu("s_lshl_b32", sTmp[1], sWave, 13),
           salu("s_add_u32", sTmp[1], sTmp[1], 3 * STG),
           valu("v_add_u32", vOb, sTmp[1], vOa), valu("v_add_u32", vOa, sTmp[0], vOa)]
    def extra(info):
        wr = []
        for dt in range(12):
            for u in (2, 3):
                wr.append(Item(dsw("ds_write_b128", vOa, O[dt][u], (dt * 2 + u - 2) * 1024), rel=min(63, info.last[dt] + 6), dl=63))
        return dict(sm=sm_part(Sc, 1, -1, -1), wr=wr)
    body, _ = section(fr, 4, [], extra=extra)
    ops += pre + body
    ops += [wait_lgkm0(), barrier()]
    for dt in range(12, 16):
        for u in (2, 3): ops.append(dsw("ds_write_b128", vOb, O[dt][u], ((dt - 12) * 2 + u - 2) * 1024))
    return ops

def combine():
    o = [marker(("iter", 90))]; e = o.append
    t = vX[0]
    for u in range(4): o += xreduce("v_add_f32", vL[u], t)
    st = V(32 + 4, 4)
    e(valu("v_mov_b32", st[0], NEGM[2][0])); e(valu("v_mov_b32", st[1], vL[2])); e(valu("v_mov_b32", st[2], NEGM[3][0])); e(valu("v_mov_b32", st[3], vL[3]))
    a = vX[1]
    e(salu("s_lshl_b32", sTmp[0], sWave, 10)); e(salu("s_add_u32", sTmp[0], sTmp[0], SPARE))
    e(valu("v_lshlrev_b32", vSt, 4, vLane))
    e(valu("v_add_u32", a, sTmp[0], vSt))
    e(dsw("ds_write_b128", a, st, 0))
    e(salu("s_xor_b32", sTmp[2], sWave, 1))
    e(salu("s_lshl_b32", sTmp[0], sTmp[2], 10)); e(salu("s_add_u32", sTmp[0], sTmp[0], SPARE)); e(valu("v_add_u32", a, sTmp[0], vSt))
    pa, pb = vX[2], vX[3]
    e(salu("s_mul_i32", sTmp[0], sTmp[2], 24576)); e(valu("v_add_u32", pa, sTmp[0], vSt))
    e(salu("s_lshl_b32", sTmp[1], sTmp[2], 13)); e(salu("s_add_u32", sTmp[1], sTmp[1], 3 * STG)); e(valu("v_add_u32", pb, sTmp[1], vSt))
    o += [wait_lgkm0(), barrier()]
    e(dsr("ds_read_b128", st, a, 0))
    RX = [[V(128 + (dt * 2 + u) * 4, 4) for u in range(2)] for dt in range(16)]
    for dt in range(16):
        for u in range(2):
            if dt < 12: e(dsr("ds_read_b128", RX[dt][u], pa, (dt * 2 + u) * 1024))
            else: e(dsr("ds_read_b128", RX[dt][u], pb, ((dt - 12) * 2 + u) * 1024))
            if (dt * 2 + u) % 12 == 11: e(wait_lgkm0())
    wk = [vF[0], vF[1]]; wp = [vF[2], vF[3]]
    for u in range(2):
        nm_o, l_o, nm_p, l_p = NEGM[u][0], vL[u], st[2 * u], st[2 * u + 1]
        mn, fa, fb = vT[0], vT[1], vT[2]
        e(valu("v_min_f32", mn, nm_o, nm_p))
        e(valu("v_sub_f32", fa, mn, nm_o)); e(valu("v_sub_f32", fb, mn, nm_p))
        e(valu("v_exp_f32", fa, fa)); e(valu("v_exp_f32", fb, fb))
        e(valu("v_mul_f32", mn, fa, l_o)); e(valu("v_fma_f32", mn, fb, l_p, mn))
        e(valu("v_rcp_f32", mn, mn))
        e(valu("v_mul_f32", wk[u], fa, mn)); e(valu("v_mul_f32", wp[u], fb, mn))
    o += [wait_lgkm0(), barrier()]
    e(valu("v_lshrrev_b32", vX[0], 3, vLane)); e(valu("v_and_b32", vX[1], 7, vLane))
    e(valu("v_mul_u32_u24", vDmaN, 16 * 896, vX[0])); e(valu("v_lshl_add_u32", vDmaN, vX[1], 4, vDmaN))
    o += m0_init(W0)
    for s_ in range(W0, W0 + 3):
        for grp in dma_ops(s_): o += grp
    e(valu("v_sub_u32", vPaddrLo, vVaddr, sKh)); e(valu("v_add_u32", vPaddrHi, HALF, vPaddrLo))
    e(valu("v_lshlrev_b32", vSt, 4, vLane))
    TMPB = [[A((4 * dt + 2) * 4 + 0, 2) for dt in range(16)], [A((4 * dt + 3) * 4, 2) for dt in range(16)]]
    tt = [V(64 + i) for i in range(16)]
    n = 0
    for dt in range(16):
        for u in range(2):
            x = [tt[(4 * n + i) % 16] for i in range(4)]; n += 1
            for r in range(4): e(valu("v_accvgpr_read_b32", x[r], O[dt][u][r]))
            for r in range(4): e(valu("v_mul_f32", x[r], x[r], wk[u]))
            for r in range(4): e(valu("v_fma_f32", x[r], RX[dt][u][r], wp[u], x[r]))
            e(valu("v_cvt_pk_bf16_f32", RX[dt][u][0], x[0], x[1])); e(valu("v_cvt_pk_bf16_f32", RX[dt][u][1], x[2], x[3]))
    return o, RX

def build_main():
    prog = setup()
    prog += stamp(1)
    prog += ln_stats()
    prog += ln_apply(0) + ln_apply(1)
    prog += stamp(2)
    fU, fP, fD = frags_U(), frags_P(), frags_D()
    Sn = SBUF[0]
    vK0 = vT[5]
    fK0 = frags_K(0, Sn, [0] * 4, kaddr=vK0)
    prog += bar_ops(0)
    for f in fU[:8]: prog += f.reads
    nU, nP, nD = len(fU), len(fP), len(fD)
    XQ = [18, 19]
    def extra(info):
        ln = []
        for ks in range(2, 14):
            dl = info.first[ks * 14] - 3
            ln += items(ln_apply(ks), -1, dl)
        endU, endP = info.last[nU - 1], info.last[nU + nP - 1]
        sil = items(silu_ops(), endU + 5, endP - 2)
        xa = [salu("s_lshr_b32", sTmp[5], sWave, 1), salu("s_mul_i32", sTmp[5], sTmp[5], RB[19 % 4] - RB[18 % 4]),
              salu("s_add_u32", sTmp[5], sTmp[5], sKh), salu("s_add_u32", sTmp[5], sTmp[5], RB[18 % 4]),
              valu("v_add_u32", vXaddr, sTmp[5], vSt)]
        qc = qconv_ops(None)
        relq = endP + 5
        qi = items(xa, relq, info.n - 1)
        for o in qc:
            qi.append(Item(o, rel=max(relq, info.bar[16] + 1) if o.kind == "dsw" else relq, dl=info.n - 1))
        oc = []
        for grp in range(7):
            lastm = info.last[nU + nP + 16 * grp + 15]
            dl = info.last[nU + nP + 16 * (grp + 2) - 1] - 30 if grp + 2 <= 6 else info.n - 1
            oc += items(outconv_ops(ACCD[grp & 1], grp, sStF, 0), min(lastm + 5, info.n - 1), max(min(lastm + 5, info.n - 1), min(dl, info.n - 1)))
        return dict(ln=ln, sil=sil, qc=qi, oc=oc)
    body, carry = section(fU + fP + fD, 8, [], extra=extra, dma_first=3, verbose=OPT["verbose"])
    prog += body
    prog += stamp(3)
    assert carry == 20, carry
    for grp in dma_ops(20): prog += grp
    prog += [wait_lgkm0(), barrier()]
    prog += [salu("s_sub_u32", sTmp[0], SLOT, sKh), salu("s_sub_u32", sTmp[0], sTmp[0], sKh),
             valu("v_add_u32", vXaddr, sTmp[0], vXaddr)]
    for u in range(2):
        for ks in range(8): prog.append(dsr("ds_read_b128", Q[2 + u][ks], vXaddr, (u * 8 + ks) * 1024))
        prog.append(wait_lgkm0())
    for grp in dma_ops(21): prog += grp
    prog += [valu("v_subrev_u32", vK0, HALF, vKaddr), valu("v_add_u32", vV31, HALF, vVaddr)]
    for u in range(4): prog.append(valu("v_mov_b32", vL[u], 0))
    prog.append(salu("s_mov_b32", sCnt, (LOOP_HI - LOOP_LO) // 2))
    prog += bar_ops(K0)
    for grp in dma_ops(22): prog += grp
    for f in fK0[:4]: prog += f.reads
    body, carry = section(fK0, 4, frags_K(1, SBUF[1], NEGM)[:4], dma_first=23)
    prog += body
    for u in range(4):
        tm, t2 = vX[0], vX[1]
        prog += rowmax(Sn[u], tm, t2)
        for r in range(8): prog.append(valu("v_sub_f32", Sn[u][r], Sn[u][r], tm))
        for r in range(4): prog.append(valu("v_sub_f32", NEGM[u][r], 0, tm))
    for it in sm_part(Sn, 0, 0, 0): prog += it.ops
    prog += stamp(4)
    for j in range(31):
        it, carry = iteration(j, carry)
        if LOOP_LO <= j < LOOP_HI and (j - LOOP_LO) % 2 == 1:
            it += [salu("s_sub_u32", sCnt, sCnt, 1), salu("s_cmp_lg_u32", sCnt, 0), raw("s_cbranch_scc1 L_loop", "branch", rd=["scc"])]
        prog += it
    prog += last_iteration()
    prog += stamp(5)
    cmb, RX = combine()
    prog += cmb
    global OB
    OB = [[A((u * 8 + ks) * 4, 4) for ks in range(8)] for u in range(2)]
    for u in range(2):
        for ks in range(8):
            for h in range(2):
                for p in range(2): prog.append(valu("v_accvgpr_write_b32", OB[u][ks][2 * h + p], RX[2 * ks + h][u][p]))
    prog += stamp(6)
    fW = frags_W()
    prog += bar_ops(W0)
    for f in fW[:8]: prog += f.reads
    def extraW(info):
        oc = []
        for grp in range(7):
            lastm = info.last[32 * grp + 31]
            dl = info.last[32 * (grp + 1) + 31] - 8 if grp + 1 <= 6 else info.n - 1
            r = min(lastm + 5, info.n - 1)
            oc += items(outconv_ops(ACCD[grp & 1], grp, sStS, 0), r, max(r, dl))
        return dict(oc=oc)
    body, _ = section(fW, 8, [], extra=extraW, dma_first=W0 + 3, verbose=OPT["verbose"])
    prog += body
    prog += stamp(7)
    if OPT["stamps"]:
        prog += [salu("s_lshl_b32", sTmp[0], S(2), 2), salu("s_add_u32", sTmp[0], sTmp[0], sWave), salu("s_lshl_b32", sTmp[0], sTmp[0], 6),
                 salu("s_add_u32", sTmp[0], sTmp[0], 2 * PART), valu("v_mov_b32", V(20), 0)]
        for k in range(1, 8):
            prog += [salu("s_sub_u32", sTmp[1], S(sStamp + 2 * k), S(sStamp)), valu("v_mov_b32", V(21), sTmp[1]),
                     bstore(V(21), V(20), sWS, sTmp[0], off=4 * k)]
    prog += [label("L_done"), raw("s_endpgm", "branch")]
    return prog

def finish(prog):
    prog = insert_waits(prog)
    rep = []
    prog = pad_hazards(prog, report=rep)
    segs = []; cur = ("pro", [])
    segs.append(cur)
    for op in prog:
        if op.kind == "pseudo" and op.tag and op.tag[0] == "mark":
            cur = (op.tag[1][1], []); segs.append(cur)
        cur[1].append(op)
    d = dict(segs)
    for j in range(LOOP_LO + 2, LOOP_HI):
        a, b = text_of(d[j]), text_of(d[j - 2])
        if a != b:
            import difflib
            print("MISMATCH iter", j); print("\n".join(list(difflib.unified_diff(b.split("\n"), a.split("\n"), lineterm=""))[:40])); sys.exit(1)
    body = ""
    for k, ops in segs:
        if isinstance(k, int) and LOOP_LO + 2 <= k < LOOP_HI: continue
        if k == LOOP_LO: body += ".p2align 6\nL_loop:\n"
        body += text_of(ops) + "\n"
    tail = []
    for nm, tgt in stubs:
        tail += [label(f"L_stub_{nm}"), raw(f"s_call_b64 {sRet}, {tgt}", "branch"), raw(f"s_branch L_ret_{nm}", "branch")]
    tail += pad_hazards(rare1(0)) + pad_hazards(rare1(1)) + pad_hazards(rare2())
    body += text_of(tail) + "\n"
    print("nops inserted:", len(rep), "in loop:", [o.text for o in d[LOOP_LO] if o.kind == "nop"], "total instrs", body.count("\n"))
    return body

def build_reduce():
    o = []; e = o.append
    e(raw("s_cmp_ge_u32 s2, 448")); e(raw("s_cbranch_scc1 L_rdone", "branch"))
    e(raw("s_load_dwordx2 s[4:5], s[0:1], 0", "smem")); e(raw("s_load_dwordx2 s[6:7], s[0:1], 72", "smem")); e(raw("s_load_dwordx2 s[20:21], s[0:1], 88", "smem"))
    rX, rO, rW = S(8, 4), S(12, 4), S(16, 4)
    e(valu("v_lshrrev_b32", V(1), 6, V(0))); e(valu("v_and_b32", V(0), 63, V(0)))
    e(valu("v_readfirstlane_b32", S(22), V(1)))
    e(salu("s_lshl_b32", S(23), S(2), 2)); e(salu("s_add_u32", S(23), S(23), S(22)))
    e(valu("v_lshlrev_b32", V(2), 4, V(0)))
    e(salu("s_lshl_b32", S(24), S(23), 14))
    e(salu("s_add_u32", S(25), S(24), PART))
    e(raw("s_waitcnt lgkmcnt(0)", "wait"))
    for d, lo, sz in ((rX, 4, 2048 * 896), (rO, 6, 2048 * 896), (rW, 20, 2 * PART)):
        e(salu("s_mov_b32", d[0], S(lo))); e(salu("s_mov_b32", d[1], S(lo + 1))); e(salu("s_mov_b32", d[2], sz)); e(salu("s_mov_b32", d[3], 0x20000))
    LD = [[V(32 + (m * 16 + h) * 4, 4) for h in range(16)] for m in range(2)]
    for h4 in range(4):
        for m in range(2):
            for hh in range(4): e(bload(LD[m][4 * h4 + hh], V(2), rW, S(24 + m), off=hh * 1024))
        if h4 < 3:
            e(salu("s_add_u32", S(24), S(24), 4096)); e(salu("s_add_u32", S(25), S(25), 4096))
    e(salu("s_mul_i32", S(26), S(23), 4682)); e(salu("s_lshr_b32", S(26), S(26), 16))
    e(salu("s_mul_i32", S(27), S(26), 14)); e(salu("s_sub_u32", S(27), S(23), S(27)))
    e(salu("s_mul_i32", S(26), S(26), 16 * 896)); e(salu("s_lshl_b32", S(27), S(27), 6)); e(salu("s_add_u32", S(26), S(26), S(27)))
    e(valu("v_and_b32", V(3), 15, V(0))); e(valu("v_mul_u32_u24", V(3), 896, V(3)))
    e(valu("v_lshrrev_b32", V(4), 4, V(0))); e(valu("v_lshl_add_u32", V(3), V(4), 3, V(3)))
    XV = [V(6, 2), V(8, 2)]
    for t in range(2): e(bload(XV[t], V(3), rX, S(26), off=32 * t))
    ACC = [[V(10 + m * 8 + i) for i in range(8)] for m in range(2)]
    tmp = [V(26 + i) for i in range(4)]
    for h in range(16):
        for m in range(2):
            for p in range(4):
                x = LD[m][h][p]
                if h == 0:
                    e(valu("v_lshlrev_b32", ACC[m][2 * p], 16, x)); e(valu("v_and_b32", ACC[m][2 * p + 1], 0xffff0000, x))
                else:
                    a, b = tmp[2 * (p & 1)], tmp[2 * (p & 1) + 1]
                    e(valu("v_lshlrev_b32", a, 16, x)); e(valu("v_and_b32", b, 0xffff0000, x))
                    e(valu("v_add_f32", ACC[m][2 * p], ACC[m][2 * p], a)); e(valu("v_add_f32", ACC[m][2 * p + 1], ACC[m][2 * p + 1], b))
    F, Sx = ACC[0], ACC[1]
    T_ = [V(32 + i) for i in range(8)]
    for i in range(8): o += round_bf16(F[i]) + round_bf16(Sx[i])
    for i in range(8): e(valu("v_mul_f32", T_[i], -LOG2E, F[i]))
    for i in range(8): e(valu("v_exp_f32", T_[i], T_[i]))
    for i in range(8): e(valu("v_add_f32", T_[i], 1.0, T_[i]))
    for i in range(8): e(valu("v_rcp_f32", T_[i], T_[i]))
    for i in range(8): e(valu("v_mul_f32", F[i], F[i], T_[i]))
    for i in range(8): o += round_bf16(F[i])
    for i in range(8): e(valu("v_mul_f32", F[i], F[i], Sx[i]))
    for i in range(8): o += round_bf16(F[i])
    for t in range(2):
        for p in range(2):
            x = XV[t][p]
            e(valu("v_lshlrev_b32", tmp[0], 16, x)); e(valu("v_and_b32", tmp[1], 0xffff0000, x))
            e(valu("v_add_f32", tmp[0], tmp[0], F[4 * t + 2 * p])); e(valu("v_add_f32", tmp[1], tmp[1], F[4 * t + 2 * p + 1]))
            e(valu("v_cvt_pk_bf16_f32", x, tmp[0], tmp[1]))
        e(bstore(XV[t], V(3), rO, S(26), off=32 * t))
    e(label("L_rdone")); e(raw("s_endpgm", "branch"))
    return text_of(pad_hazards(insert_waits(o))) + "\n"
assert all((w * 4682) >> 16 == w // 14 for w in range(1792))

HDR = open("recurrent_scan__mha_block_cached__glu_gated_swiglu__prompt.s.ref").read().split("; Override")[0]
def kd(name, vg, acc, sg):
    return f""".amdhsa_kernel {name}
  .amdhsa_next_free_vgpr {vg}
  .amdhsa_next_free_sgpr {sg}
  .amdhsa_accum_offset {acc}
  .amdhsa_group_segment_fixed_size 0
  .amdhsa_kernarg_size 96
  .amdhsa_user_sgpr_count 2
  .amdhsa_user_sgpr_kernarg_segment_ptr 1
  .amdhsa_system_sgpr_workgroup_id_x 1
.end_amdhsa_kernel
"""
main = finish(build_main())
red = build_reduce()
txt = HDR + """; @launch kernel=main_kernel grid=(256,1,1) block=(256,1,1) lds=163840
; @launch kernel=red_kernel grid=(448,1,1) block=(256,1,1) lds=0
.amdgcn_target "amdgcn-amd-amdhsa--gfx950"
.text
.globl main_kernel
.p2align 8
.type main_kernel,@function
main_kernel:
""" + main + """.globl red_kernel
.p2align 8
.type red_kernel,@function
red_kernel:
""" + red + """.section .rodata,"a"
.p2align 6
""" + kd("main_kernel", 512, 256, 100) + ".p2align 6\n" + kd("red_kernel", 160, 160, 32)
open(sys.argv[1], "w").write(txt)
```

```python
import re

def R(kind, lo, n=1):
    return [f"{kind}{i}" for i in range(lo, lo + n)]

def rs(kind, lo, n=1):
    return f"{kind}{lo}" if n == 1 else f"{kind}[{lo}:{lo+n-1}]"

class Reg:
    __slots__ = ("k", "lo", "n")
    def __init__(self, k, lo, n=1):
        self.k, self.lo, self.n = k, lo, n
    def __str__(self): return rs(self.k, self.lo, self.n)
    def regs(self): return R(self.k, self.lo, self.n)
    def __getitem__(self, i):
        if isinstance(i, slice):
            st = i.start or 0
            en = self.n if i.stop is None else i.stop
            assert 0 <= st < en <= self.n, (st, en, self.n)
            return Reg(self.k, self.lo + st, en - st)
        assert 0 <= i < self.n, (i, self.n)
        return Reg(self.k, self.lo + i, 1)
def V(lo, n=1): return Reg("v", lo, n)
def A(lo, n=1): return Reg("a", lo, n)
def S(lo, n=1): return Reg("s", lo, n)

COST = dict(mfma=8, valu=4, trans=8, salu=4, dsr=4, dsw=8, vmem=8, dma=8, wait=4, nop=4, barrier=4,
            branch=4, label=0, perm=8, pseudo=0, smem=4)

class Op:
    __slots__ = ("text", "kind", "rd", "wr", "cost", "tag", "srcc", "extra")
    def __init__(self, text, kind, rd=(), wr=(), tag=None, cost=None, srcc=None, extra=None):
        self.text, self.kind = text, kind
        self.rd, self.wr = list(rd), list(wr)
        self.tag = tag
        self.cost = COST[kind] if cost is None else cost
        self.srcc = srcc
        self.extra = extra
    def __repr__(self): return self.text

def _regs_of(x):
    if isinstance(x, Reg): return x.regs()
    if isinstance(x, str):
        if x in ("vcc", "m0", "exec", "scc"): return [x]
        m = re.fullmatch(r"-?(?:abs\()?([vas])(\d+)\)?", x)
        if m: return [m.group(1) + m.group(2)]
        m = re.fullmatch(r"([vas])\[(\d+):(\d+)\]", x)
        if m: return R(m.group(1), int(m.group(2)), int(m.group(3)) - int(m.group(2)) + 1)
    return []

def fmt(x):
    if isinstance(x, float):
        import struct
        if x in (0.5, 1.0, 2.0, 4.0, -0.5, -1.0, -2.0, -4.0): return repr(x)
        if x == 0.0: return "0"
        return "0x%08x" % struct.unpack("<I", struct.pack("<f", x))[0]
    if isinstance(x, int):
        if -16 <= x <= 64: return str(x)
        return "0x%x" % (x & 0xffffffff)
    return str(x)

TRANS = ("v_exp_f32", "v_log_f32", "v_rcp_f32", "v_rsq_f32", "v_sqrt_f32")

def mfma(d, a, b, c):
    cr = _regs_of(c)
    nm = "v_mfma_f32_32x32x16_bf16" if d.n == 16 else "v_mfma_f32_16x16x32_bf16"
    return Op(f"{nm} {d}, {a}, {b}, {fmt(c)}", "mfma", rd=a.regs() + b.regs() + cr, wr=d.regs(),
              srcc=cr, extra=(a.regs() + b.regs()))

def valu(op, d, *src, mods="", rmw=False):
    k = "trans" if op in TRANS else "valu"
    rd = []
    for s_ in src: rd += _regs_of(s_)
    wr = _regs_of(d)
    if rmw or op.startswith("v_fmac") or op.startswith("v_dot2c"): rd += wr
    if op.startswith("v_cndmask") and len(src) == 2: rd.append("vcc")
    t = f"{op} {fmt(d)}, " + ", ".join(fmt(s_) for s_ in src)
    if op.startswith("v_cndmask") and len(src) == 2: t += ", vcc"
    return Op(t + (" " + mods if mods else ""), k, rd=rd, wr=wr)

def perm32(x, y):
    return Op(f"v_permlane32_swap_b32 {x}, {y}", "perm", rd=x.regs() + y.regs(), wr=x.regs() + y.regs())

def perm16(x, y):
    return Op(f"v_permlane16_swap_b32 {x}, {y}", "perm", rd=x.regs() + y.regs(), wr=x.regs() + y.regs())

def salu(op, d, *src, scc=True):
    rd = []
    for s_ in src: rd += _regs_of(s_)
    wr = _regs_of(d)
    if op in ("s_addk_i32", "s_mulk_i32"): rd += wr
    if op.startswith("s_cmp"):
        rd += wr; wr = ["scc"]
    elif op in ("s_mov_b32", "s_mov_b64", "s_mul_i32", "s_movk_i32", "s_getpc_b64", "s_mul_hi_u32", "s_cselect_b32"):
        pass
    else:
        wr = wr + ["scc"]
    if op in ("s_addc_u32", "s_subb_u32", "s_cselect_b32"): rd.append("scc")
    t = f"{op} {fmt(d)}" + "".join(", " + fmt(s_) for s_ in src)
    return Op(t, "salu", rd=rd, wr=wr)

def dsr(op, d, addr, off=0, tag=None):
    assert 0 <= off < 65536, off
    return Op(f"{op} {d}, {addr}" + (f" offset:{off}" if off else ""), "dsr", rd=addr.regs(), wr=d.regs(), tag=tag)

def dsw(op, addr, data, off=0, tag=None):
    assert 0 <= off < 65536, off
    return Op(f"{op} {addr}, {data}" + (f" offset:{off}" if off else ""), "dsw", rd=addr.regs() + data.regs(), tag=tag)

def dma(voff, srd, soff, off=0, tag=None, flags=""):
    assert 0 <= off < 4096
    return Op(f"buffer_load_dwordx4 {voff}, {srd}, {fmt(soff)} offen" + (f" offset:{off}" if off else "") + (" " + flags if flags else "") + " lds",
              "dma", rd=voff.regs() + srd.regs() + _regs_of(soff) + ["m0"], tag=tag)

def bload(d, voff, srd, soff, off=0, tag=None, flags=""):
    assert 0 <= off < 4096
    op = {1: "buffer_load_dword", 2: "buffer_load_dwordx2", 4: "buffer_load_dwordx4"}[d.n]
    return Op(f"{op} {d}, {voff}, {srd}, {fmt(soff)} offen" + (f" offset:{off}" if off else "") + (" " + flags if flags else ""),
              "vmem", rd=voff.regs() + srd.regs() + _regs_of(soff), wr=d.regs(), tag=tag)

def bstore(data, voff, srd, soff, off=0, tag=None, flags=""):
    assert 0 <= off < 4096
    op = {1: "buffer_store_dword", 2: "buffer_store_dwordx2", 4: "buffer_store_dwordx4"}[data.n]
    return Op(f"{op} {data}, {voff}, {srd}, {fmt(soff)} offen" + (f" offset:{off}" if off else "") + (" " + flags if flags else ""),
              "vmem", rd=voff.regs() + srd.regs() + _regs_of(soff) + data.regs(), tag=tag, extra=("store", data.regs()))

def raw(text, kind="salu", rd=(), wr=(), cost=None): return Op(text, kind, rd=rd, wr=wr, cost=cost)
def label(name): return Op(f"{name}:", "label")
def nop(n): return Op(f"s_nop {n}", "nop", extra=n + 1, cost=4 * (n + 1))
def barrier(): return Op("s_barrier", "barrier")
def wait_vm_tag(tags, lgkm0=False):
    return Op("", "pseudo", tag=("waitvm", tuple(tags), lgkm0), cost=4)
def wait_all(): return Op("", "pseudo", tag=("waitall",), cost=4)
def wait_lgkm0(): return Op("", "pseudo", tag=("waitvm", (), True), cost=4)
def wait_regs(regs):
    return Op("", "pseudo", rd=regs, tag=("waitregs",), cost=4)
def marker(name): return Op("", "pseudo", tag=("mark", name))

def insert_waits(ops):
    out = []
    lds = []
    vm = []
    def emit_wait(nl, nv):
        parts = []
        if nv is not None: parts.append(f"vmcnt({min(nv,63)})")
        if nl is not None: parts.append(f"lgkmcnt({min(nl,15)})")
        out.append(Op("s_waitcnt " + " ".join(parts), "wait"))
    for op in ops:
        nl = nv = None
        if op.kind == "pseudo" and op.tag and op.tag[0] == "waitall":
            emit_wait(0, 0); lds.clear(); vm.clear(); continue
        if op.kind == "pseudo" and op.tag and op.tag[0] == "waitvm":
            tags, l0 = op.tag[1], op.tag[2]
            idx = [i for i, (d, t) in enumerate(vm) if t in tags]
            if idx: nv = len(vm) - 1 - max(idx)
            if l0 and lds: nl = 0
            if nl is not None or nv is not None:
                emit_wait(nl, nv)
                if nl is not None: lds.clear()
                if nv is not None: del vm[:len(vm) - min(nv, 63)]
            continue
        touched = set(op.rd) | set(op.wr)
        idx = [i for i, d in enumerate(lds) if d & touched]
        if idx: nl = len(lds) - 1 - max(idx)
        idx = [i for i, (d, t) in enumerate(vm) if d & touched]
        if idx: nv = len(vm) - 1 - max(idx)
        if nl is not None or nv is not None:
            emit_wait(nl, nv)
            if nl is not None: del lds[:len(lds) - min(nl, 15)]
            if nv is not None: del vm[:len(vm) - min(nv, 63)]
        if op.kind == "pseudo" and op.tag and op.tag[0] == "waitregs": continue
        if op.kind in ("vmem", "dma") and len(vm) >= 60:
            emit_wait(None, 56); del vm[:len(vm) - 56]
        if op.kind in ("dsr", "dsw") and len(lds) >= 15:
            emit_wait(12, None); del lds[:len(lds) - 12]
        out.append(op)
        if op.kind == "dsr": lds.append(set(op.wr))
        elif op.kind == "dsw": lds.append(set())
        elif op.kind in ("vmem", "dma"): vm.append((set(op.wr), op.tag))
        assert len(vm) <= 63, "too many outstanding VMEM"
    return out

VALU_KINDS = ("valu", "trans", "perm")
def need_states(p, c):
    n = 0
    pw, pr = set(p.wr), set(p.rd)
    cr, cw = set(c.rd), set(c.wr)
    if p.kind in VALU_KINDS:
        vw = {r for r in pw if r[0] in "va" and r not in ("vcc",)}
        sw = {r for r in pw if r[0] == "s" and r != "scc"} | ({"vcc"} & pw)
        if c.kind == "mfma" and vw & cr: n = max(n, 2)
        if c.kind == "perm" and vw & cr: n = max(n, 2)
        if p.kind == "trans" and c.kind in VALU_KINDS and c.kind != "trans" and vw & (cr | cw): n = max(n, 1)
        if p.kind == "trans" and c.kind == "trans" and vw & cr: n = max(n, 1)
        if c.kind in VALU_KINDS and sw & cr: n = max(n, 2)
        if c.kind in ("vmem", "dma") and sw & cr: n = max(n, 5)
        if c.text.startswith("v_readfirstlane") or c.text.startswith("v_readlane"):
            if vw & cr: n = max(n, 1)
        if "exec" in pw and c.kind == "mfma": n = max(n, 4)
        if p.text.startswith("v_dot2"):
            same = c.text.split()[0] == p.text.split()[0]
            if vw & (cr | cw):
                if not same: n = max(n, 3)
                else:
                    srcs = set(c.rd) - set(c.wr)
                    if vw & srcs: n = max(n, 3)
    if p.kind == "mfma":
        big = len(p.wr) == 16
        RAW, OVL, WARC = (12, 10, 7) if big else (8, 6, 3)
        if c.kind == "mfma":
            if pw & set(c.extra): n = max(n, RAW)
            if pw & set(c.srcc):
                if set(c.srcc) != pw: n = max(n, OVL)
            if (pw & cw) and set(c.srcc) != pw and cw != pw: n = max(n, RAW)
        elif c.kind in VALU_KINDS or c.kind in ("vmem", "dma", "dsr", "dsw"):
            if pw & (cr | cw): n = max(n, RAW)
            if c.kind in VALU_KINDS and set(p.srcc) & cw: n = max(n, WARC)
            if c.kind in ("dsr", "vmem") and set(p.srcc) & cw: n = max(n, WARC)
    if p.kind == "salu" and "m0" in pw and c.kind == "dma": n = max(n, 1)
    if p.kind == "vmem" and p.extra and p.extra[0] == "store" and len(p.extra[1]) >= 3:
        if set(p.extra[1]) & cw: n = max(n, 2)
    if p.kind == "dsw" and len(p.rd) >= 4 and (set(p.rd) & cw) and c.kind in VALU_KINDS: n = max(n, 2)
    return n

def states_of(op):
    if op.kind in ("label", "pseudo"): return 0
    if op.kind == "nop": return op.extra
    return 1

def pad_hazards(ops, window=14, report=None):
    out = []
    for op in ops:
        if op.kind not in ("label", "pseudo"):
            dist = 0; need = 0
            for p in reversed(out):
                if dist >= window: break
                if p.kind not in ("label", "pseudo", "nop", "wait"):
                    n = need_states(p, op)
                    if n > dist: need = max(need, n - dist)
                dist += states_of(p)
            if need > 0:
                if report is not None: report.append((need, op.text))
                while need > 0:
                    k = min(need, 16); out.append(nop(k - 1)); need -= k
        out.append(op)
    return out

class Item:
    __slots__ = ("ops", "rel", "dl", "stream", "cost")
    def __init__(self, ops, rel=-1, dl=10**9, stream=None):
        self.ops = ops if isinstance(ops, list) else [ops]
        self.rel, self.dl, self.stream = rel, dl, stream
        self.cost = sum(o.cost for o in self.ops)

def schedule(backbone, streams, budget=32, fixed=None, verbose=False, first_budget=0):
    fixed = fixed or {}
    heads = {k: 0 for k in streams}
    out = []
    n = len(backbone)
    loads = []
    for g in range(-1, n):
        if g >= 0: out += backbone[g][1]
        used = 0
        nxt = (backbone[g + 1][0] + sum(o.cost for o in backbone[g + 1][1])) if g + 1 < n else 8
        cap = (budget if g >= 0 else first_budget) - nxt
        for o in fixed.get(g, []):
            out.append(o); used += o.cost
        while True:
            cands = []
            for k, lst in streams.items():
                i = heads[k]
                if i < len(lst) and lst[i].rel <= g:
                    dl = min(it.dl for it in lst[i:i + 64])
                    cands.append((dl, k))
            if not cands: break
            cands.sort(key=lambda x: x[0])
            placed = False
            for dl, k in cands:
                it = streams[k][heads[k]]
                if dl <= g or used + it.cost <= cap or g == n - 1:
                    out += it.ops; used += it.cost; heads[k] += 1; placed = True
                    break
            if not placed: break
        loads.append(used + nxt)
    for k in streams: assert heads[k] == len(streams[k]), (k, heads[k], len(streams[k]))
    if verbose: print("gap loads:", loads)
    return out

def text_of(ops):
    return "\n".join(("" if o.kind == "label" else "    ") + o.text for o in ops if o.kind != "pseudo" and o.text)


def cls_of(op):
    if op.kind in ("dsr", "dsw", "vmem", "dma"): return "M"
    if op.kind in ("valu", "trans", "perm"): return "V"
    return "S"

def schedule2(backbone, streams, cap, post=None, verbose=False, tail_cap=None):
    post = post or {}
    heads = {k: 0 for k in streams}
    out = []
    n = len(backbone)
    loads = []
    for g in range(-1, n):
        if g >= 0: out.append(backbone[g])
        front = list(post.get(g, []))
        mids, vs, back = [], [], []
        used = max(0, sum(o.cost for o in front if o.kind != "label") - 4) if front else 0
        free = (g >= 0) and not front
        rank = {}
        blocked = set()
        while True:
            cands = []
            for k, lst in streams.items():
                i = heads[k]
                if k not in blocked and i < len(lst) and lst[i].rel <= g:
                    cands.append((min(it.dl for it in lst[i:i + 64]), k))
            if not cands: break
            cands.sort(key=lambda x: x[0])
            placed = False
            for dl, k in cands:
                it = streams[k][heads[k]]
                if not it.ops:
                    heads[k] += 1; placed = True; break
                c = cls_of(it.ops[0])
                r0 = rank.get(k, 0)
                cost = it.cost
                if c == "S":
                    if r0 == 0:
                        r = 0
                        if free: cost -= 4
                    else: r = 3
                else:
                    r = 1 if c == "M" else 2
                force = dl <= g or g == n - 1
                if r < r0:
                    if not force:
                        blocked.add(k); continue
                    r = 3
                if force or used + cost <= (cap if g >= 0 else -1):
                    (front, mids, vs, back)[r].extend(it.ops)
                    if c == "S" and r == 0: free = False
                    rank[k] = r; used += cost; heads[k] += 1; placed = True
                    break
            if not placed: break
        out += front + mids + vs + back
        loads.append(used)
    for k in streams: assert heads[k] == len(streams[k]), (k, heads[k], len(streams[k]))
    if verbose: print("gap loads:", loads, "over:", sum(max(0, l - cap) for l in loads[1:]))
    return out
```

```python
import sys
from asmlib import *

OPT = dict(cap=8, bardelay=4, verbose=0, brk=78, split=16, stamps=0, dbg=0, stflag=0, nofst=0, kvflag=0, rt=0, wflag=0, pf=1, pfflag=0, pfdist=4, pfcode=1, xpre=12, rednof=0, aslist=1, pfearly=0, pfw2=300, pfkv0=450, pfkvs=100, pfwq=4)
for a in sys.argv[2:]:
    k, v = a.split("="); OPT[k] = int(v)

TIMER = 's_memrealtime' if OPT['rt'] else 's_memtime'
BSTR = 1056
SLOT = 16 * BSTR
STG = 2 * SLOT
RB = [0, 2 * STG, STG, 3 * STG]
HALF = 2 * STG
SPARE = 4 * STG
THR = 16.0
XSTR = 928
PBLK = 128 * 448 * 2
XB = 163840 - 128 * XSTR
assert XB >= STG
QSCALE = 1.4426950408889634 / 16.0
LOG2E = 1.4426950408889634
PART = 2048 * 448 * 2 * 16

vLane = V(0)
vKaddr, vVaddr, vDma = V(1), V(2), V(3)
vL = [V(4 + i) for i in range(4)]
vTmax = V(8)
vT = [V(9 + i) for i in range(7)]
FRV = [V(16 + 4 * i, 4) for i in range(4)]
vY = [V(32 + i) for i in range(8)]
vF = [V(40 + i) for i in range(4)]
vX = [V(44 + i) for i in range(4)]
NEGM = [V(48 + 4 * u, 4) for u in range(4)]
SBUF = [[V(64 + 32 * p + 8 * u, 8) for u in range(4)] for p in range(2)]
Q = [[V(128 + 32 * u + 4 * ks, 4) for ks in range(8)] for u in range(4)]
O = [[A((4 * dt + u) * 4, 4) for u in range(4)] for dt in range(16)]
XN = [[V(128 + 56 * u + 4 * ks, 4) for ks in range(14)] for u in range(2)]
GU = [[[V(16 + ((m * 7 + ft) * 2 + u) * 4, 4) for u in range(2)] for ft in range(7)] for m in range(2)]
QT = [[A((2 * dt + u) * 4, 4) for u in range(2)] for dt in range(16)]
FRA = [A(128 + 4 * i, 4) for i in range(8)]
HB = [[A(160 + (u * 4 + kf) * 4, 4) for kf in range(4)] for u in range(2)]
vP = [V(240 + i) for i in range(16)]
vNaddrLo, vNaddrHi = V(4), V(5)
vPaddrLo, vPaddrHi = V(6), V(7)
vDmaU, vDmaP, vDmaN = V(8), V(9), V(10)
vSt = V(11)
ACCD = [[[V(16 + ((b * 4 + nt) * 2 + u) * 4, 4) for u in range(2)] for nt in range(4)] for b in range(2)]
vPk = [V(80 + 4 * i, 4) for i in range(4)]

sX, sK, sV, sWQ, sWO, sU, sW2, sWS = [S(8 + 4 * i, 4) for i in range(8)]
sRet = S(40, 2)
sWave, sHead, sQblk, sM0, sCnt = S(42), S(43), S(44), S(45), S(46)
sKoff, sVoff, sUoff, sPoff, sDoff, sWoff = S(47), S(48), S(49), S(50), S(51), S(52)
sStF, sStS = [S(53), S(54)], [S(55), S(56)]
sTmp = [S(57 + i) for i in range(7)]
sKh = S(80)
sStamp = 82

STAGES = [("U", i) for i in range(7)] + [("P", i) for i in range(7)] + [("D", i) for i in range(4)] + [("K", 0), ("X", 0), ("X", 1)]
K0 = 18
for j in range(31): STAGES += [("K", j + 1), ("V", j)]
STAGES += [("V", 31)]
V31 = len(STAGES) - 1
W0 = len(STAGES)
STAGES += [("W", i) for i in range(7)]
NST = len(STAGES)
def stK(j): return K0 if j == 0 else 19 + 2 * j
def stV(j): return V31 if j == 31 else 22 + 2 * j
assert STAGES[stK(5)] == ("K", 5) and STAGES[stV(5)] == ("V", 5) and stK(1) % 4 == 1 and V31 % 4 == 3
NEXT_OVERRIDE = {21: 23, 23: 22, 22: 24}

def has_dma(st): return st < NST and STAGES[st][0] != "X"
def next_dma_stage(st):
    if st in NEXT_OVERRIDE: return NEXT_OVERRIDE[st]
    st += 1
    while st < NST and not has_dma(st): st += 1
    return st
def m0_init(st):
    return [salu("s_add_u32", "m0", sM0, RB[st % 4])] if st < NST else []

def dma_ops(st):
    ty, i = STAGES[st]
    groups = []
    nxt = m0_init(next_dma_stage(st))
    for ii in range(8):
        if ty in "KV":
            srd, soff = (sK, sKoff) if ty == "K" else (sV, sVoff)
            g = [dma(vDma, srd, soff, off=ii * 512, tag=st, flags=["", "nt", "sc1"][OPT["kvflag"]])]
            g += [salu("s_add_u32", "m0", "m0", BSTR - 512)] if ii < 7 else nxt + [salu("s_add_u32", soff, soff, 32768)]
        else:
            if ty == "U":   srd, soff, vo, rowb = sU, sUoff, vDmaU, 3584
            elif ty == "P": srd, soff, vo, rowb = sWQ, sPoff, vDmaP, 8192
            elif ty == "D": srd, soff, vo, rowb = sW2, sDoff, vDmaN, 896
            else:           srd, soff, vo, rowb = sWO, sWoff, vDmaN, 896
            g = [dma(vo, srd, soff, tag=st, flags=["", "nt", "sc1"][OPT["wflag"]])]
            if ty in "UP":
                step = [1, 1, 1, 5, 1, 1, 1, 64 - 11][ii] * rowb
            elif ty == "D":
                step = rowb if ii < 7 else 256 - 7 * rowb
            else:
                step = rowb if ii < 7 else 128 - 7 * rowb
            g += [salu("s_add_u32", "m0", "m0", BSTR)] if ii < 7 else nxt
            g.append(salu("s_add_u32", soff, soff, step & 0xffffffff))
        groups.append(g)
    return groups

def dma_items(st, lo, hi):
    if not has_dma(st): return []
    items = []
    for ii, g in enumerate(dma_ops(st)):
        r = lo + (hi - lo) * ii // 8
        items.append(Item(g[0], rel=r, dl=min(r + 3, hi - 1)))
        for o in g[1:]: items.append(Item(o, rel=min(r + 1, hi - 1), dl=min(r + 5, hi - 1)))
    return items

BARSTAMP = {0: 1, 3: 2, 7: 3, 10: 4, 14: 5, 16: 6}
def bar_ops(st):
    r = [wait_vm_tag([st] + {W0 + 6: ["stA"], 21: ["stF"]}.get(st, []), lgkm0=True), barrier()]
    if st in BARSTAMP: r += stamp(BARSTAMP[st], 5)
    return r

class Frag:
    def __init__(self, st, buf, reads, mfmas, first=False):
        self.st, self.buf, self.reads, self.mfmas, self.first = st, buf, reads, mfmas, first

def tr2(buf, lo, hi, addr, o0, o1):
    a, base = (lo, 0) if addr < HALF else (hi, HALF)
    return [dsr("ds_read_b64_tr_b16", buf[0:2], a, addr - base + o0), dsr("ds_read_b64_tr_b16", buf[2:4], a, addr - base + o1)]

_fa = [0]
def nextA():
    b = FRA[_fa[0] % 8]; _fa[0] += 1; return b

def frags_U():
    out = []
    for i in range(7):
        st = i
        for sl in range(2):
            ks = 2 * i + sl
            for ft in range(7):
                for m in range(2):
                    b = nextA()
                    base = RB[st % 4] + sl * SLOT + m * 8 * BSTR + ft * 32
                    out.append(Frag(st, b, tr2(b, vNaddrLo, vNaddrHi, base, 0, 256),
                                    [mfma(GU[m][ft][u], b, XN[u][ks], 0 if ks == 0 else GU[m][ft][u]) for u in range(2)],
                                    first=(sl == 0 and ft == 0 and m == 0)))
    return out

def frags_P():
    out = []
    for i in range(7):
        st = 7 + i
        for sl in range(2):
            ks = 2 * i + sl
            for dt in range(16):
                b = nextA()
                base = RB[st % 4] + sl * SLOT + dt * 32
                out.append(Frag(st, b, tr2(b, vNaddrLo, vNaddrHi, base, 0, 8 * BSTR),
                                [mfma(QT[dt][u], b, XN[u][ks], 0 if ks == 0 else QT[dt][u]) for u in range(2)],
                                first=(sl == 0 and dt == 0)))
    return out

def frags_D():
    out = []
    for grp in range(7):
        st, sl = 14 + grp // 2, grp % 2
        acc = ACCD[grp & 1]
        for kf in range(4):
            for nt in range(4):
                b = nextA()
                base = RB[st % 4] + sl * SLOT + 2 * kf * 128 + nt * 32
                out.append(Frag(st, b, tr2(b, vPaddrLo, vPaddrHi, base, 0, 128),
                                [mfma(acc[nt][u], b, HB[u][kf], 0 if kf == 0 else acc[nt][u]) for u in range(2)],
                                first=(sl == 0 and kf == 0 and nt == 0)))
    return out

def frags_K(j, Sn, cinit, kaddr=None):
    st = stK(j)
    out = []
    for f in range(16):
        kt, ks = f >> 3, f & 7
        b = FRV[f % 4]
        rb = RB[st % 4]
        a, base = (vKaddr, HALF) if kaddr is None else (kaddr, 0)
        rd = [dsr("ds_read_b128", b, a, rb - base + kt * 512 + ks * 64)]
        mf = []
        for u in range(4):
            d = Sn[u][4 * kt:4 * kt + 4]
            mf.append(mfma(d, b, Q[u][ks], cinit[u] if ks == 0 else d))
        out.append(Frag(st, b, rd, mf, first=(f == 0)))
    return out

def frags_V(j, Sc, zero=False, vaddr=None):
    st = stV(j)
    out = []
    for f in range(16):
        b = FRV[f % 4]
        rb = RB[st % 4]
        a, base = (vVaddr, 0) if vaddr is None else (vaddr, HALF)
        rd = [dsr("ds_read_b64_tr_b16", b[2 * jj:2 * jj + 2], a, rb - base + jj * 512 + f * 32) for jj in range(2)]
        out.append(Frag(st, b, rd, [mfma(O[f][u], b, Sc[u][0:4], 0 if zero else O[f][u]) for u in range(4)], first=(f == 0)))
    return out

OB = [[V(128 + (u * 8 + ks) * 4, 4) for ks in range(8)] for u in range(2)]
FRW = [V(96 + 4 * i, 4) for i in range(8)]
def frags_W():
    out = []
    n = 0
    for grp in range(7):
        st = W0 + grp
        acc = ACCD[grp & 1]
        for ks in range(8):
            sl, kq = ks >> 2, ks & 3
            for nt in range(4):
                b = FRW[n % 8]; n += 1
                base = RB[st % 4] + sl * SLOT + 2 * kq * 128 + nt * 32
                out.append(Frag(st, b, tr2(b, vPaddrLo, vPaddrHi, base, 0, 128),
                                [mfma(acc[nt][u], b, OB[u][ks], 0 if ks == 0 else acc[nt][u]) for u in range(2)],
                                first=(ks == 0 and nt == 0)))
    return out

def section(frags, npre, nxt, extra=None, post_extra=None, dma_first=None, verbose=False, no_dma_after=None):
    bb = []; first = []; last = []
    for f in frags:
        first.append(len(bb)); bb += f.mfmas; last.append(len(bb) - 1)
    n = len(bb)
    lastuse = {}
    rel_of = {}
    seq = list(frags) + list(nxt)
    for i, f in enumerate(seq):
        key = str(f.buf)
        rel_of[i] = lastuse.get(key, -1)
        if i < len(frags): lastuse[key] = last[i]
        else: lastuse[key] = n - 1
    rd = []; bar = {}
    prev = -1
    for i in range(npre, len(seq)):
        f = seq[i]
        rel = max(rel_of[i], prev)
        if f.first:
            rel = min(n - 1, max(rel, prev + OPT["bardelay"]))
            rd.append(Item(bar_ops(f.st), rel=rel, dl=rel)); bar[f.st] = rel
        for o in f.reads: rd.append(Item(o, rel=min(rel, n - 1), dl=min(n - 1, rel + 2)))
        prev = rel
    post = {}
    for i in range(1, len(frags)): post[first[i] - 1] = [wait_regs(frags[i].buf.regs())]
    if nxt: post[n - 1] = [wait_regs(nxt[0].buf.regs())]
    dm = []
    bars = sorted(bar.items(), key=lambda x: x[1])
    if dma_first is not None:
        hi = max((bars[0][1] if bars else n) - 1, 8)
        lst = dma_first if isinstance(dma_first, list) else [dma_first]
        for k, s_ in enumerate(lst): dm += dma_items(s_, hi * k // len(lst), hi * (k + 1) // len(lst))
    carry = None
    for k, (s_, g) in enumerate(bars):
        if k + 1 < len(bars):
            if no_dma_after is None or s_ + 3 <= no_dma_after: dm += dma_items(s_ + 3, g + 1, bars[k + 1][1] - 1)
        else: carry = s_ + 3
    class Info: pass
    info = Info(); info.first, info.last, info.bar, info.n = first, last, bar, n
    streams = dict(rd=rd, dma=dm)
    if extra: streams.update(extra(info))
    if post_extra:
        for g, ops in post_extra(info).items():
            post[g] = post.get(g, []) + ops
    return schedule2(bb, streams, OPT["cap"], post=post, verbose=verbose), carry

def xreduce(op, x, t):
    return [valu("v_mov_b32", t, x), perm16(x, t), valu(op, x, x, t), valu("v_mov_b32", t, x), perm32(x, t), valu(op, x, x, t)]

def round_bf16(x):
    return [valu("v_cvt_pk_bf16_f32", x, x, x), valu("v_and_b32", x, 0xffff0000, x)]

def stamp(k, which=1):
    if OPT["stamps"] != which: return []
    return [raw(f"{TIMER} s[100:101]", "smem"), raw("s_waitcnt lgkmcnt(0)", "wait"), raw(f"s_mov_b32 s{sStamp + k}, s100")]

sDBG = S(64, 4)
sOUT = S(68, 4)
sPF = S(92, 4)
sPFoff = S(96)
vPFd = V(13)
vPFa = V(37)
def pfload(voff, srd_, soff, off=0):
    o = bload(vPFd, voff, srd_, soff, off=off, tag="pf", flags=["", "nt", "sc1"][OPT["pfflag"]]); o.wr = []
    return o
PFFLAG = ["", "nt", "sc1"][OPT["pfflag"]]
def setup():
    o = []; e = o.append
    e(raw("s_cmp_ge_u32 s2, 256")); e(raw("s_cbranch_scc1 L_done", "branch"))
    e(raw("s_load_dwordx16 s[64:79], s[0:1], 0", "smem"))
    e(raw("s_load_dwordx2 s[4:5], s[0:1], 64", "smem"))
    e(raw("s_load_dwordx2 s[6:7], s[0:1], 88", "smem"))
    if OPT["stamps"]: e(raw(f"{TIMER} s[100:101]", "smem"))
    if OPT["pfcode"]:
        e(raw("s_getpc_b64 s[98:99]\nL_pc:", "salu", wr=["s98", "s99"]))
        e(salu("s_bfe_u32", sTmp[0], S(2), 0x30003))
        e(raw(f"s_mul_i32 {sTmp[0]}, {sTmp[0]}, (L_end-L_pc-16384)/7", "salu", rd=sTmp[0].regs(), wr=sTmp[0].regs()))
        e(salu("s_and_b32", sTmp[0], sTmp[0], 0xffffffc0))
        e(valu("v_lshlrev_b32", vP[1], 6, V(0))); e(valu("v_add_u32", vP[1], sTmp[0], vP[1]))
        e(Op(f"global_load_dword {vPFd}, {vP[1]}, s[98:99]", "vmem", rd=vP[1].regs() + ["s98", "s99"], tag="pf"))
    e(valu("v_lshrrev_b32", vP[0], 6, V(0)))
    e(valu("v_and_b32", vLane, 63, V(0)))
    e(valu("v_readfirstlane_b32", sWave, vP[0]))
    e(salu("s_and_b32", sHead, S(2), 7)); e(salu("s_lshl_b32", sHead, sHead, 1))
    e(salu("s_bfe_u32", sTmp[0], S(2), 0x10003)); e(salu("s_add_u32", sHead, sHead, sTmp[0]))
    e(salu("s_lshr_b32", sQblk, S(2), 4))
    g, q16 = vP[1], vP[2]
    e(valu("v_lshrrev_b32", g, 4, vLane)); e(valu("v_and_b32", q16, 15, vLane))
    sHi, sLo = sTmp[1], sTmp[2]
    e(salu("s_lshr_b32", sHi, sWave, 1)); e(salu("s_and_b32", sLo, sWave, 1))
    e(salu("s_lshl_b32", sTmp[0], sQblk, 7)); e(salu("s_lshl_b32", sTmp[3], sWave, 5)); e(salu("s_add_u32", sTmp[0], sTmp[0], sTmp[3]))
    e(salu("s_mul_i32", sTmp[6], sTmp[0], 896))
    e(salu("s_mul_i32", sTmp[5], sTmp[3], XSTR)); e(salu("s_add_u32", sTmp[5], sTmp[5], XB))
    e(valu("v_mul_u32_u24", vP[3], XSTR, q16)); e(valu("v_lshl_add_u32", vP[3], g, 4, vP[3])); e(valu("v_add_u32", vP[3], sTmp[5], vP[3]))
    e(valu("v_and_b32", vP[4], 1, g)); e(valu("v_lshrrev_b32", vP[5], 1, g))
    e(valu("v_lshlrev_b32", vP[6], 2, vP[4])); e(valu("v_lshl_add_u32", vP[6], vP[5], 4, vP[6]))
    e(valu("v_mul_u32_u24", vDmaU, 3584, vP[6])); e(valu("v_lshl_add_u32", vDmaU, q16, 4, vDmaU))
    e(salu("s_mul_i32", sM0, sHi, SLOT)); e(salu("s_mul_i32", sTmp[0], sLo, 8 * BSTR)); e(salu("s_add_u32", sM0, sM0, sTmp[0]))
    e(salu("s_mul_i32", sUoff, sHi, 32 * 3584)); e(salu("s_mul_i32", sTmp[0], sHead, 224)); e(salu("s_add_u32", sUoff, sUoff, sTmp[0]))
    e(salu("s_lshl_b32", sKoff, sHi, 14)); e(salu("s_lshl_b32", sTmp[0], sLo, 12)); e(salu("s_add_u32", sKoff, sKoff, sTmp[0]))
    e(salu("s_mov_b32", sVoff, sKoff))
    e(salu("s_lshl_b32", sPoff, sHi, 18)); e(salu("s_lshl_b32", sTmp[0], sLo, 15)); e(salu("s_add_u32", sPoff, sPoff, sTmp[0]))
    e(salu("s_lshl_b32", sTmp[0], sHead, 9)); e(salu("s_add_u32", sPoff, sPoff, sTmp[0]))
    e(salu("s_mul_i32", sDoff, sHead, 112 * 896)); e(salu("s_mul_i32", sTmp[0], sLo, 8 * 896)); e(salu("s_add_u32", sDoff, sDoff, sTmp[0]))
    e(salu("s_lshl_b32", sTmp[3], sHi, 7)); e(salu("s_add_u32", sDoff, sDoff, sTmp[3]))
    e(salu("s_mul_i32", sWoff, sHead, 256 * 896)); e(salu("s_add_u32", sWoff, sWoff, sTmp[0]))
    e(salu("s_mul_i32", sTmp[3], sHi, 128 * 896)); e(salu("s_add_u32", sWoff, sWoff, sTmp[3]))
    e(salu("s_mul_i32", sKh, sLo, SLOT))
    e(salu("s_lshl_b32", sTmp[0], sQblk, 4)); e(salu("s_add_u32", sTmp[0], sTmp[0], sHead)); e(salu("s_mul_i32", sTmp[0], sTmp[0], PBLK))
    e(salu("s_lshl_b32", sTmp[3], sWave, 14)); e(salu("s_add_u32", sStF[0], sTmp[0], sTmp[3]))
    e(salu("s_mul_i32", sTmp[3], sWave, 12288)); e(salu("s_add_u32", sStF[1], sTmp[0], sTmp[3])); e(salu("s_add_u32", sStF[1], sStF[1], 65536))
    e(salu("s_add_u32", sStS[0], sStF[0], PART)); e(salu("s_add_u32", sStS[1], sStF[1], PART))
    e(valu("v_lshrrev_b32", vP[6], 5, vLane)); e(valu("v_and_b32", vP[7], 31, vLane))
    e(valu("v_lshlrev_b32", vDma, 13, vP[6])); e(valu("v_lshl_add_u32", vDma, vP[7], 4, vDma))
    e(valu("v_lshlrev_b32", vDmaP, 17, vP[6])); e(valu("v_lshl_add_u32", vDmaP, vP[7], 4, vDmaP))
    l8, l7 = vP[8], vP[9]
    e(valu("v_lshrrev_b32", l8, 3, vLane)); e(valu("v_and_b32", l7, 7, vLane))
    e(valu("v_mul_u32_u24", vDmaN, 16 * 896, l8)); e(valu("v_lshl_add_u32", vDmaN, l7, 4, vDmaN))
    e(valu("v_lshlrev_b32", vSt, 4, vLane))
    e(valu("v_bfe_u32", vP[6], vLane, 2, 2)); e(valu("v_lshl_add_u32", vP[6], vP[4], 2, vP[6]))
    e(valu("v_and_b32", vP[7], 3, vLane))
    e(valu("v_mul_u32_u24", vNaddrLo, BSTR, vP[6])); e(valu("v_lshl_add_u32", vNaddrLo, vP[5], 9, vNaddrLo))
    e(valu("v_lshl_add_u32", vNaddrLo, vP[7], 3, vNaddrLo)); e(valu("v_add_u32", vNaddrHi, HALF, vNaddrLo))
    e(valu("v_lshrrev_b32", vP[6], 2, vLane)); e(valu("v_mul_u32_u24", vPaddrLo, BSTR, vP[6]))
    e(valu("v_lshl_add_u32", vPaddrLo, vP[7], 3, vPaddrLo)); e(valu("v_add_u32", vPaddrHi, HALF, vPaddrLo))
    e(valu("v_add_u32", vVaddr, sKh, vPaddrLo))
    e(valu("v_mul_u32_u24", vKaddr, BSTR, q16)); e(valu("v_lshl_add_u32", vKaddr, g, 4, vKaddr))
    e(valu("v_add_u32", vKaddr, sKh, vKaddr)); e(valu("v_add_u32", vKaddr, HALF, vKaddr))
    e(raw("s_waitcnt lgkmcnt(0)", "wait"))
    if OPT["stamps"]: e(raw(f"s_mov_b32 s{sStamp}, s100"))
    o += stamp(1, 2) + stamp(1, 4)
    def srd(d, lo, size):
        e(salu("s_mov_b32", d[0], S(lo))); e(salu("s_mov_b32", d[1], S(lo + 1)))
        e(salu("s_mov_b32", d[2], size)); e(salu("s_mov_b32", d[3], 0x20000))
    srd(sX, 64, 2048 * 896)
    e(salu("s_cmp_eq_u32", sLo, 0))
    e(salu("s_cselect_b32", sU[0], S(76), S(78))); e(salu("s_cselect_b32", sU[1], S(77), S(79)))
    e(salu("s_cselect_b32", sPF[0], S(66), S(68))); e(salu("s_cselect_b32", sPF[1], S(67), S(69)))
    e(salu("s_mov_b32", sU[2], 448 * 3584)); e(salu("s_mov_b32", sU[3], 0x20000))
    def pf(voff, srd_, soff, off=0): e(pfload(voff, srd_, soff, off))
    if OPT["pf"]:
        e(valu("v_min_u32", vP[10], 4, l7)); e(valu("v_mul_u32_u24", vP[11], 3584, l8)); e(valu("v_lshl_add_u32", vP[10], vP[10], 6, vP[11]))
        e(salu("s_mul_i32", sTmp[0], sQblk, 28)); e(salu("s_mul_i32", sTmp[3], sHi, 14)); e(salu("s_add_u32", sTmp[0], sTmp[0], sTmp[3]))
        e(salu("s_mul_i32", sTmp[0], sTmp[0], 3584)); e(salu("s_mul_i32", sTmp[3], sHead, 224)); e(salu("s_add_u32", sTmp[0], sTmp[0], sTmp[3]))
        e(salu("s_and_b32", sTmp[0], sTmp[0], 0xffffffc0)); e(salu("s_add_u32", sTmp[3], sTmp[0], 8 * 3584))
        pf(vP[10], sU, sTmp[0]); pf(vP[10], sU, sTmp[3])
    o += stamp(2, 4)
    e(valu("v_mov_b32", vP[11], vP[3]))
    e(salu("s_mov_b32", "m0", sTmp[5]))
    e(raw("s_mov_b32 exec_hi, 0x00ffffff", "salu"))
    for r in range(32):
        e(dma(vSt, sX, sTmp[6], off=(r % 4) * 896, tag="x%d" % (r // 16)))
        if r % 4 < 3: e(salu("s_add_u32", "m0", "m0", XSTR - 896))
        else:
            e(salu("s_add_u32", "m0", "m0", XSTR + 3 * 896)); e(salu("s_add_u32", sTmp[6], sTmp[6], 4 * 896))
        if r in (3, 15, 31): o += stamp({3: 3, 15: 4, 31: 5}[r], 4)
    e(raw("s_mov_b64 exec, -1", "salu"))
    o += m0_init(0)
    for grp in dma_ops(0): o += grp
    o += stamp(2, 2) + stamp(6, 4)
    late = []
    for st in (1,):
        for grp in dma_ops(st): late += grp
    e(salu("s_lshl_b32", sTmp[0], sHead, 20))
    for d, lo in ((sK, 66), (sV, 68)):
        e(salu("s_add_u32", d[0], S(lo), sTmp[0])); e(salu("s_addc_u32", d[1], S(lo + 1), 0))
        e(salu("s_mov_b32", d[2], 1 << 20)); e(salu("s_mov_b32", d[3], 0x20000))
    e(salu("s_add_u32", sPF[0], sPF[0], sTmp[0])); e(salu("s_addc_u32", sPF[1], sPF[1], 0))
    e(salu("s_mov_b32", sPF[2], 1 << 20)); e(salu("s_mov_b32", sPF[3], 0x20000))
    srd(sWQ, 70, 448 * 8192); srd(sWO, 72, 4096 * 896); srd(sW2, 4, 1792 * 896); srd(sWS, 6, 2 * PART + (1 << 22 if OPT["stamps"] or OPT["dbg"] else 0))
    e(raw("s_load_dwordx4 s[72:75], s[0:1], 72", "smem")); e(raw("s_waitcnt lgkmcnt(0)", "wait"))
    srd(sOUT, 72, 2048 * 896); srd(sDBG, 74, 256)
    pfl = []
    e = pfl.append
    t0, t1 = sTmp[5], sTmp[6]
    va, vb = V(14), V(15)
    if OPT["pf"]:
        e(valu("v_lshrrev_b32", va, 3, vLane)); e(valu("v_and_b32", vb, 7, vLane))
        e(valu("v_lshlrev_b32", va, 13, va)); e(valu("v_lshl_add_u32", va, vb, 6, va))
        e(salu("s_mul_i32", t0, sQblk, 28)); e(salu("s_mul_i32", t1, sWave, 7)); e(salu("s_add_u32", t0, t0, t1))
        e(salu("s_lshl_b32", t0, t0, 13)); e(salu("s_lshl_b32", t1, sHead, 9)); e(salu("s_add_u32", t0, t0, t1))
        pf(va, sWQ, t0)
        e(valu("v_lshlrev_b32", va, 5, vLane))
        e(salu("s_lshl_b32", t0, sQblk, 2)); e(salu("s_add_u32", t0, t0, sWave)); e(salu("s_mul_i32", t0, t0, 25 * 64))
        e(salu("s_mul_i32", t1, sHead, 112 * 896)); e(salu("s_add_u32", t0, t0, t1))
        pf(va, sW2, t0)
        e(salu("s_lshr_b32", t0, sWave, 1))
        e(salu("s_lshl_b32", sPFoff, sQblk, 1)); e(salu("s_add_u32", sPFoff, sPFoff, t0)); e(salu("s_lshl_b32", sPFoff, sPFoff, 11))
        for k in range(OPT["pfdist"]):
            pf(va, sPF, sPFoff); e(salu("s_add_u32", sPFoff, sPFoff, 65536))
    return o, late, pfl

vR = [vP[12], vP[13]]; vNB = [vP[14], vP[15]]
def ln_stats(late):
    o = []; e = o.append
    ones = sTmp[4]
    e(salu("s_mov_b32", ones, 0x3f803f80))
    for i in range(8): e(valu("v_mov_b32", vP[i], 0))
    for u in range(2):
        e(wait_vm_tag(["x%d" % u]))
        if u == 1: o += stamp(7, 4)
        for ks in range(14): e(dsr("ds_read_b128", XN[u][ks], vP[11], u * 16 * XSTR + ks * 64))
        if u == 1:
            o += [wait_lgkm0(), barrier()] + late
        a = [vP[4 * u + i] for i in range(4)]
        for ks in range(14):
            for i in range(4):
                x = XN[u][ks][i]
                e(valu("v_dot2c_f32_bf16", a[i & 1], ones, x)); e(valu("v_dot2c_f32_bf16", a[2 + (i & 1)], x, x))
    for u in range(2):
        a = [vP[4 * u + i] for i in range(4)]
        t = vP[8 + u]
        e(valu("v_add_f32", a[0], a[0], a[1])); e(valu("v_add_f32", a[2], a[2], a[3]))
        o += xreduce("v_add_f32", a[0], t) + xreduce("v_add_f32", a[2], t)
        mean, var = a[0], a[2]
        e(valu("v_mul_f32", mean, 1.0 / 448, mean)); e(valu("v_mul_f32", var, 1.0 / 448, var))
        e(valu("v_fma_f32", var, f"-{mean}", mean, var)); e(valu("v_max_f32", var, 0, var))
        o += round_bf16(var)
        e(valu("v_add_f32", var, 1e-5, var)); o += round_bf16(var)
        e(valu("v_sqrt_f32", var, var)); o += round_bf16(var)
        e(valu("v_rcp_f32", vR[u], var))
        o += round_bf16(mean)
        e(valu("v_mul_f32", vNB[u], mean, vR[u])); e(valu("v_sub_f32", vNB[u], 0, vNB[u]))
    return o

def ln_apply(ks):
    o = []; e = o.append
    n = 0
    for u in range(2):
        for i in range(4):
            x = XN[u][ks][i]
            lo, hi = vP[(2 * n) % 8], vP[(2 * n) % 8 + 1]; n += 1
            e(valu("v_lshlrev_b32", lo, 16, x)); e(valu("v_and_b32", hi, 0xffff0000, x))
            e(valu("v_fma_f32", lo, lo, vR[u], vNB[u])); e(valu("v_fma_f32", hi, hi, vR[u], vNB[u]))
            e(valu("v_cvt_pk_bf16_f32", x, lo, hi))
    return o

def silu_ops():
    o = []; e = o.append
    for ft in range(7):
        for u in range(2):
            g, up = GU[0][ft][u], GU[1][ft][u]
            t = [vP[4 * (u & 1) + i] for i in range(4)]
            for r in range(4): e(valu("v_mul_f32", t[r], -LOG2E, g[r]))
            for r in range(4): e(valu("v_exp_f32", t[r], t[r]))
            for r in range(4): e(valu("v_mul_f32", g[r], g[r], up[r]))
            for r in range(4): e(valu("v_add_f32", t[r], 1.0, t[r]))
            for r in range(4): e(valu("v_rcp_f32", t[r], t[r]))
            for r in range(4): e(valu("v_mul_f32", g[r], g[r], t[r]))
            for p in range(2):
                e(valu("v_cvt_pk_bf16_f32", up[p], g[2 * p], g[2 * p + 1]))
            for p in range(2):
                e(valu("v_accvgpr_write_b32", HB[u][ft >> 1][2 * (ft & 1) + p], up[p]))
    for u in range(2):
        for p in range(2): e(valu("v_accvgpr_write_b32", HB[u][3][2 + p], 0))
    return o

vXaddr = vT[3]
def qconv_ops(xbase_own):
    o = []; e = o.append
    for u in range(2):
        for ks in range(8):
            q = Q[u][ks]
            t = [vP[8 * (ks & 1) + i] for i in range(8)]
            for h in range(2):
                for r in range(4): e(valu("v_accvgpr_read_b32", t[4 * h + r], QT[2 * ks + h][u][r]))
            for i in range(8): e(valu("v_mul_f32", t[i], QSCALE, t[i]))
            for p in range(4): e(valu("v_cvt_pk_bf16_f32", q[p], t[2 * p], t[2 * p + 1]))
            e(perm32(q[0], q[2])); e(perm32(q[1], q[3])); e(perm16(q[0], q[2])); e(perm16(q[1], q[3]))
            e(dsw("ds_write_b128", vXaddr, q, (u * 8 + ks) * 1024))
    return o

def outconv_ops(acc, grp, sbase, k0):
    o = []; e = o.append
    for u in range(2):
        for half in range(2):
            pk = vPk[(k0 + 2 * u + half) % 4]
            for t in range(2):
                a = acc[2 * half + t][u]
                e(valu("v_cvt_pk_bf16_f32", pk[2 * t], a[0], a[1])); e(valu("v_cvt_pk_bf16_f32", pk[2 * t + 1], a[2], a[3]))
            st = sTmp[(2 * u + half) % 4]
            rem = grp * 2 + half
            if rem < 8: e(salu("s_add_u32", st, sbase[0], (u * 8 + rem) * 1024))
            else: e(salu("s_add_u32", st, sbase[1], (u * 6 + rem - 8) * 1024))
            e(bstore(pk, vSt, sWS, st, tag="stF" if sbase is sStF else ("stA" if rem < 8 else "stB"), flags="sc1"))
    return o

def items(ops, rel, dl): return [Item(o, rel=rel, dl=dl) for o in ops]

def exp_groups(Sc):
    groups = []
    for u in range(4):
        for hp in range(2):
            r = 4 * hp; x = Sc[u]
            groups.append([valu("v_exp_f32", x[r], x[r]), valu("v_exp_f32", x[r + 1], x[r + 1]), valu("v_exp_f32", x[r + 2], x[r + 2]),
                           valu("v_add_f32", vL[u], vL[u], x[r]), valu("v_add_f32", vL[u], vL[u], x[r + 1]),
                           valu("v_exp_f32", x[r + 3], x[r + 3]),
                           valu("v_cvt_pk_bf16_f32", x[2 * hp], x[r], x[r + 1]),
                           valu("v_add_f32", vL[u], vL[u], x[r + 2]), valu("v_add_f32", vL[u], vL[u], x[r + 3]),
                           valu("v_cvt_pk_bf16_f32", x[2 * hp + 1], x[r + 2], x[r + 3])])
    return groups
NG1 = OPT["split"] // 4
def sm_part(Sc, part, rel, dl):
    g = exp_groups(Sc)
    g = g[:NG1] if part == 0 else g[NG1:]
    return [Item(o, rel=rel, dl=dl) for grp in g for o in grp]

def max_items(Sn, rel0, rel1, dl):
    r0 = [Sn[u][r] for u in range(4) for r in range(4)]
    r1 = [Sn[u][4 + r] for u in range(4) for r in range(4)]
    seq = [(valu("v_max3_f32", vTmax, r0[0], r0[1], r0[2]), rel0)]
    for i in range(3, 15, 2): seq.append((valu("v_max3_f32", vTmax, vTmax, r0[i], r0[i + 1]), rel0))
    seq.append((valu("v_max3_f32", vTmax, vTmax, r0[15], r1[0]), rel1))
    for i in range(1, 15, 2): seq.append((valu("v_max3_f32", vTmax, vTmax, r1[i], r1[i + 1]), rel1))
    seq.append((valu("v_max_f32", vTmax, vTmax, r1[15]), rel1))
    seq.append((valu("v_cmp_lt_f32", "vcc", THR, vTmax), rel1))
    return [Item(o, rel=r, dl=dl) for o, r in seq]

stubs = []
def branch(kind, site, par):
    nm = f"{kind}_{site}"
    if nm not in [s[0] for s in stubs]: stubs.append((nm, f"L_r1_{par}" if kind == "r1" else "L_r2"))
    return [raw(f"s_cbranch_vccnz L_stub_{nm}", "branch", rd=["vcc"]), label(f"L_ret_{nm}")]

def rowmax(x, tm, t2):
    return [valu("v_max3_f32", tm, x[0], x[1], x[2]), valu("v_max3_f32", tm, tm, x[3], x[4]), valu("v_max3_f32", tm, tm, x[5], x[6]),
            valu("v_max_f32", tm, tm, x[7])] + xreduce("v_max_f32", tm, t2)

def rare1(par):
    Sx = SBUF[par]
    ops = [label(f"L_r1_{par}"), nop(7)]
    for u in range(4):
        tm, t2 = vX[0], vX[1]
        ops += rowmax(Sx[u], tm, t2)
        ops.append(valu("v_max_f32", tm, 0, tm))
        for r in range(8): ops.append(valu("v_sub_f32", Sx[u][r], Sx[u][r], tm))
        for r in range(4): ops.append(valu("v_sub_f32", NEGM[u][r], NEGM[u][r], tm))
        ops.append(valu("v_exp_f32", vF[u], f"-{tm}"))
        ops.append(valu("v_mul_f32", vL[u], vL[u], vF[u]))
    return ops + [nop(3), raw(f"s_setpc_b64 {sRet}", "branch", rd=sRet.regs())]

def rare2():
    ops = [label("L_r2"), nop(15)]
    for dt in range(16):
        for u in range(4):
            for i in range(4): ops.append(valu("v_accvgpr_read_b32", vX[i], O[dt][u][i]))
            for i in range(4): ops.append(valu("v_mul_f32", vX[i], vX[i], vF[u]))
            for i in range(4): ops.append(valu("v_accvgpr_write_b32", O[dt][u][i], vX[i]))
    return ops + [nop(3), raw(f"s_setpc_b64 {sRet}", "branch", rd=sRet.regs())]

vV31 = vT[6]
LOOP_LO, LOOP_HI = 2, 28
def iteration(j, carry):
    Sc, Sn = SBUF[j & 1], SBUF[(j + 1) & 1]
    ops = [marker(("iter", j))]
    site = f"{j & 1}" if LOOP_LO <= j < LOOP_HI else f"p{j}"
    if j > 0: ops += branch("r2", site, 0)
    brk = OPT["brk"]
    fr = frags_K(j + 1, Sn, NEGM) + frags_V(j, Sc, zero=(j == 0))
    nxt = frags_K(j + 2, Sc, NEGM)[:4] if j < 30 else frags_V(31, Sn, vaddr=vV31)[:4]
    def extra(info):
        pfi = []
        if OPT["pf"] and j % 2 == 0 and j < 28:
            pfi = [Item(pfload(vPFa, sPF, sPFoff), rel=56, dl=66), Item(salu("s_add_u32", sPFoff, sPFoff, 65536), rel=57, dl=70)]
        if j == 30:
            pfi = [Item(salu("s_lshl_b32", sTmp[0], sQblk, 2), rel=10, dl=40), Item(valu("v_mov_b32", V(34), sTmp[0]), rel=12, dl=50),
                   Item(bload(V(35), V(34), sDBG, 0, flags="sc1", tag="pollF"), rel=56, dl=66)]
        if OPT["pf"] and j == 28:
            pfi = [Item(salu("s_lshl_b32", sTmp[0], sQblk, 2), rel=10, dl=40), Item(salu("s_add_u32", sTmp[0], sTmp[0], sWave), rel=10, dl=40),
                   Item(salu("s_mul_i32", sTmp[0], sTmp[0], 3584), rel=10, dl=40), Item(salu("s_mul_i32", sTmp[1], sHead, 256 * 896), rel=10, dl=40),
                   Item(salu("s_add_u32", sTmp[0], sTmp[0], sTmp[1]), rel=10, dl=40),
                   Item(valu("v_lshlrev_b32", vPFa, 6, vLane), rel=10, dl=50), Item(pfload(vPFa, sWO, sTmp[0]), rel=56, dl=66)]
        return dict(sm=sm_part(Sc, 1, -1, 61) + sm_part(Sn, 0, brk, 127), mx=max_items(Sn, 36, 67, brk - 1), pf=pfi)
    def pe(info): return {brk: branch("r1", site, (j + 1) & 1)}
    body, carry = section(fr, 4, nxt, extra=extra, post_extra=pe, dma_first=carry if carry is not None and carry <= V31 else None,
                          verbose=OPT["verbose"] and j == 2, no_dma_after=V31)
    return ops + body, carry

XA = lambda w: 0
def last_iteration():
    Sc = SBUF[1]
    ops = [marker(("iter", 31))] + branch("r2", "p31", 0)
    fr = frags_V(31, Sc, vaddr=vV31)
    vOa, vOb = vY[0], vY[1]
    pre = [valu("v_lshlrev_b32", vOa, 4, vLane), salu("s_mul_i32", sTmp[0], sWave, 24576), salu("s_lshl_b32", sTmp[1], sWave, 13),
           salu("s_add_u32", sTmp[1], sTmp[1], 3 * STG),
           valu("v_add_u32", vOb, sTmp[1], vOa), valu("v_add_u32", vOa, sTmp[0], vOa)]
    def extra(info):
        wr = []
        for dt in range(12):
            for u in (2, 3):
                wr.append(Item(dsw("ds_write_b128", vOa, O[dt][u], (dt * 2 + u - 2) * 1024), rel=min(63, info.last[dt] + 6), dl=63))
        return dict(sm=sm_part(Sc, 1, -1, -1), wr=wr)
    body, _ = section(fr, 4, [], extra=extra)
    ops += pre + body
    ops += [wait_lgkm0(), barrier()]
    for dt in range(12, 16):
        for u in (2, 3): ops.append(dsw("ds_write_b128", vOb, O[dt][u], ((dt - 12) * 2 + u - 2) * 1024))
    return ops

def combine():
    o = [marker(("iter", 90))]; e = o.append
    t = vX[0]
    for u in range(4): o += xreduce("v_add_f32", vL[u], t)
    st = V(32 + 4, 4)
    e(valu("v_mov_b32", st[0], NEGM[2][0])); e(valu("v_mov_b32", st[1], vL[2])); e(valu("v_mov_b32", st[2], NEGM[3][0])); e(valu("v_mov_b32", st[3], vL[3]))
    a = vX[1]
    e(salu("s_lshl_b32", sTmp[0], sWave, 10)); e(salu("s_add_u32", sTmp[0], sTmp[0], SPARE))
    e(valu("v_lshlrev_b32", vSt, 4, vLane))
    e(valu("v_add_u32", a, sTmp[0], vSt))
    e(dsw("ds_write_b128", a, st, 0))
    e(salu("s_xor_b32", sTmp[2], sWave, 1))
    e(salu("s_lshl_b32", sTmp[0], sTmp[2], 10)); e(salu("s_add_u32", sTmp[0], sTmp[0], SPARE)); e(valu("v_add_u32", a, sTmp[0], vSt))
    pa, pb = vX[2], vX[3]
    e(salu("s_mul_i32", sTmp[0], sTmp[2], 24576)); e(valu("v_add_u32", pa, sTmp[0], vSt))
    e(salu("s_lshl_b32", sTmp[1], sTmp[2], 13)); e(salu("s_add_u32", sTmp[1], sTmp[1], 3 * STG)); e(valu("v_add_u32", pb, sTmp[1], vSt))
    o += [wait_lgkm0(), barrier()]
    e(dsr("ds_read_b128", st, a, 0))
    RX = [[V(128 + (dt * 2 + u) * 4, 4) for u in range(2)] for dt in range(16)]
    for dt in range(16):
        for u in range(2):
            if dt < 12: e(dsr("ds_read_b128", RX[dt][u], pa, (dt * 2 + u) * 1024))
            else: e(dsr("ds_read_b128", RX[dt][u], pb, ((dt - 12) * 2 + u) * 1024))
            if (dt * 2 + u) % 12 == 11: e(wait_lgkm0())
    wk = [vF[0], vF[1]]; wp = [vF[2], vF[3]]
    for u in range(2):
        nm_o, l_o, nm_p, l_p = NEGM[u][0], vL[u], st[2 * u], st[2 * u + 1]
        mn, fa, fb = vT[0], vT[1], vT[2]
        e(valu("v_min_f32", mn, nm_o, nm_p))
        e(valu("v_sub_f32", fa, mn, nm_o)); e(valu("v_sub_f32", fb, mn, nm_p))
        e(valu("v_exp_f32", fa, fa)); e(valu("v_exp_f32", fb, fb))
        e(valu("v_mul_f32", mn, fa, l_o)); e(valu("v_fma_f32", mn, fb, l_p, mn))
        e(valu("v_rcp_f32", mn, mn))
        e(valu("v_mul_f32", wk[u], fa, mn)); e(valu("v_mul_f32", wp[u], fb, mn))
    o += [wait_lgkm0(), barrier()]
    e(valu("v_lshrrev_b32", vX[0], 3, vLane)); e(valu("v_and_b32", vX[1], 7, vLane))
    e(valu("v_mul_u32_u24", vDmaN, 16 * 896, vX[0])); e(valu("v_lshl_add_u32", vDmaN, vX[1], 4, vDmaN))
    o += m0_init(W0)
    for s_ in range(W0, W0 + 3):
        for grp in dma_ops(s_): o += grp
    e(valu("v_sub_u32", vPaddrLo, vVaddr, sKh)); e(valu("v_add_u32", vPaddrHi, HALF, vPaddrLo))
    e(valu("v_lshlrev_b32", vSt, 4, vLane))
    TMPB = [[A((4 * dt + 2) * 4 + 0, 2) for dt in range(16)], [A((4 * dt + 3) * 4, 2) for dt in range(16)]]
    e(valu("v_readfirstlane_b32", sTmp[2], V(35))); e(raw("s_nop 3", "salu"))
    e(salu("s_cmp_ge_u32", sTmp[2], 16)); e(raw("s_cbranch_scc1 L_pdone_F", "branch"))
    o += poll("F", offF, V(34), V(35))
    o += red_addr()
    fl = red_loads(0, LDA, [0, 1])
    tt = [V(64 + i) for i in range(16)]
    n = 0
    for dt in range(16):
        for u in range(2):
            k = (len(fl) + 31 - n) // (32 - n)
            o += fl[:k]; fl = fl[k:]
            x = [tt[(4 * n + i) % 16] for i in range(4)]; n += 1
            for r in range(4): e(valu("v_accvgpr_read_b32", x[r], O[dt][u][r]))
            xx = Reg("v", x[0].lo, 4)
            sel = "op_sel:[0,%d] op_sel_hi:[1,%d]" % (u, u)
            sel3 = "op_sel:[0,%d,0] op_sel_hi:[1,%d,1]" % (u, u)
            for h in range(2): e(valu("v_pk_mul_f32", xx[2 * h:2 * h + 2], xx[2 * h:2 * h + 2], V(40, 2), mods=sel))
            for h in range(2): e(valu("v_pk_fma_f32", xx[2 * h:2 * h + 2], RX[dt][u][2 * h:2 * h + 2], V(42, 2), xx[2 * h:2 * h + 2], mods=sel3))
            e(valu("v_cvt_pk_bf16_f32", RX[dt][u][0], x[0], x[1])); e(valu("v_cvt_pk_bf16_f32", RX[dt][u][1], x[2], x[3]))
    return o, RX

offA2 = [salu("s_lshl_b32", sTmp[6], sQblk, 2), salu("s_add_u32", sTmp[6], sTmp[6], 64)]
def signal(off_sgpr_ops, va, vd):
    o = list(off_sgpr_ops)
    t = Reg("s", int(o[-1].wr[0][1:]))
    o += [salu("s_cmp_eq_u32", sWave, 0), salu("s_cselect_b32", t, t, 0x10000),
          valu("v_mov_b32", va, t), valu("v_mov_b32", vd, 1), raw("s_mov_b64 exec, 1", "salu"),
          Op(f"buffer_atomic_add {vd}, {va}, {sDBG}, 0 offen", "vmem", rd=va.regs() + vd.regs() + sDBG.regs(), tag="sig"),
          raw("s_mov_b64 exec, -1", "salu")]
    return o
offF = [salu("s_lshl_b32", sTmp[0], sQblk, 2)]
offA = [salu("s_lshl_b32", sTmp[0], sQblk, 2), salu("s_add_u32", sTmp[0], sTmp[0], 64)]
offB = [salu("s_lshl_b32", sTmp[0], sQblk, 3), salu("s_add_u32", sTmp[0], sTmp[0], 128)]

def poll(name, off_ops, va, vd):
    o = list(off_ops) + [valu("v_mov_b32", va, sTmp[0]), salu("s_mov_b32", sTmp[1], 0), label(f"L_poll_{name}"),
         raw(f"buffer_load_dword {vd}, {va}, {sDBG}, 0 offen sc1", "salu"), raw("s_waitcnt vmcnt(0)", "wait"),
         raw(f"v_readfirstlane_b32 {sTmp[2]}, {vd}", "salu"), salu("s_add_u32", sTmp[1], sTmp[1], 1),
         raw("s_nop 3", "salu"),
         salu("s_cmp_ge_u32", sTmp[2], 16), raw(f"s_cbranch_scc1 L_pdone_{name}", "branch"),
         raw("s_sleep 2", "salu"), salu("s_cmp_lt_u32", sTmp[1], 0x40000), raw(f"s_cbranch_scc1 L_poll_{name}", "branch"),
         label(f"L_pdone_{name}")]
    return o
def poll0(name, off_ops, va, vd):
    return [salu("s_cmp_lg_u32", sWave, 0), raw(f"s_cbranch_scc1 L_pdone_{name}", "branch")] + poll(name, off_ops, va, vd)

LDV = [[V(128 + (k * 16 + h) * 4, 4) for h in range(16)] for k in range(2)]
LDA = [[O[h][2 + k] for h in range(16)] for k in range(2)]
vRa = [V(12), V(14)]
def red_addr():
    return [salu("s_lshl_b32", sTmp[0], sHead, 2), salu("s_add_u32", sTmp[0], sTmp[0], sWave),
            salu("s_lshl_b32", sTmp[1], sTmp[0], 10), salu("s_mul_i32", sTmp[2], sTmp[0], 768), salu("s_add_u32", sTmp[2], sTmp[2], 65536),
            valu("v_lshlrev_b32", vRa[1], 4, vLane), valu("v_add_u32", vRa[0], sTmp[1], vRa[1]), valu("v_add_u32", vRa[1], sTmp[2], vRa[1])]
def red_loads(region, LD, parts):
    o = []
    t = [sTmp[4], sTmp[5]]
    o += [salu("s_mul_i32", t[0], sQblk, 16 * PBLK), salu("s_add_u32", t[0], t[0], region)]
    for h in range(16):
        for k in parts: o.append(bload(LD[k][h], vRa[k], sWS, t[h & 1], flags="sc1", tag="red"))
        if h < 15: o.append(salu("s_add_u32", t[(h + 1) & 1], t[h & 1], PBLK))
    return o
sSelLo, sSelHi = S(72), S(73)
def red_sum(ACC, LD, k, tmp):
    o = []; e = o.append
    for h in range(16):
        src = []
        for p in range(4):
            x = LD[k][h][p]
            if x.k == "a":
                y = tmp[(4 * h + p) % 8]; e(valu("v_accvgpr_read_b32", y, x)); x = y
            src.append(x)
        for p in range(4):
            for hi in range(2):
                acc = ACC[k][2 * p + hi]
                e(valu("v_dot2_f32_bf16", acc, src[p], sSelHi if hi else sSelLo, 0 if h == 0 else acc))
    return o

def tail():
    o = [marker(("iter", 95))]; e = o.append
    G = [[V(16 + k * 8 + i) for i in range(8)] for k in range(2)]
    SA = [[V(32 + k * 8 + i) for i in range(8)] for k in range(2)]
    tmp = [V(96 + i) for i in range(8)]
    T_ = [V(54 + i) for i in range(8)]
    XV = [[V(62 + (k * 2 + t) * 2, 2) for t in range(2)] for k in range(2)]
    vo = [V(70), V(71)]
    c, un, q = V(72), V(73), V(74)
    def silu(k):
        F = G[k]
        for i in range(8): o.extend(round_bf16(F[i]))
        for i in range(8): e(valu("v_mul_f32", T_[i], -LOG2E, F[i]))
        for i in range(8): e(valu("v_exp_f32", T_[i], T_[i]))
        for i in range(8): e(valu("v_add_f32", T_[i], 1.0, T_[i]))
        for i in range(8): e(valu("v_rcp_f32", T_[i], T_[i]))
        for i in range(8): e(valu("v_mul_f32", F[i], F[i], T_[i]))
        for i in range(8): o.extend(round_bf16(F[i]))
    def final(k):
        for i in range(8): o.extend(round_bf16(SA[k][i]))
        for i in range(8): e(valu("v_mul_f32", SA[k][i], SA[k][i], G[k][i]))
        for i in range(8): o.extend(round_bf16(SA[k][i]))
        for t in range(2):
            for p in range(2):
                x = XV[k][t][p]
                e(valu("v_lshlrev_b32", tmp[0], 16, x)); e(valu("v_and_b32", tmp[1], 0xffff0000, x))
                e(valu("v_add_f32", tmp[0], tmp[0], SA[k][4 * t + 2 * p])); e(valu("v_add_f32", tmp[1], tmp[1], SA[k][4 * t + 2 * p + 1]))
                e(valu("v_cvt_pk_bf16_f32", x, tmp[0], tmp[1]))
            e(bstore(XV[k][t], vo[k], sOUT, 0, off=32 * t))
    e(salu("s_mov_b32", sSelLo, 0x00003f80)); e(salu("s_mov_b32", sSelHi, 0x3f800000))
    o += red_sum(G, LDA, 0, tmp)
    o += stamp(2, 7)
    e(wait_all())
    o += stamp(3, 7)
    e(barrier())
    o += signal(offB, V(75), V(76))
    o += poll0("A", offA, V(75), V(76))
    e(barrier())
    o += stamp(6, 6) + stamp(4, 7)
    o += red_loads(PART, LDV, [0])
    e(salu("s_lshl_b32", sTmp[0], sHead, 2)); e(salu("s_add_u32", sTmp[0], sTmp[0], sWave))
    e(salu("s_mul_i32", sTmp[1], sQblk, PBLK))
    e(salu("s_lshr_b32", sTmp[2], sTmp[0], 3)); e(salu("s_mul_i32", sTmp[2], sTmp[2], 16 * 896)); e(salu("s_add_u32", sTmp[2], sTmp[2], sTmp[1]))
    e(salu("s_and_b32", sTmp[3], sTmp[0], 7)); e(salu("s_lshl_b32", sTmp[3], sTmp[3], 6)); e(salu("s_add_u32", sTmp[2], sTmp[2], sTmp[3]))
    e(valu("v_and_b32", vo[0], 15, vLane)); e(valu("v_mul_u32_u24", vo[0], 896, vo[0]))
    e(valu("v_lshrrev_b32", un, 4, vLane)); e(valu("v_lshl_add_u32", vo[0], un, 3, vo[0])); e(valu("v_add_u32", vo[0], sTmp[2], vo[0]))
    e(salu("s_mul_i32", sTmp[0], sTmp[0], 48)); e(salu("s_add_u32", sTmp[1], sTmp[1], 512))
    e(valu("v_add_u32", c, sTmp[0], vLane)); e(valu("v_lshrrev_b32", un, 6, c))
    e(valu("v_mul_u32_u24", q, 43, un)); e(valu("v_lshrrev_b32", q, 8, q))
    e(valu("v_mul_u32_u24", vo[1], 6, q)); e(valu("v_sub_u32", un, un, vo[1]))
    e(valu("v_and_b32", vo[1], 15, c)); e(valu("v_lshl_add_u32", vo[1], q, 4, vo[1]))
    e(valu("v_mul_u32_u24", vo[1], 896, vo[1])); e(valu("v_lshl_add_u32", vo[1], un, 6, vo[1]))
    e(valu("v_bfe_u32", un, c, 4, 2)); e(valu("v_lshl_add_u32", vo[1], un, 3, vo[1]))
    e(valu("v_add_u32", vo[1], sTmp[1], vo[1]))
    e(valu("v_cmp_gt_u32", "vcc", 48, vLane)); e(valu("v_mov_b32", un, 0x7fffff00))
    e(valu("v_cndmask_b32", vo[1], un, vo[1]))
    for k in range(2):
        for t in range(2): e(bload(XV[k][t], vo[k], sX, 0, off=32 * t))
    silu(0)
    o += red_sum(G, LDA, 1, tmp)
    silu(1)
    o += stamp(5, 7)
    e(salu("s_cmp_lg_u32", sWave, 0)); e(raw("s_cbranch_scc1 L_pdone_B", "branch"))
    o += poll("B", offB, V(75), V(76))
    e(barrier())
    o += stamp(7, 6) + stamp(6, 7)
    o += red_loads(PART, LDV, [1])
    o += red_sum(SA, LDV, 0, tmp)
    final(0)
    o += red_sum(SA, LDV, 1, tmp)
    final(1)
    return o
assert all((u * 43) >> 8 == u // 6 for u in range(50))

def build_main():
    prog, late, pfl = setup()
    if OPT["pfearly"]: prog += pfl; pfl = []
    prog += stamp(1) + stamp(4, 2)
    prog += ln_stats(late) + stamp(5, 2)
    prog += ln_apply(0) + ln_apply(1)
    prog += stamp(2) + stamp(6, 2)
    fU, fP, fD = frags_U(), frags_P(), frags_D()
    Sn = SBUF[0]
    vK0 = vT[5]
    fK0 = frags_K(0, Sn, [0] * 4, kaddr=vK0)
    prog += bar_ops(0) + stamp(7, 2)
    for f in fU[:8]: prog += f.reads
    nU, nP, nD = len(fU), len(fP), len(fD)
    XQ = [18, 19]
    def extra(info):
        ln = []
        for ks in range(2, 14):
            dl = info.first[ks * 14] - 3
            ln += items(ln_apply(ks), -1, dl)
        endU, endP = info.last[nU - 1], info.last[nU + nP - 1]
        sil = items(silu_ops(), endU + 5, endP - 2)
        xa = [salu("s_lshr_b32", sTmp[5], sWave, 1), salu("s_mul_i32", sTmp[5], sTmp[5], (RB[20 % 4] - RB[19 % 4]) & 0xffffffff),
              salu("s_add_u32", sTmp[5], sTmp[5], sKh), salu("s_add_u32", sTmp[5], sTmp[5], RB[19 % 4]),
              valu("v_add_u32", vXaddr, sTmp[5], vSt)]
        qc = qconv_ops(None)
        relq = endP + 5
        qi = items(xa, relq, info.n - 1)
        qi += [Item(o, rel=relq, dl=info.n - 1) for o in qc if o.kind != "dsw"]
        qi += [Item(o, rel=max(relq, info.bar[17] + 1), dl=info.n - 1) for o in qc if o.kind == "dsw"]
        oc = []
        for grp in range(7):
            lastm = info.last[nU + nP + 16 * grp + 15]
            dl = info.last[nU + nP + 16 * (grp + 2) - 1] - 30 if grp + 2 <= 6 else info.n - 1
            oc += items(outconv_ops(ACCD[grp & 1], grp, sStF, 0), min(lastm + 5, info.n - 1), max(min(lastm + 5, info.n - 1), min(dl, info.n - 1)))
        pfi = []
        when = [OPT["pfwq"], OPT["pfw2"]] + [OPT["pfkv0"] + OPT["pfkvs"] * k for k in range(OPT["pfdist"] + 1)]
        k = 0
        for o in pfl:
            pfi.append(Item(o, rel=when[k], dl=when[k] + 40))
            if o.kind == "vmem": k += 1
        return dict(ln=ln, sil=sil, qc=qi, oc=oc, pf=pfi)
    body, carry = section(fU + fP + fD, 8, [], extra=extra, dma_first=[2, 3], verbose=OPT["verbose"])
    prog += body
    prog += stamp(3) + stamp(7, 5)
    assert carry == 20, carry
    prog += [wait_lgkm0(), barrier()]
    prog += [salu("s_sub_u32", sTmp[0], SLOT, sKh), salu("s_sub_u32", sTmp[0], sTmp[0], sKh),
             valu("v_add_u32", vXaddr, sTmp[0], vXaddr)]
    for u in range(2):
        for ks in range(8): prog.append(dsr("ds_read_b128", Q[2 + u][ks], vXaddr, (u * 8 + ks) * 1024))
    for grp in dma_ops(21): prog += grp
    prog += [valu("v_subrev_u32", vK0, HALF, vKaddr), valu("v_add_u32", vV31, HALF, vVaddr), valu("v_lshlrev_b32", vPFa, 5, vLane)]
    for u in range(4): prog.append(valu("v_mov_b32", vL[u], 0))
    prog.append(salu("s_mov_b32", sCnt, (LOOP_HI - LOOP_LO) // 2))
    prog += bar_ops(K0)
    for f in fK0[:4]: prog += f.reads
    body, carry = section(fK0, 4, frags_K(1, SBUF[1], NEGM)[:4], dma_first=23)
    prog += body
    prog += signal(offF, vX[0], vX[1])
    for grp in dma_ops(22): prog += grp
    for u in range(4):
        tm, t2 = vX[0], vX[1]
        prog += rowmax(Sn[u], tm, t2)
        for r in range(8): prog.append(valu("v_sub_f32", Sn[u][r], Sn[u][r], tm))
        for r in range(4): prog.append(valu("v_sub_f32", NEGM[u][r], 0, tm))
    for it in sm_part(Sn, 0, 0, 0): prog += it.ops
    prog += stamp(4)
    if OPT["stamps"] == 3:
        prog += [salu("s_lshl_b32", S(90), S(2), 2), salu("s_add_u32", S(90), S(90), sWave), salu("s_lshl_b32", S(90), S(90), 7),
                 salu("s_add_u32", S(90), S(90), 2 * PART + 65536)]
    for j in range(31):
        it, carry = iteration(j, carry)
        if LOOP_LO <= j < LOOP_HI and (j - LOOP_LO) % 2 == 1:
            it += [salu("s_sub_u32", sCnt, sCnt, 1), salu("s_cmp_lg_u32", sCnt, 0), raw("s_cbranch_scc1 L_loop", "branch", rd=["scc"])]
        if OPT["stamps"] == 3:
            st3 = [raw("s_memtime s[100:101]", "smem"), wait_lgkm0(), raw("s_waitcnt lgkmcnt(0)", "wait"), salu("s_sub_u32", S(100), S(100), S(sStamp)),
                   valu("v_mov_b32", vY[7], S(100)), valu("v_mov_b32", vY[6], 0), bstore(vY[7], vY[6], sWS, S(90)), salu("s_add_u32", S(90), S(90), 4)]
            k = len(it) - 3 if it[-1].kind == "branch" else len(it)
            it = it[:k] + st3 + it[k:]
        prog += it
    prog += last_iteration()
    prog += stamp(5)
    cmb, RX = combine()
    prog += cmb
    global OB
    OB = [[O[2 * ks][u] for ks in range(8)] for u in range(2)]
    for u in range(2):
        for ks in range(8):
            for h in range(2):
                for p in range(2): prog.append(valu("v_accvgpr_write_b32", OB[u][ks][2 * h + p], RX[2 * ks + h][u][p]))
    prog += stamp(6)
    fW = frags_W()
    prog += bar_ops(W0)
    for f in fW[:8]: prog += f.reads
    def extraW(info):
        oc = []
        for grp in range(7):
            lastm = info.last[32 * grp + 31]
            dl = info.last[32 * (grp + 1) + 31] - 8 if grp + 1 <= 6 else info.n - 1
            r = min(lastm + 5, info.n - 1)
            oc += items(outconv_ops(ACCD[grp & 1], grp, sStS, 0), r, max(r, dl))
        sg = [Item(signal(offA2, V(128), V(129)), rel=info.bar[W0 + 6] + 1, dl=info.bar[W0 + 6] + 1)]
        return dict(oc=oc, sg=sg)
    body, _ = section(fW, 8, [], extra=extraW, dma_first=W0 + 3, verbose=OPT["verbose"])
    prog += body
    prog += stamp(5, 6) + stamp(1, 7)
    prog += tail()
    prog += stamp(7) + stamp(7, 7)
    if OPT["stamps"] in (1, 2, 4, 5, 6, 7):
        prog += [salu("s_lshl_b32", sTmp[0], S(2), 2), salu("s_add_u32", sTmp[0], sTmp[0], sWave), salu("s_lshl_b32", sTmp[0], sTmp[0], 6),
                 salu("s_add_u32", sTmp[0], sTmp[0], 2 * PART), valu("v_mov_b32", V(20), 0)]
        for k in range(1, 8):
            prog += [salu("s_sub_u32", sTmp[1], S(sStamp + k), S(sStamp)), valu("v_mov_b32", V(21), sTmp[1]),
                     bstore(V(21), V(20), sWS, sTmp[0], off=4 * k)]
    prog += [label("L_done"), raw("s_endpgm", "branch")]
    return prog

def finish(prog):
    prog = insert_waits(prog)
    rep = []
    prog = pad_hazards(prog, report=rep)
    segs = []; cur = ("pro", [])
    segs.append(cur)
    for op in prog:
        if op.kind == "pseudo" and op.tag and op.tag[0] == "mark":
            cur = (op.tag[1][1], []); segs.append(cur)
        cur[1].append(op)
    d = dict(segs)
    for j in range(LOOP_LO + 2, LOOP_HI):
        a, b = text_of(d[j]), text_of(d[j - 2])
        if a != b:
            import difflib
            print("MISMATCH iter", j); print("\n".join(list(difflib.unified_diff(b.split("\n"), a.split("\n"), lineterm=""))[:40])); sys.exit(1)
    body = ""
    for k, ops in segs:
        if isinstance(k, int) and LOOP_LO + 2 <= k < LOOP_HI: continue
        if k == LOOP_LO: body += ".p2align 6\nL_loop:\n"
        body += text_of(ops) + "\n"
    tail = []
    for nm, tgt in stubs:
        tail += [label(f"L_stub_{nm}"), raw(f"s_call_b64 {sRet}, {tgt}", "branch"), raw(f"s_branch L_ret_{nm}", "branch")]
    tail += pad_hazards(rare1(0)) + pad_hazards(rare1(1)) + pad_hazards(rare2())
    body += text_of(tail) + "\nL_end:\n"
    print("nops inserted:", len(rep), "in loop:", [o.text for o in d[LOOP_LO] if o.kind == "nop"], "total instrs", body.count("\n"))
    return body

def build_reduce():
    o = []; e = o.append
    e(raw("s_cmp_ge_u32 s2, 448")); e(raw("s_cbranch_scc1 L_rdone", "branch"))
    e(raw("s_load_dwordx2 s[4:5], s[0:1], 0", "smem")); e(raw("s_load_dwordx2 s[6:7], s[0:1], 72", "smem")); e(raw("s_load_dwordx2 s[20:21], s[0:1], 88", "smem"))
    rX, rO, rW = S(8, 4), S(12, 4), S(16, 4)
    e(valu("v_lshrrev_b32", V(1), 6, V(0))); e(valu("v_and_b32", V(0), 63, V(0)))
    e(valu("v_readfirstlane_b32", S(22), V(1)))
    e(salu("s_lshl_b32", S(23), S(2), 2)); e(salu("s_add_u32", S(23), S(23), S(22)))
    e(valu("v_lshlrev_b32", V(2), 4, V(0)))
    e(salu("s_lshl_b32", S(24), S(23), 14))
    e(salu("s_add_u32", S(25), S(24), PART))
    e(raw("s_waitcnt lgkmcnt(0)", "wait"))
    for d, lo, sz in ((rX, 4, 2048 * 896), (rO, 6, 2048 * 896), (rW, 20, 2 * PART)):
        e(salu("s_mov_b32", d[0], S(lo))); e(salu("s_mov_b32", d[1], S(lo + 1))); e(salu("s_mov_b32", d[2], sz)); e(salu("s_mov_b32", d[3], 0x20000))
    LD = [[V(32 + (m * 16 + h) * 4, 4) for h in range(16)] for m in range(2)]
    for h4 in range(4):
        for m in range(2):
            for hh in range(4): e(bload(LD[m][4 * h4 + hh], V(2), rW, S(24 + (1 if OPT["rednof"] else m)), off=hh * 1024))
        if h4 < 3:
            e(salu("s_add_u32", S(24), S(24), 4096)); e(salu("s_add_u32", S(25), S(25), 4096))
    e(salu("s_mul_i32", S(26), S(23), 4682)); e(salu("s_lshr_b32", S(26), S(26), 16))
    e(salu("s_mul_i32", S(27), S(26), 14)); e(salu("s_sub_u32", S(27), S(23), S(27)))
    e(salu("s_mul_i32", S(26), S(26), 16 * 896)); e(salu("s_lshl_b32", S(27), S(27), 6)); e(salu("s_add_u32", S(26), S(26), S(27)))
    e(valu("v_and_b32", V(3), 15, V(0))); e(valu("v_mul_u32_u24", V(3), 896, V(3)))
    e(valu("v_lshrrev_b32", V(4), 4, V(0))); e(valu("v_lshl_add_u32", V(3), V(4), 3, V(3)))
    XV = [V(6, 2), V(8, 2)]
    for t in range(2): e(bload(XV[t], V(3), rX, S(26), off=32 * t))
    ACC = [[V(10 + m * 8 + i) for i in range(8)] for m in range(2)]
    tmp = [V(26 + i) for i in range(4)]
    for h in range(16):
        for m in range(2):
            for p in range(4):
                x = LD[m][h][p]
                if h == 0:
                    e(valu("v_lshlrev_b32", ACC[m][2 * p], 16, x)); e(valu("v_and_b32", ACC[m][2 * p + 1], 0xffff0000, x))
                else:
                    a, b = tmp[2 * (p & 1)], tmp[2 * (p & 1) + 1]
                    e(valu("v_lshlrev_b32", a, 16, x)); e(valu("v_and_b32", b, 0xffff0000, x))
                    e(valu("v_add_f32", ACC[m][2 * p], ACC[m][2 * p], a)); e(valu("v_add_f32", ACC[m][2 * p + 1], ACC[m][2 * p + 1], b))
    F, Sx = ACC[0], ACC[1]
    T_ = [V(32 + i) for i in range(8)]
    for i in range(8): o += round_bf16(F[i]) + round_bf16(Sx[i])
    for i in range(8): e(valu("v_mul_f32", T_[i], -LOG2E, F[i]))
    for i in range(8): e(valu("v_exp_f32", T_[i], T_[i]))
    for i in range(8): e(valu("v_add_f32", T_[i], 1.0, T_[i]))
    for i in range(8): e(valu("v_rcp_f32", T_[i], T_[i]))
    for i in range(8): e(valu("v_mul_f32", F[i], F[i], T_[i]))
    for i in range(8): o += round_bf16(F[i])
    for i in range(8): e(valu("v_mul_f32", F[i], F[i], Sx[i]))
    for i in range(8): o += round_bf16(F[i])
    for t in range(2):
        for p in range(2):
            x = XV[t][p]
            e(valu("v_lshlrev_b32", tmp[0], 16, x)); e(valu("v_and_b32", tmp[1], 0xffff0000, x))
            e(valu("v_add_f32", tmp[0], tmp[0], F[4 * t + 2 * p])); e(valu("v_add_f32", tmp[1], tmp[1], F[4 * t + 2 * p + 1]))
            e(valu("v_cvt_pk_bf16_f32", x, tmp[0], tmp[1]))
        e(bstore(XV[t], V(3), rO, S(26), off=32 * t))
    e(label("L_rdone")); e(raw("s_endpgm", "branch"))
    return text_of(pad_hazards(insert_waits(o))) + "\n"
assert all((w * 4682) >> 16 == w // 14 for w in range(1792))

HDR = open("recurrent_scan__mha_block_cached__glu_gated_swiglu__prompt.s.ref").read().split("; Override")[0]
def kd(name, vg, acc, sg):
    return f""".amdhsa_kernel {name}
  .amdhsa_next_free_vgpr {vg}
  .amdhsa_next_free_sgpr {sg}
  .amdhsa_accum_offset {acc}
  .amdhsa_group_segment_fixed_size 0
  .amdhsa_kernarg_size 96
  .amdhsa_user_sgpr_count 2
  .amdhsa_user_sgpr_kernarg_segment_ptr 1
  .amdhsa_system_sgpr_workgroup_id_x 1
.end_amdhsa_kernel
"""
main = finish(build_main())
NAME = "recurrent_scan__mha_block_cached__glu_gated_swiglu__prompt_kernel"
txt = HDR + f"""; @launch {'kernel=' + NAME + ' ' if OPT['aslist'] else ''}grid=(256,1,1) block=(256,1,1) lds=163840
.amdgcn_target "amdgcn-amd-amdhsa--gfx950"
.text
.globl {NAME}
.p2align 8
.type {NAME},@function
{NAME}:
""" + main + """.section .rodata,"a"
.p2align 6
""" + kd(NAME, 512, 256, 102)
open(sys.argv[1], "w").write(txt)
```

```python
import sys
from asmlib import *

OPT = dict(cap=8, bardelay=4, verbose=0, brk=78, split=16, stamps=0, dbg=0, stflag=0, nofst=0, kvflag=0, rt=0, wflag=0, pf=1, pfflag=0, pfdist=4, pfcode=1, xpre=12, rednof=0, aslist=1, pfearly=0, pfw2=300, pfkv0=450, pfkvs=100, pfwq=4, xfirst=22, touch=1, mix=0, qspread=1, dpace=11, wpace=15, chain=1, chaind=4, nba=12, nbv=6, bous=1, pfpat=2, unroll=2, fbyte=0, hmap=2, fl1=6, fl2=12, flpace=12)
for a in sys.argv[2:]:
    k, v = a.split("="); OPT[k] = int(v)

TIMER = 's_memrealtime' if OPT['rt'] else 's_memtime'
BSTR = 1056
SLOT = 16 * BSTR
STG = 2 * SLOT
RB = [0, 2 * STG, STG, 3 * STG]
HALF = 2 * STG
SPARE = 4 * STG
THR = 16.0
XSTR = 928
PBLK = 128 * 448 * 2
CNT = 2 * PART + (1 << 20)
XB = 163840 - 128 * XSTR
assert XB >= STG
QSCALE = 1.4426950408889634 / 16.0
LOG2E = 1.4426950408889634
PART = 2048 * 448 * 2 * 16

vLane = V(0)
vKaddr, vVaddr, vDma = V(1), V(2), V(3)
vL = [V(4 + i) for i in range(4)]
vTmax = V(8)
vT = [V(9 + i) for i in range(7)]
FRV = [V(16 + 4 * i, 4) for i in range(6)]
if OPT["nbv"] == 6: BSEQ = [b for n_ in (6, 5, 5, 6, 5, 5) for b in range(n_)]
else: BSEQ = [f % 4 for f in range(32)]
NPRE = 5 if OPT["nbv"] == 6 else 4
vF = [V(40 + i) for i in range(4)]
vX = [V(44 + i) for i in range(4)]
NEGM = [V(48 + 4 * u, 4) for u in range(4)]
SBUF = [[V(64 + 32 * p + 8 * u, 8) for u in range(4)] for p in range(2)]
Q = [[V(128 + 32 * u + 4 * ks, 4) for ks in range(8)] for u in range(4)]
O = [[A((4 * dt + u) * 4, 4) for u in range(4)] for dt in range(16)]
XN = [[V(128 + 56 * u + 4 * ks, 4) for ks in range(14)] for u in range(2)]
GU = [[[V(16 + ((m * 7 + ft) * 2 + u) * 4, 4) for u in range(2)] for ft in range(7)] for m in range(2)]
QT = [[A((2 * dt + u) * 4, 4) for u in range(2)] for dt in range(16)]
FRA = ([A(128 + 4 * i, 4) for i in range(8)] + [A(192 + 4 * i, 4) for i in range(8)])[:OPT["nba"]]
HB = [[A(160 + (u * 4 + kf) * 4, 4) for kf in range(4)] for u in range(2)]
vP = [V(240 + i) for i in range(16)]
vNaddrLo, vNaddrHi = V(4), V(5)
vPaddrLo, vPaddrHi = V(6), V(7)
vDmaU, vDmaP, vDmaN = V(8), V(9), V(10)
vSt = V(11)
ACCD = [[[V(16 + ((b * 4 + nt) * 2 + u) * 4, 4) for u in range(2)] for nt in range(4)] for b in range(2)]
vPk = [V(80 + 4 * i, 4) for i in range(4)]

sX, sK, sV, sWQ, sWO, sU, sW2, sWS = [S(8 + 4 * i, 4) for i in range(8)]
sRet = S(40, 2)
sWave, sHead, sQblk, sM0, sCnt = S(42), S(43), S(44), S(45), S(46)
sKoff, sVoff, sUoff, sPoff, sDoff, sWoff = S(47), S(48), S(49), S(50), S(51), S(52)
sStF, sStS = [S(53), S(54)], [S(55), S(56)]
sTmp = [S(57 + i) for i in range(7)]
sKh = S(80)
sStamp = 82

if OPT["mix"] == 1: MID = [("P", 0), ("P", 1), ("P", 2), ("P", 3), ("P", 4), ("D", 0), ("P", 5), ("D", 1), ("P", 6), ("D", 2), ("D", 3)]
elif OPT["mix"] == 2: MID = [("P", 0), ("P", 1), ("P", 2), ("P", 3), ("D", 0), ("P", 4), ("D", 1), ("P", 5), ("D", 2), ("P", 6), ("D", 3)]
else: MID = [("P", i) for i in range(7)] + [("D", i) for i in range(4)]
STAGES = [("U", i) for i in range(7)] + MID + [("K", 0), ("X", 0), ("X", 1)]
K0 = 18
for j in range(31): STAGES += [("K", j + 1), ("V", j)]
STAGES += [("V", 31)]
V31 = len(STAGES) - 1
W0 = len(STAGES)
STAGES += [("W", i) for i in range(7)]
NST = len(STAGES)
def stK(j): return K0 if j == 0 else 19 + 2 * j
def stV(j): return V31 if j == 31 else 22 + 2 * j
assert STAGES[stK(5)] == ("K", 5) and STAGES[stV(5)] == ("V", 5) and stK(1) % 4 == 1 and V31 % 4 == 3
NEXT_OVERRIDE = {21: 23, 23: 22, 22: 24}

def has_dma(st): return st < NST and STAGES[st][0] != "X"
def next_dma_stage(st):
    if st in NEXT_OVERRIDE: return NEXT_OVERRIDE[st]
    st += 1
    while st < NST and not has_dma(st): st += 1
    return st
def m0_init(st):
    return [salu("s_add_u32", "m0", sM0, RB[st % 4])] if st < NST else []

def dma_ops(st):
    ty, i = STAGES[st]
    groups = []
    nxt = m0_init(next_dma_stage(st))
    for ii in range(8):
        if ty in "KV":
            srd, soff = (sK, sKoff) if ty == "K" else (sV, sVoff)
            g = [dma(vDma, srd, soff, off=ii * 512, tag=st, flags=["", "nt", "sc1"][OPT["kvflag"]])]
            g += [salu("s_add_u32", "m0", "m0", BSTR - 512)] if ii < 7 else nxt + [salu("s_add_u32", soff, soff, 32768)]
        else:
            if ty == "U":   srd, soff, vo, rowb = sU, sUoff, vDmaU, 3584
            elif ty == "P": srd, soff, vo, rowb = sWQ, sPoff, vDmaP, 8192
            elif ty == "D": srd, soff, vo, rowb = sW2, sDoff, vDmaN, 896
            else:           srd, soff, vo, rowb = sWO, sWoff, vDmaN, 896
            g = [dma(vo, srd, soff, tag=st, flags=["", "nt", "sc1"][OPT["wflag"]])]
            if ty in "UP":
                step = [1, 1, 1, 5, 1, 1, 1, 64 - 11][ii] * rowb
            elif ty == "D":
                step = rowb if ii < 7 else 256 - 7 * rowb
            else:
                step = rowb if ii < 7 else 128 - 7 * rowb
            g += [salu("s_add_u32", "m0", "m0", BSTR)] if ii < 7 else nxt
            g.append(salu("s_add_u32", soff, soff, step & 0xffffffff))
        groups.append(g)
    return groups

def dma_items(st, lo, hi):
    if not has_dma(st): return []
    items = []
    for ii, g in enumerate(dma_ops(st)):
        r = lo + (hi - lo) * ii // 8
        items.append(Item(g[0], rel=r, dl=min(r + 3, hi - 1)))
        for o in g[1:]: items.append(Item(o, rel=min(r + 1, hi - 1), dl=min(r + 5, hi - 1)))
    return items

S8 = [83, 84, 85, 86, 87, 88, 89, 90, 91, 72, 73, 74, 75, 76, 77, 78, 79, 81]
BARSTAMP = {0: 1, 3: 2, 7: 3, 10: 4, 14: 5, 16: 6}
def bar_ops(st):
    r = [wait_vm_tag([st] + {W0 + 6: ["stA"], stK(2): ["stF"]}.get(st, []), lgkm0=True), barrier()]
    if st in BARSTAMP: r += stamp(BARSTAMP[st], 5)
    if OPT["stamps"] == 8 and st < 18:
        r += [raw("s_memtime s[100:101]", "smem"), raw("s_waitcnt lgkmcnt(0)", "wait"), raw(f"s_mov_b32 s{S8[st]}, s100")]
    return r

class Frag:
    def __init__(self, st, buf, reads, mfmas, first=False):
        self.st, self.buf, self.reads, self.mfmas, self.first = st, buf, reads, mfmas, first
        self.chain = None

def tr2(buf, lo, hi, addr, o0, o1):
    a, base = (lo, 0) if addr < HALF else (hi, HALF)
    return [dsr("ds_read_b64_tr_b16", buf[0:2], a, addr - base + o0), dsr("ds_read_b64_tr_b16", buf[2:4], a, addr - base + o1)]

_fa = [0]
def nextA():
    b = FRA[_fa[0] % len(FRA)]; _fa[0] += 1; return b

def frags_stage(st):
    ty, i = STAGES[st]
    out = []
    ch = OPT["chain"]
    if ty in "UP":
        tiles = [(ft, m) for ft in range(7) for m in range(2)] if ty == "U" else list(range(16))
        order = [(t, sl) for t in tiles for sl in range(2)] if ch else [(t, sl) for sl in range(2) for t in tiles]
        for t, sl in order:
            ks = 2 * i + sl
            b = nextA()
            if ty == "U":
                ft, m = t
                rd = tr2(b, vNaddrLo, vNaddrHi, RB[st % 4] + sl * SLOT + m * 8 * BSTR + ft * 32, 0, 256); acc = GU[m][ft]
            else:
                rd = tr2(b, vNaddrLo, vNaddrHi, RB[st % 4] + sl * SLOT + t * 32, 0, 8 * BSTR); acc = QT[t]
            out.append(Frag(st, b, rd, [mfma(acc[u], b, XN[u][ks], 0 if ks == 0 else acc[u]) for u in range(2)]))
            out[-1].key = (ty, ks)
            if ch: out[-1].chain = (st, t)
    else:
        cd = OPT["chaind"] if ch else 1
        for sl in range(2):
            grp = 2 * i + sl
            if grp > 6: continue
            acc = ACCD[grp & 1]
            for k0 in range(0, 4, cd):
                for nt in range(4):
                    for kf in range(k0, k0 + cd):
                        b = nextA()
                        base = RB[st % 4] + sl * SLOT + 2 * kf * 128 + nt * 32
                        out.append(Frag(st, b, tr2(b, vPaddrLo, vPaddrHi, base, 0, 128),
                                        [mfma(acc[nt][u], b, HB[u][kf], 0 if kf == 0 else acc[nt][u]) for u in range(2)]))
                        out[-1].key = ("D", grp); out[-1].chain = (grp, k0, nt)
    out[0].first = True
    return out

def frags_K(j, Sn, cinit, kaddr=None, f0=0):
    st = stK(j)
    out = []
    for f in range(16):
        kt, ks = f >> 3, f & 7
        b = FRV[BSEQ[f0 + f]]
        rb = RB[st % 4]
        a, base = (vKaddr, HALF) if kaddr is None else (kaddr, 0)
        rd = [dsr("ds_read_b128", b, a, rb - base + kt * 512 + ks * 64)]
        mf = []
        for u in range(4):
            d = Sn[u][4 * kt:4 * kt + 4]
            mf.append(mfma(d, b, Q[u][ks], cinit[u] if ks == 0 else d))
        if OPT["chain"] and OPT["bous"] and (f >> 1) & 1: mf.reverse()
        out.append(Frag(st, b, rd, mf, first=(f == 0)))
        if OPT["chain"]: out[-1].chain = ("K", f >> 1)
    return out

def frags_V(j, Sc, zero=False, vaddr=None, f0=16):
    st = stV(j)
    out = []
    for f in range(16):
        b = FRV[BSEQ[f0 + f]]
        rb = RB[st % 4]
        a, base = (vVaddr, 0) if vaddr is None else (vaddr, HALF)
        rd = [dsr("ds_read_b64_tr_b16", b[2 * jj:2 * jj + 2], a, rb - base + jj * 512 + f * 32) for jj in range(2)]
        out.append(Frag(st, b, rd, [mfma(O[f][u], b, Sc[u][0:4], 0 if zero else O[f][u]) for u in range(4)], first=(f == 0)))
    return out

FREEQ = [V(128 + (dt * 2 + u) * 4, 4) for dt in range(1, 16, 2) for u in range(2)]
OB = [[V(128 + (2 * ks * 2 + u) * 4, 4) for ks in range(8)] for u in range(2)]
FRW = ([V(96 + 4 * i, 4) for i in range(8)] + FREEQ[:8])[:OPT["nba"]]
def frags_W():
    out = []
    n = 0
    cd = OPT["chaind"] if OPT["chain"] else 1
    for grp in range(7):
        st = W0 + grp
        acc = ACCD[grp & 1]
        for k0 in range(0, 8, cd):
            for nt in range(4):
                for ks in range(k0, k0 + cd):
                    sl, kq = ks >> 2, ks & 3
                    b = FRW[n % len(FRW)]; n += 1
                    base = RB[st % 4] + sl * SLOT + 2 * kq * 128 + nt * 32
                    out.append(Frag(st, b, tr2(b, vPaddrLo, vPaddrHi, base, 0, 128),
                                    [mfma(acc[nt][u], b, OB[u][ks], 0 if ks == 0 else acc[nt][u]) for u in range(2)],
                                    first=(ks == 0 and nt == 0)))
                    out[-1].chain = (grp, k0, nt)
    return out

def section(frags, npre, nxt, extra=None, post_extra=None, dma_first=None, verbose=False, no_dma_after=None):
    bb = []; first = [None] * len(frags); last = [None] * len(frags)
    i = 0
    while i < len(frags):
        k = i + 1
        while k < len(frags) and frags[i].chain is not None and frags[k].chain == frags[i].chain: k += 1
        for u in range(len(frags[i].mfmas)):
            for g_ in range(i, k):
                if first[g_] is None: first[g_] = len(bb)
                last[g_] = len(bb); bb.append(frags[g_].mfmas[u])
        i = k
    n = len(bb)
    lastuse = {}
    rel_of = {}
    seq = list(frags) + list(nxt)
    for i, f in enumerate(seq):
        key = str(f.buf)
        rel_of[i] = lastuse.get(key, -1)
        if i < len(frags): lastuse[key] = last[i]
        else: lastuse[key] = n - 1
    rd = []; bar = {}
    prev = -1
    for i in range(npre, len(seq)):
        f = seq[i]
        rel = max(rel_of[i], prev)
        if f.first:
            rel = min(n - 1, max(rel, prev + OPT["bardelay"]))
            rd.append(Item(bar_ops(f.st), rel=rel, dl=rel)); bar[f.st] = rel
        for o in f.reads: rd.append(Item(o, rel=min(rel, n - 1), dl=min(n - 1, rel + 2)))
        prev = rel
    post = {}
    for i in range(1, len(frags)): post[first[i] - 1] = [wait_regs(frags[i].buf.regs())]
    if nxt: post[n - 1] = [wait_regs(nxt[0].buf.regs())]
    dm = []
    bars = sorted(bar.items(), key=lambda x: x[1])
    if dma_first is not None:
        hi = max((bars[0][1] if bars else n) - 1, 8)
        lst = dma_first if isinstance(dma_first, list) else [dma_first]
        for k, s_ in enumerate(lst): dm += dma_items(s_, hi * k // len(lst), hi * (k + 1) // len(lst))
    carry = None
    for k, (s_, g) in enumerate(bars):
        if k + 1 < len(bars):
            if no_dma_after is None or s_ + 3 <= no_dma_after: dm += dma_items(s_ + 3, g + 1, bars[k + 1][1] - 1)
        else: carry = s_ + 3
    class Info: pass
    info = Info(); info.first, info.last, info.bar, info.n = first, last, bar, n
    streams = dict(rd=rd, dma=dm)
    if extra: streams.update(extra(info))
    if post_extra:
        for g, ops in post_extra(info).items():
            post[g] = post.get(g, []) + ops
    return schedule2(bb, streams, OPT["cap"], post=post, verbose=verbose), carry

def xreduce(op, x, t):
    return [valu("v_mov_b32", t, x), perm16(x, t), valu(op, x, x, t), valu("v_mov_b32", t, x), perm32(x, t), valu(op, x, x, t)]

def round_bf16(x):
    return [valu("v_cvt_pk_bf16_f32", x, x, x), valu("v_and_b32", x, 0xffff0000, x)]

def stamp(k, which=1):
    if OPT["stamps"] != which: return []
    return [raw(f"{TIMER} s[100:101]", "smem"), raw("s_waitcnt lgkmcnt(0)", "wait"), raw(f"s_mov_b32 s{sStamp + k}, s100")]

sDBG = S(64, 4)
sOUT = S(68, 4)
sPF = S(92, 4)
sPFoff = S(96)
sCW = S(97)
vPFd = V(13)
vPFa = V(9)
def pfload(voff, srd_, soff, off=0):
    o = bload(vPFd, voff, srd_, soff, off=off, tag="pf", flags=["", "nt", "sc1"][OPT["pfflag"]]); o.wr = []
    return o
PFFLAG = ["", "nt", "sc1"][OPT["pfflag"]]
def setup():
    o = []; e = o.append
    e(raw("s_cmp_ge_u32 s2, 256")); e(raw("s_cbranch_scc1 L_done", "branch"))
    e(raw("s_load_dwordx16 s[64:79], s[0:1], 0", "smem"))
    e(raw("s_load_dwordx2 s[4:5], s[0:1], 64", "smem"))
    e(raw("s_load_dwordx2 s[6:7], s[0:1], 88", "smem"))
    if OPT["stamps"]: e(raw(f"{TIMER} s[100:101]", "smem"))
    if OPT["pfcode"]:
        e(raw("s_getpc_b64 s[98:99]\nL_pc:", "salu", wr=["s98", "s99"]))
        e(salu("s_bfe_u32", sTmp[0], S(2), 0x30003))
        e(raw(f"s_mul_i32 {sTmp[0]}, {sTmp[0]}, (L_end-L_pc-16384)/7", "salu", rd=sTmp[0].regs(), wr=sTmp[0].regs()))
        e(salu("s_and_b32", sTmp[0], sTmp[0], 0xffffffc0))
        e(valu("v_lshlrev_b32", vP[1], 6, V(0))); e(valu("v_add_u32", vP[1], sTmp[0], vP[1]))
        e(Op(f"global_load_dword {vPFd}, {vP[1]}, s[98:99]", "vmem", rd=vP[1].regs() + ["s98", "s99"], tag="pf"))
    e(valu("v_lshrrev_b32", vP[0], 6, V(0)))
    e(valu("v_and_b32", vLane, 63, V(0)))
    e(valu("v_readfirstlane_b32", sWave, vP[0]))
    if OPT["hmap"] == 2:
        e(salu("s_and_b32", sHead, S(2), 7)); e(salu("s_lshl_b32", sHead, sHead, 1))
        e(salu("s_bfe_u32", sTmp[0], S(2), 0x10003)); e(salu("s_add_u32", sHead, sHead, sTmp[0]))
        e(salu("s_lshr_b32", sQblk, S(2), 4))
    else:
        e(salu("s_bfe_u32", sHead, S(2), 0x20001)); e(salu("s_lshl_b32", sHead, sHead, 2))
        e(salu("s_bfe_u32", sTmp[0], S(2), 0x20003)); e(salu("s_add_u32", sHead, sHead, sTmp[0]))
        e(salu("s_lshr_b32", sQblk, S(2), 5)); e(salu("s_lshl_b32", sQblk, sQblk, 1))
        e(salu("s_and_b32", sTmp[0], S(2), 1)); e(salu("s_add_u32", sQblk, sQblk, sTmp[0]))
    g, q16 = vP[1], vP[2]
    e(valu("v_lshrrev_b32", g, 4, vLane)); e(valu("v_and_b32", q16, 15, vLane))
    sHi, sLo = sTmp[1], sTmp[2]
    e(salu("s_lshr_b32", sHi, sWave, 1)); e(salu("s_and_b32", sLo, sWave, 1))
    e(salu("s_lshl_b32", sTmp[0], sQblk, 7)); e(salu("s_lshl_b32", sTmp[3], sWave, 5)); e(salu("s_add_u32", sTmp[0], sTmp[0], sTmp[3]))
    e(salu("s_mul_i32", sTmp[6], sTmp[0], 896))
    e(salu("s_mul_i32", sTmp[5], sTmp[3], XSTR)); e(salu("s_add_u32", sTmp[5], sTmp[5], XB))
    e(valu("v_mul_u32_u24", vP[3], XSTR, q16)); e(valu("v_lshl_add_u32", vP[3], g, 4, vP[3])); e(valu("v_add_u32", vP[3], sTmp[5], vP[3]))
    e(valu("v_and_b32", vP[4], 1, g)); e(valu("v_lshrrev_b32", vP[5], 1, g))
    e(valu("v_lshlrev_b32", vP[6], 2, vP[4])); e(valu("v_lshl_add_u32", vP[6], vP[5], 4, vP[6]))
    e(valu("v_mul_u32_u24", vDmaU, 3584, vP[6])); e(valu("v_lshl_add_u32", vDmaU, q16, 4, vDmaU))
    e(salu("s_mul_i32", sM0, sHi, SLOT)); e(salu("s_mul_i32", sTmp[0], sLo, 8 * BSTR)); e(salu("s_add_u32", sM0, sM0, sTmp[0]))
    e(salu("s_mul_i32", sUoff, sHi, 32 * 3584)); e(salu("s_mul_i32", sTmp[0], sHead, 224)); e(salu("s_add_u32", sUoff, sUoff, sTmp[0]))
    e(salu("s_lshl_b32", sKoff, sHi, 14)); e(salu("s_lshl_b32", sTmp[0], sLo, 12)); e(salu("s_add_u32", sKoff, sKoff, sTmp[0]))
    e(salu("s_mov_b32", sVoff, sKoff))
    e(salu("s_lshl_b32", sPoff, sHi, 18)); e(salu("s_lshl_b32", sTmp[0], sLo, 15)); e(salu("s_add_u32", sPoff, sPoff, sTmp[0]))
    e(salu("s_lshl_b32", sTmp[0], sHead, 9)); e(salu("s_add_u32", sPoff, sPoff, sTmp[0]))
    e(salu("s_mul_i32", sDoff, sHead, 112 * 896)); e(salu("s_mul_i32", sTmp[0], sLo, 8 * 896)); e(salu("s_add_u32", sDoff, sDoff, sTmp[0]))
    e(salu("s_lshl_b32", sTmp[3], sHi, 7)); e(salu("s_add_u32", sDoff, sDoff, sTmp[3]))
    e(salu("s_mul_i32", sWoff, sHead, 256 * 896)); e(salu("s_add_u32", sWoff, sWoff, sTmp[0]))
    e(salu("s_mul_i32", sTmp[3], sHi, 128 * 896)); e(salu("s_add_u32", sWoff, sWoff, sTmp[3]))
    e(salu("s_mul_i32", sKh, sLo, SLOT))
    e(salu("s_lshl_b32", sTmp[0], sQblk, 4)); e(salu("s_add_u32", sTmp[0], sTmp[0], sHead)); e(salu("s_mul_i32", sTmp[0], sTmp[0], PBLK))
    e(salu("s_lshl_b32", sTmp[3], sWave, 14)); e(salu("s_add_u32", sStF[0], sTmp[0], sTmp[3]))
    e(salu("s_mul_i32", sTmp[3], sWave, 12288)); e(salu("s_add_u32", sStF[1], sTmp[0], sTmp[3])); e(salu("s_add_u32", sStF[1], sStF[1], 65536))
    e(salu("s_add_u32", sStS[0], sStF[0], PART)); e(salu("s_add_u32", sStS[1], sStF[1], PART))
    e(valu("v_lshrrev_b32", vP[6], 5, vLane)); e(valu("v_and_b32", vP[7], 31, vLane))
    e(valu("v_lshlrev_b32", vDma, 13, vP[6])); e(valu("v_lshl_add_u32", vDma, vP[7], 4, vDma))
    e(valu("v_lshlrev_b32", vDmaP, 17, vP[6])); e(valu("v_lshl_add_u32", vDmaP, vP[7], 4, vDmaP))
    l8, l7 = vP[8], vP[9]
    e(valu("v_lshrrev_b32", l8, 3, vLane)); e(valu("v_and_b32", l7, 7, vLane))
    e(valu("v_mul_u32_u24", vDmaN, 16 * 896, l8)); e(valu("v_lshl_add_u32", vDmaN, l7, 4, vDmaN))
    e(valu("v_lshlrev_b32", vSt, 4, vLane))
    e(valu("v_bfe_u32", vP[6], vLane, 2, 2)); e(valu("v_lshl_add_u32", vP[6], vP[4], 2, vP[6]))
    e(valu("v_and_b32", vP[7], 3, vLane))
    e(valu("v_mul_u32_u24", vNaddrLo, BSTR, vP[6])); e(valu("v_lshl_add_u32", vNaddrLo, vP[5], 9, vNaddrLo))
    e(valu("v_lshl_add_u32", vNaddrLo, vP[7], 3, vNaddrLo)); e(valu("v_add_u32", vNaddrHi, HALF, vNaddrLo))
    e(valu("v_lshrrev_b32", vP[6], 2, vLane)); e(valu("v_mul_u32_u24", vPaddrLo, BSTR, vP[6]))
    e(valu("v_lshl_add_u32", vPaddrLo, vP[7], 3, vPaddrLo)); e(valu("v_add_u32", vPaddrHi, HALF, vPaddrLo))
    e(valu("v_add_u32", vVaddr, sKh, vPaddrLo))
    e(valu("v_mul_u32_u24", vKaddr, BSTR, q16)); e(valu("v_lshl_add_u32", vKaddr, g, 4, vKaddr))
    e(valu("v_add_u32", vKaddr, sKh, vKaddr)); e(valu("v_add_u32", vKaddr, HALF, vKaddr))
    e(raw("s_waitcnt lgkmcnt(0)", "wait"))
    if OPT["stamps"]: e(raw(f"s_mov_b32 s{sStamp}, s100"))
    o += stamp(1, 2) + stamp(1, 4)
    def srd(d, lo, size):
        e(salu("s_mov_b32", d[0], S(lo))); e(salu("s_mov_b32", d[1], S(lo + 1)))
        e(salu("s_mov_b32", d[2], size)); e(salu("s_mov_b32", d[3], 0x20000))
    srd(sX, 64, 2048 * 896)
    e(salu("s_cmp_eq_u32", sLo, 0))
    e(salu("s_cselect_b32", sU[0], S(76), S(78))); e(salu("s_cselect_b32", sU[1], S(77), S(79)))
    e(salu("s_cselect_b32", sPF[0], S(66), S(68))); e(salu("s_cselect_b32", sPF[1], S(67), S(69)))
    e(salu("s_mov_b32", sU[2], 448 * 3584)); e(salu("s_mov_b32", sU[3], 0x20000))
    def pf(voff, srd_, soff, off=0): e(pfload(voff, srd_, soff, off))
    if OPT["pf"]:
        e(valu("v_min_u32", vP[10], 4, l7)); e(valu("v_mul_u32_u24", vP[11], 3584, l8)); e(valu("v_lshl_add_u32", vP[10], vP[10], 6, vP[11]))
        e(salu("s_mul_i32", sTmp[0], sQblk, 28)); e(salu("s_mul_i32", sTmp[3], sHi, 14)); e(salu("s_add_u32", sTmp[0], sTmp[0], sTmp[3]))
        e(salu("s_mul_i32", sTmp[0], sTmp[0], 3584)); e(salu("s_mul_i32", sTmp[3], sHead, 224)); e(salu("s_add_u32", sTmp[0], sTmp[0], sTmp[3]))
        e(salu("s_and_b32", sTmp[0], sTmp[0], 0xffffffc0)); e(salu("s_add_u32", sTmp[3], sTmp[0], 8 * 3584))
        pf(vP[10], sU, sTmp[0]); pf(vP[10], sU, sTmp[3])
    e(salu("s_lshl_b32", sTmp[0], sHead, 20))
    for d, lo in ((sK, 66), (sV, 68)):
        e(salu("s_add_u32", d[0], S(lo), sTmp[0])); e(salu("s_addc_u32", d[1], S(lo + 1), 0))
        e(salu("s_mov_b32", d[2], 1 << 20)); e(salu("s_mov_b32", d[3], 0x20000))
    e(salu("s_add_u32", sPF[0], sPF[0], sTmp[0])); e(salu("s_addc_u32", sPF[1], sPF[1], 0))
    e(salu("s_mov_b32", sPF[2], 1 << 20)); e(salu("s_mov_b32", sPF[3], 0x20000))
    srd(sWQ, 70, 448 * 8192); srd(sWO, 72, 4096 * 896); srd(sW2, 4, 1792 * 896); srd(sWS, 6, 2 * PART + (2 << 20))
    e(salu("s_lshl_b32", sCW, sQblk, 4)); e(salu("s_add_u32", sCW, sCW, sHead)); e(salu("s_lshl_b32", sCW, sCW, 8)); e(salu("s_add_u32", sCW, sCW, CNT))
    e(valu("v_mov_b32", V(16), 0)); e(valu("v_mov_b32", V(17), 0))
    e(raw("s_mov_b64 exec, 1", "salu")); e(bstore(V(16, 2), V(16), sWS, sCW, tag="stF", flags="sc1")); e(raw("s_mov_b64 exec, -1", "salu"))
    if OPT["touch"]:
        e(valu("v_mov_b32", vP[10], 0))
        for srd_, so in ((sWQ, sPoff), (sK, 0), (sV, 0), (sW2, sDoff), (sWO, sWoff), (sWS, sStF[0]), (sWS, sStS[0])): pf(vP[10], srd_, so)
    o += stamp(2, 4)
    e(valu("v_mov_b32", vP[11], vP[3]))
    e(salu("s_mov_b32", "m0", sTmp[5]))
    xg = []
    for r in range(32):
        g_ = [dma(vSt, sX, sTmp[6], off=(r % 4) * 896, tag="x%d" % (r // 16))]
        if r % 4 < 3: g_.append(salu("s_add_u32", "m0", "m0", XSTR - 896))
        else: g_ += [salu("s_add_u32", "m0", "m0", XSTR + 3 * 896), salu("s_add_u32", sTmp[6], sTmp[6], 4 * 896)]
        xg.append(g_)
    EXM, EXF = raw("s_mov_b32 exec_hi, 0x00ffffff", "salu"), raw("s_mov_b32 exec_hi, -1", "salu")
    e(EXM)
    for g_ in xg[:OPT["xfirst"]]: o += g_
    e(EXF)
    mid0 = [[EXM] + g_ + [EXF] for g_ in xg[OPT["xfirst"]:]]
    mid0[-1] += m0_init(0)
    mid1 = dma_ops(0)
    o += stamp(2, 2) + stamp(6, 4)
    late = []
    for st in (1,):
        for grp in dma_ops(st): late += grp
    e(raw("s_load_dwordx4 s[72:75], s[0:1], 72", "smem")); e(raw("s_waitcnt lgkmcnt(0)", "wait"))
    srd(sOUT, 72, 2048 * 896); srd(sDBG, 74, 256)
    if OPT["touch"]:
        pf(vP[10], sDBG, 0); pf(vP[10], sOUT, sTmp[6])
    pfl = []
    e = pfl.append
    t0, t1 = sTmp[5], sTmp[6]
    va, vb = V(14), V(15)
    if OPT["pf"]:
        e(valu("v_lshrrev_b32", va, 3, vLane)); e(valu("v_and_b32", vb, 7, vLane))
        e(valu("v_lshlrev_b32", va, 13, va)); e(valu("v_lshl_add_u32", va, vb, 6, va))
        e(salu("s_mul_i32", t0, sQblk, 28)); e(salu("s_mul_i32", t1, sWave, 7)); e(salu("s_add_u32", t0, t0, t1))
        e(salu("s_lshl_b32", t0, t0, 13)); e(salu("s_lshl_b32", t1, sHead, 9)); e(salu("s_add_u32", t0, t0, t1))
        pf(va, sWQ, t0)
        e(valu("v_lshlrev_b32", va, 5, vLane))
        e(salu("s_lshl_b32", t0, sQblk, 2)); e(salu("s_add_u32", t0, t0, sWave)); e(salu("s_mul_i32", t0, t0, 25 * 64))
        e(salu("s_mul_i32", t1, sHead, 112 * 896)); e(salu("s_add_u32", t0, t0, t1))
        pf(va, sW2, t0)
        e(salu("s_lshr_b32", t0, sWave, 1))
        e(salu("s_lshl_b32", sPFoff, sQblk, 1)); e(salu("s_add_u32", sPFoff, sPFoff, t0)); e(salu("s_lshl_b32", sPFoff, sPFoff, 11))
        for k in range(OPT["pfdist"]):
            pf(va, sPF, sPFoff); e(salu("s_add_u32", sPFoff, sPFoff, 65536))
    return o, (late, mid0, mid1), pfl

vR = [vP[12], vP[13]]; vNB = [vP[14], vP[15]]
def sprinkle(ops, groups):
    out = []; n = len(groups); step = len(ops) // (n + 1) if n else 0
    k = 0
    for i, o_ in enumerate(ops):
        if k < n and i == step * k: out += groups[k]; k += 1
        out.append(o_)
    for g_ in groups[k:]: out += g_
    return out

def ln_stats(x):
    late, mid0, mid1 = x
    o = []
    ones = sTmp[4]
    o.append(salu("s_mov_b32", ones, 0x3f803f80))
    for i in range(8): o.append(valu("v_mov_b32", vP[i], 0))
    for u in range(2):
        o.append(wait_vm_tag(["x%d" % u]))
        if u == 1: o += stamp(7, 4)
        for ks in range(14): o.append(dsr("ds_read_b128", XN[u][ks], vP[11], u * 16 * XSTR + ks * 64))
        w = []; e = w.append
        a = [vP[4 * u + i] for i in range(4)]
        for ks in range(14):
            for i in range(4):
                x = XN[u][ks][i]
                e(valu("v_dot2c_f32_bf16", a[i & 1], ones, x)); e(valu("v_dot2c_f32_bf16", a[2 + (i & 1)], x, x))
        if u == 1:
            o += sprinkle(w, mid1) + [wait_lgkm0(), barrier()] + late
            w = []; e = w.append
        t = vP[8 + u]
        e(valu("v_add_f32", a[0], a[0], a[1])); e(valu("v_add_f32", a[2], a[2], a[3]))
        w += xreduce("v_add_f32", a[0], t) + xreduce("v_add_f32", a[2], t)
        mean, var = a[0], a[2]
        e(valu("v_mul_f32", mean, 1.0 / 448, mean)); e(valu("v_mul_f32", var, 1.0 / 448, var))
        e(valu("v_fma_f32", var, f"-{mean}", mean, var)); e(valu("v_max_f32", var, 0, var))
        w += round_bf16(var)
        e(valu("v_add_f32", var, 1e-5, var)); w += round_bf16(var)
        e(valu("v_sqrt_f32", var, var)); w += round_bf16(var)
        e(valu("v_rcp_f32", vR[u], var))
        w += round_bf16(mean)
        e(valu("v_mul_f32", vNB[u], mean, vR[u])); e(valu("v_sub_f32", vNB[u], 0, vNB[u]))
        for ks in range(14 if u == 0 else 2): w += ln_apply(ks, u, True)
        o += sprinkle(w, mid0) if u == 0 else w
    return o

def ln_apply(ks, u, burst=False):
    o = []; e = o.append
    if burst:
        t = V(16 + 8 * (ks & 1), 8)
        sel = "op_sel:[0,%d,%d] op_sel_hi:[1,%d,%d]" % (u, u, u, u)
        for i in range(4):
            e(valu("v_lshlrev_b32", t[2 * i], 16, XN[u][ks][i])); e(valu("v_and_b32", t[2 * i + 1], 0xffff0000, XN[u][ks][i]))
        for i in range(4): e(valu("v_pk_fma_f32", t[2 * i:2 * i + 2], t[2 * i:2 * i + 2], V(252, 2), V(254, 2), mods=sel))
        for i in range(4): e(valu("v_cvt_pk_bf16_f32", XN[u][ks][i], t[2 * i], t[2 * i + 1]))
        return o
    for i in range(4):
        x = XN[u][ks][i]
        lo, hi = vP[2 * i], vP[2 * i + 1]
        e(valu("v_lshlrev_b32", lo, 16, x)); e(valu("v_and_b32", hi, 0xffff0000, x))
        e(valu("v_fma_f32", lo, lo, vR[u], vNB[u])); e(valu("v_fma_f32", hi, hi, vR[u], vNB[u]))
        e(valu("v_cvt_pk_bf16_f32", x, lo, hi))
    return o

def silu_ops():
    o = []; e = o.append
    for ft in range(7):
        for u in range(2):
            g, up = GU[0][ft][u], GU[1][ft][u]
            t = [vP[4 * (u & 1) + i] for i in range(4)]
            for r in range(4): e(valu("v_mul_f32", t[r], -LOG2E, g[r]))
            for r in range(4): e(valu("v_exp_f32", t[r], t[r]))
            for r in range(4): e(valu("v_mul_f32", g[r], g[r], up[r]))
            for r in range(4): e(valu("v_add_f32", t[r], 1.0, t[r]))
            for r in range(4): e(valu("v_rcp_f32", t[r], t[r]))
            for r in range(4): e(valu("v_mul_f32", g[r], g[r], t[r]))
            for p in range(2):
                e(valu("v_cvt_pk_bf16_f32", up[p], g[2 * p], g[2 * p + 1]))
            for p in range(2):
                e(valu("v_accvgpr_write_b32", HB[u][ft >> 1][2 * (ft & 1) + p], up[p]))
    for u in range(2):
        for p in range(2): e(valu("v_accvgpr_write_b32", HB[u][3][2 + p], 0))
    return o

vXaddr = vT[3]
def qconv_ops(xbase_own):
    o = []; e = o.append
    for u in range(2):
        for ks in range(8):
            q = Q[u][ks]
            t = [vP[8 * (ks & 1) + i] for i in range(8)]
            for h in range(2):
                for r in range(4): e(valu("v_accvgpr_read_b32", t[4 * h + r], QT[2 * ks + h][u][r]))
            for i in range(8): e(valu("v_mul_f32", t[i], QSCALE, t[i]))
            for p in range(4): e(valu("v_cvt_pk_bf16_f32", q[p], t[2 * p], t[2 * p + 1]))
            e(perm32(q[0], q[2])); e(perm32(q[1], q[3])); e(perm16(q[0], q[2])); e(perm16(q[1], q[3]))
            e(dsw("ds_write_b128", vXaddr, q, (u * 8 + ks) * 1024))
    return o

def piece(acc, grp, u, half, pk, sbase, st):
    cv = []
    for t in range(2):
        a = acc[2 * half + t][u]
        cv += [valu("v_cvt_pk_bf16_f32", pk[2 * t], a[0], a[1]), valu("v_cvt_pk_bf16_f32", pk[2 * t + 1], a[2], a[3])]
    rem = grp * 2 + half
    so = [salu("s_add_u32", st, sbase[0], (u * 8 + rem) * 1024) if rem < 8 else salu("s_add_u32", st, sbase[1], (u * 6 + rem - 8) * 1024),
          bstore(pk, vSt, sWS, st, tag="stF" if sbase is sStF else ("stA" if rem < 8 else "stB"), flags="sc1")]
    return cv, so

def paced_out(avail, reuse, n, sbase, quads, pace):
    cvi, sti, left = [], [], []
    tS = []
    nq = len(quads)
    t = -10**9
    for p in range(28):
        g, u, half = p // 4, (p >> 1) & 1, p & 1
        cv, so = piece(ACCD[g & 1], g, u, half, quads[p % nq], sbase, sTmp[p % 4])
        c0 = min(avail[g], n - 1)
        if p >= nq:
            assert tS[p - nq] is not None, "staging overflow"
            c0 = max(c0, tS[p - nq] + 3)
        c1 = max(c0, min(reuse[g], c0 + 12, n - 1))
        assert c0 <= max(reuse[g], avail[g]), (p, c0, reuse[g])
        cvi += [Item(o, rel=c0, dl=c1) for o in cv]
        t = max(t + pace, c1 + 1)
        if t + 2 < n:
            sti += [Item(so[0], rel=t - 1, dl=t + 1), Item(so[1], rel=t, dl=t + 2)]; tS.append(t + 2)
        else:
            left.append(so); tS.append(None)
    return cvi, sti, left

def items(ops, rel, dl): return [Item(o, rel=rel, dl=dl) for o in ops]

def exp_groups(Sc):
    groups = []
    for u in range(4):
        for hp in range(2):
            r = 4 * hp; x = Sc[u]
            groups.append([valu("v_exp_f32", x[r], x[r]), valu("v_exp_f32", x[r + 1], x[r + 1]), valu("v_exp_f32", x[r + 2], x[r + 2]),
                           valu("v_add_f32", vL[u], vL[u], x[r]), valu("v_add_f32", vL[u], vL[u], x[r + 1]),
                           valu("v_exp_f32", x[r + 3], x[r + 3]),
                           valu("v_cvt_pk_bf16_f32", x[2 * hp], x[r], x[r + 1]),
                           valu("v_add_f32", vL[u], vL[u], x[r + 2]), valu("v_add_f32", vL[u], vL[u], x[r + 3]),
                           valu("v_cvt_pk_bf16_f32", x[2 * hp + 1], x[r + 2], x[r + 3])])
    return groups
NG1 = OPT["split"] // 4
def sm_part(Sc, part, rel, dl):
    g = exp_groups(Sc)
    g = g[:NG1] if part == 0 else g[NG1:]
    return [Item(o, rel=rel, dl=dl) for grp in g for o in grp]

def max_items(Sn, rel0, rel1, dl):
    r0 = [Sn[u][r] for u in range(4) for r in range(4)]
    r1 = [Sn[u][4 + r] for u in range(4) for r in range(4)]
    seq = [(valu("v_max3_f32", vTmax, r0[0], r0[1], r0[2]), rel0)]
    for i in range(3, 15, 2): seq.append((valu("v_max3_f32", vTmax, vTmax, r0[i], r0[i + 1]), rel0))
    seq.append((valu("v_max3_f32", vTmax, vTmax, r0[15], r1[0]), rel1))
    for i in range(1, 15, 2): seq.append((valu("v_max3_f32", vTmax, vTmax, r1[i], r1[i + 1]), rel1))
    seq.append((valu("v_max_f32", vTmax, vTmax, r1[15]), rel1))
    seq.append((valu("v_cmp_lt_f32", "vcc", THR, vTmax), rel1))
    return [Item(o, rel=r, dl=dl) for o, r in seq]

stubs = []
def branch(kind, site, par):
    nm = f"{kind}_{site}"
    if nm not in [s[0] for s in stubs]: stubs.append((nm, f"L_r1_{par}" if kind == "r1" else "L_r2"))
    return [raw(f"s_cbranch_vccnz L_stub_{nm}", "branch", rd=["vcc"]), label(f"L_ret_{nm}")]

def rowmax(x, tm, t2):
    return [valu("v_max3_f32", tm, x[0], x[1], x[2]), valu("v_max3_f32", tm, tm, x[3], x[4]), valu("v_max3_f32", tm, tm, x[5], x[6]),
            valu("v_max_f32", tm, tm, x[7])] + xreduce("v_max_f32", tm, t2)

def rare1(par):
    Sx = SBUF[par]
    ops = [label(f"L_r1_{par}"), nop(7)]
    for u in range(4):
        tm, t2 = vX[0], vX[1]
        ops += rowmax(Sx[u], tm, t2)
        ops.append(valu("v_max_f32", tm, 0, tm))
        for r in range(8): ops.append(valu("v_sub_f32", Sx[u][r], Sx[u][r], tm))
        for r in range(4): ops.append(valu("v_sub_f32", NEGM[u][r], NEGM[u][r], tm))
        ops.append(valu("v_exp_f32", vF[u], f"-{tm}"))
        ops.append(valu("v_mul_f32", vL[u], vL[u], vF[u]))
    return ops + [nop(3), raw(f"s_setpc_b64 {sRet}", "branch", rd=sRet.regs())]

def rare2():
    ops = [label("L_r2"), nop(15)]
    for dt in range(16):
        for u in range(4):
            for i in range(4): ops.append(valu("v_accvgpr_read_b32", vX[i], O[dt][u][i]))
            for i in range(4): ops.append(valu("v_mul_f32", vX[i], vX[i], vF[u]))
            for i in range(4): ops.append(valu("v_accvgpr_write_b32", O[dt][u][i], vX[i]))
    return ops + [nop(3), raw(f"s_setpc_b64 {sRet}", "branch", rd=sRet.regs())]

vV31 = vT[6]
UNR = OPT['unroll']
LOOP_LO = 2
LOOP_HI = 2 + (26 // UNR) * UNR
def iteration(j, carry):
    Sc, Sn = SBUF[j & 1], SBUF[(j + 1) & 1]
    ops = [marker(("iter", j))]
    site = f"{(j - LOOP_LO) % UNR}" if LOOP_LO <= j < LOOP_HI else f"p{j}"
    if j > 0: ops += branch("r2", site, 0)
    brk = OPT["brk"]
    fr = frags_K(j + 1, Sn, NEGM) + frags_V(j, Sc, zero=(j == 0))
    nxt = frags_K(j + 2, Sc, NEGM)[:NPRE] if j < 30 else frags_V(31, Sn, vaddr=vV31, f0=0)[:NPRE]
    def extra(info):
        pfi = []
        if OPT["pf"] and j % 2 == 0 and j < 28:
            pfi = [Item(pfload(vPFa, sPF, sPFoff), rel=56, dl=66), Item(salu("s_add_u32", sPFoff, sPFoff, 65536), rel=57, dl=70)]
        if j == 1:
            pfi = [Item(signal(offF, V(10), V(11)), rel=1, dl=2)]
        if j == 30:
            pfi = [Item(salu("s_lshl_b32", sTmp[0], sQblk, 4), rel=10, dl=40), Item(valu("v_and_b32", V(10), 3 if OPT["fbyte"] else 0, vLane), rel=12, dl=50),
                   Item(valu("v_lshlrev_b32", V(10), 2, V(10)), rel=12, dl=50),
                   Item(bload(V(11), V(10), sDBG, sTmp[0], flags="sc1", tag="pollF"), rel=56, dl=66)]
        if OPT["pf"] and j == 28:
            pfi = [Item(salu("s_lshl_b32", sTmp[0], sQblk, 2), rel=10, dl=40), Item(salu("s_add_u32", sTmp[0], sTmp[0], sWave), rel=10, dl=40),
                   Item(salu("s_mul_i32", sTmp[0], sTmp[0], 3584), rel=10, dl=40), Item(salu("s_mul_i32", sTmp[1], sHead, 256 * 896), rel=10, dl=40),
                   Item(salu("s_add_u32", sTmp[0], sTmp[0], sTmp[1]), rel=10, dl=40),
                   Item(valu("v_lshlrev_b32", vPFa, 6, vLane), rel=10, dl=50), Item(pfload(vPFa, sWO, sTmp[0]), rel=56, dl=66)]
        return dict(sm=sm_part(Sc, 1, -1, 61) + sm_part(Sn, 0, brk, 127), mx=max_items(Sn, 36, 67, brk - 1), pf=pfi)
    def pe(info): return {brk: branch("r1", site, (j + 1) & 1)}
    body, carry = section(fr, NPRE, nxt, extra=extra, post_extra=pe, dma_first=carry if carry is not None and carry <= V31 else None,
                          verbose=OPT["verbose"] and j == 2, no_dma_after=V31)
    return ops + body, carry

XA = lambda w: 0
def last_iteration():
    Sc = SBUF[1]
    ops = [marker(("iter", 31))] + branch("r2", "p31", 0)
    fr = frags_V(31, Sc, vaddr=vV31, f0=0)
    vOa, vOb = V(12), V(14)
    pre = [valu("v_lshlrev_b32", vOa, 4, vLane), salu("s_mul_i32", sTmp[0], sWave, 24576), salu("s_lshl_b32", sTmp[1], sWave, 13),
           salu("s_add_u32", sTmp[1], sTmp[1], 3 * STG),
           valu("v_add_u32", vOb, sTmp[1], vOa), valu("v_add_u32", vOa, sTmp[0], vOa)]
    def extra(info):
        wr = []
        for dt in range(12):
            for u in (2, 3):
                wr.append(Item(dsw("ds_write_b128", vOa, O[dt][u], (dt * 2 + u - 2) * 1024), rel=min(63, info.last[dt] + 6), dl=63))
        return dict(sm=sm_part(Sc, 1, -1, -1), wr=wr)
    body, _ = section(fr, NPRE, [], extra=extra)
    ops += pre + body
    ops += [wait_lgkm0(), barrier()]
    for dt in range(12, 16):
        for u in (2, 3): ops.append(dsw("ds_write_b128", vOb, O[dt][u], ((dt - 12) * 2 + u - 2) * 1024))
    return ops

def fcheck(vd, sd):
    if not OPT["fbyte"]: return [valu("v_readfirstlane_b32", sd, vd), raw("s_nop 3", "salu")]
    return [valu("v_cmp_ne_u32", "vcc", 0x01010101, vd), raw("s_nop 3", "salu"), raw("s_cmp_eq_u64 vcc, 0", "salu", rd=["vcc"], wr=["scc"]),
            salu("s_cselect_b32", sd, 16, 0)]

FLG = []
def combine():
    o = [marker(("iter", 90))]; e = o.append
    o += fcheck(V(11), S(76))
    t = vX[0]
    for u in range(4): o += xreduce("v_add_f32", vL[u], t)
    st = V(32 + 4, 4)
    e(valu("v_mov_b32", st[0], NEGM[2][0])); e(valu("v_mov_b32", st[1], vL[2])); e(valu("v_mov_b32", st[2], NEGM[3][0])); e(valu("v_mov_b32", st[3], vL[3]))
    a = vX[1]
    e(salu("s_lshl_b32", sTmp[0], sWave, 10)); e(salu("s_add_u32", sTmp[0], sTmp[0], SPARE))
    e(valu("v_lshlrev_b32", vSt, 4, vLane))
    e(valu("v_add_u32", a, sTmp[0], vSt))
    e(dsw("ds_write_b128", a, st, 0))
    e(salu("s_xor_b32", sTmp[2], sWave, 1))
    e(salu("s_lshl_b32", sTmp[0], sTmp[2], 10)); e(salu("s_add_u32", sTmp[0], sTmp[0], SPARE)); e(valu("v_add_u32", a, sTmp[0], vSt))
    pa, pb = vX[2], vX[3]
    e(salu("s_mul_i32", sTmp[0], sTmp[2], 24576)); e(valu("v_add_u32", pa, sTmp[0], vSt))
    e(salu("s_lshl_b32", sTmp[1], sTmp[2], 13)); e(salu("s_add_u32", sTmp[1], sTmp[1], 3 * STG)); e(valu("v_add_u32", pb, sTmp[1], vSt))
    e(salu("s_cmp_ge_u32", S(76), 16)); e(raw("s_cbranch_scc1 L_pdone_F", "branch"))
    o += poll("F", offF, V(64), V(65))
    o += [wait_lgkm0(), barrier()]
    o += red_addr()
    cur = []
    for x_ in red_loads(0, LDA, [0, 1]):
        cur.append(x_)
        if x_.kind == "vmem": FLG.append(cur); cur = []
    g1 = FLG[:OPT["fl1"]]
    if g1: o += g1.pop(0)
    e(dsr("ds_read_b128", st, a, 0))
    RX = [[V(128 + (dt * 2 + u) * 4, 4) for u in range(2)] for dt in range(16)]
    for dt in range(16):
        for u in range(2):
            if dt < 12: e(dsr("ds_read_b128", RX[dt][u], pa, (dt * 2 + u) * 1024))
            else: e(dsr("ds_read_b128", RX[dt][u], pb, ((dt - 12) * 2 + u) * 1024))
            if (dt * 2 + u) % 6 == 5 and g1: o += g1.pop(0)
    wk = [vF[0], vF[1]]; wp = [vF[2], vF[3]]
    for u in range(2):
        nm_o, l_o, nm_p, l_p = NEGM[u][0], vL[u], st[2 * u], st[2 * u + 1]
        mn, fa, fb = vT[0], vT[1], vT[2]
        e(valu("v_min_f32", mn, nm_o, nm_p))
        e(valu("v_sub_f32", fa, mn, nm_o)); e(valu("v_sub_f32", fb, mn, nm_p))
        e(valu("v_exp_f32", fa, fa)); e(valu("v_exp_f32", fb, fb))
        e(valu("v_mul_f32", mn, fa, l_o)); e(valu("v_fma_f32", mn, fb, l_p, mn))
        e(valu("v_rcp_f32", mn, mn))
        e(valu("v_mul_f32", wk[u], fa, mn)); e(valu("v_mul_f32", wp[u], fb, mn))
    for x_ in g1: o += x_
    o += [wait_lgkm0(), barrier()]
    e(valu("v_lshrrev_b32", vX[0], 3, vLane)); e(valu("v_and_b32", vX[1], 7, vLane))
    e(valu("v_mul_u32_u24", vDmaN, 16 * 896, vX[0])); e(valu("v_lshl_add_u32", vDmaN, vX[1], 4, vDmaN))
    o += m0_init(W0)
    for s_ in range(W0, W0 + 3):
        for grp in dma_ops(s_): o += grp
    e(valu("v_sub_u32", vPaddrLo, vVaddr, sKh)); e(valu("v_add_u32", vPaddrHi, HALF, vPaddrLo))
    e(valu("v_lshlrev_b32", vSt, 4, vLane))
    TMPB = [[A((4 * dt + 2) * 4 + 0, 2) for dt in range(16)], [A((4 * dt + 3) * 4, 2) for dt in range(16)]]
    tt = [V(64 + i) for i in range(16)]
    n = 0
    g2 = FLG[OPT["fl1"]:OPT["fl1"] + OPT["fl2"]]
    for dt in range(16):
        for u in range(2):
            if g2 and (n * OPT["fl2"]) // 32 != ((n + 1) * OPT["fl2"]) // 32: o += g2.pop(0)
            x = [tt[(4 * n + i) % 16] for i in range(4)]; n += 1
            for r in range(4): e(valu("v_accvgpr_read_b32", x[r], O[dt][u][r]))
            xx = Reg("v", x[0].lo, 4)
            sel = "op_sel:[0,%d] op_sel_hi:[1,%d]" % (u, u)
            sel3 = "op_sel:[0,%d,0] op_sel_hi:[1,%d,1]" % (u, u)
            for h in range(2): e(valu("v_pk_mul_f32", xx[2 * h:2 * h + 2], xx[2 * h:2 * h + 2], V(40, 2), mods=sel))
            for h in range(2): e(valu("v_pk_fma_f32", xx[2 * h:2 * h + 2], RX[dt][u][2 * h:2 * h + 2], V(42, 2), xx[2 * h:2 * h + 2], mods=sel3))
            ob = RX[dt & ~1][u]
            e(valu("v_cvt_pk_bf16_f32", ob[2 * (dt & 1)], x[0], x[1])); e(valu("v_cvt_pk_bf16_f32", ob[2 * (dt & 1) + 1], x[2], x[3]))
    return o, RX

offA2 = [salu("s_lshl_b32", sTmp[6], sQblk, 2), salu("s_add_u32", sTmp[6], sTmp[6], 64)]
def signal(off_sgpr_ops, va, vd):
    o = list(off_sgpr_ops)
    t = Reg("s", int(o[-1].wr[0][1:]))
    o += [salu("s_cmp_eq_u32", sWave, 0), salu("s_cselect_b32", t, t, 0x10000),
          valu("v_mov_b32", va, t), valu("v_mov_b32", vd, 1), raw("s_mov_b64 exec, 1", "salu"),
          Op(f"buffer_store_byte {vd}, {va}, {sDBG}, {sHead} offen sc1" if OPT["fbyte"] else f"buffer_atomic_add {vd}, {va}, {sDBG}, 0 offen",
             "vmem", rd=va.regs() + vd.regs() + sDBG.regs(), tag="sig"),
          raw("s_mov_b64 exec, -1", "salu")]
    return o
def signal16(which, va, vd, t):
    return [salu("s_lshl_b32", t, sQblk, 12), salu("s_add_u32", t, t, CNT + 4 * which),
            salu("s_cmp_eq_u32", sWave, 0), salu("s_cselect_b32", t, t, 0x7ff00000),
            valu("v_lshlrev_b32", va, 8, vLane), valu("v_add_u32", va, t, va), valu("v_mov_b32", vd, 1),
            salu("s_lshl_b32", t, 1, sHead), salu("s_xor_b32", t, t, 0xffff),
            raw(f"s_mov_b32 exec_lo, {t}", "salu", rd=t.regs()), raw("s_mov_b32 exec_hi, 0", "salu"),
            Op(f"buffer_atomic_add {vd}, {va}, {sWS}, 0 offen", "vmem", rd=va.regs() + vd.regs() + sWS.regs(), tag="sig"),
            raw("s_mov_b64 exec, -1", "salu")]
def poll2(name, which, va, vd2):
    return [valu("v_mov_b32", va, 0), salu("s_mov_b32", sTmp[1], 0), label(f"L_poll_{name}"),
            raw(f"buffer_load_dwordx2 {vd2}, {va}, {sWS}, {sCW} offen sc1", "salu"), raw("s_waitcnt vmcnt(0)", "wait"),
            raw(f"v_readfirstlane_b32 {sTmp[2]}, {vd2[0]}", "salu"), raw(f"v_readfirstlane_b32 {sTmp[3]}, {vd2[1]}", "salu"),
            salu("s_add_u32", sTmp[1], sTmp[1], 1), raw("s_nop 3", "salu"),
            salu("s_cmp_ge_u32", sTmp[2 + which], 15), raw(f"s_cbranch_scc1 L_pdone_{name}", "branch"),
            raw("s_sleep 2", "salu"), salu("s_cmp_lt_u32", sTmp[1], 0x40000), raw(f"s_cbranch_scc1 L_poll_{name}", "branch"),
            label(f"L_pdone_{name}")]
offF = [salu("s_lshl_b32", sTmp[0], sQblk, 4)]
offA = [salu("s_lshl_b32", sTmp[0], sQblk, 2), salu("s_add_u32", sTmp[0], sTmp[0], 64)]
offB = [salu("s_lshl_b32", sTmp[0], sQblk, 3), salu("s_add_u32", sTmp[0], sTmp[0], 128)]

def poll(name, off_ops, va, vd):
    o = list(off_ops) + [valu("v_and_b32", va, 3 if OPT["fbyte"] else 0, vLane), valu("v_lshlrev_b32", va, 2, va),
         salu("s_mov_b32", sTmp[1], 0), label(f"L_poll_{name}"),
         raw(f"buffer_load_dword {vd}, {va}, {sDBG}, {sTmp[0]} offen sc1", "salu"), raw("s_waitcnt vmcnt(0)", "wait")]
    o += fcheck(vd, sTmp[2])
    o += [salu("s_add_u32", sTmp[1], sTmp[1], 1),
         salu("s_cmp_ge_u32", sTmp[2], 16), raw(f"s_cbranch_scc1 L_pdone_{name}", "branch"),
         raw("s_sleep 2", "salu"), salu("s_cmp_lt_u32", sTmp[1], 0x40000), raw(f"s_cbranch_scc1 L_poll_{name}", "branch"),
         label(f"L_pdone_{name}")]
    return o
def poll0(name, off_ops, va, vd):
    return [salu("s_cmp_lg_u32", sWave, 0), raw(f"s_cbranch_scc1 L_pdone_{name}", "branch")] + poll(name, off_ops, va, vd)

LDV = [[V(128 + (k * 16 + h) * 4, 4) for h in range(16)] for k in range(2)]
LDA = [[O[h][2 + k] for h in range(16)] for k in range(2)]
vRa = [V(12), V(14)]
def red_addr():
    return [salu("s_lshl_b32", sTmp[0], sHead, 2), salu("s_add_u32", sTmp[0], sTmp[0], sWave),
            salu("s_lshl_b32", sTmp[1], sTmp[0], 10), salu("s_mul_i32", sTmp[2], sTmp[0], 768), salu("s_add_u32", sTmp[2], sTmp[2], 65536),
            valu("v_lshlrev_b32", vRa[1], 4, vLane), valu("v_add_u32", vRa[0], sTmp[1], vRa[1]), valu("v_add_u32", vRa[1], sTmp[2], vRa[1])]
def red_loads(region, LD, parts):
    o = []
    t = [sTmp[4], sTmp[5]]
    o += [salu("s_mul_i32", t[0], sQblk, 16 * PBLK), salu("s_add_u32", t[0], t[0], region)]
    for h in range(16):
        for k in parts: o.append(bload(LD[k][h], vRa[k], sWS, t[h & 1], flags="sc1", tag="red"))
        if h < 15: o.append(salu("s_add_u32", t[(h + 1) & 1], t[h & 1], PBLK))
    return o
sSelLo, sSelHi = S(72), S(73)
def red_sum(ACC, LD, k, tmp):
    o = []; e = o.append
    for h in range(16):
        src = []
        for p in range(4):
            x = LD[k][h][p]
            if x.k == "a":
                y = tmp[(4 * h + p) % 8]; e(valu("v_accvgpr_read_b32", y, x)); x = y
            src.append(x)
        for p in range(4):
            for hi in range(2):
                acc = ACC[k][2 * p + hi]
                e(valu("v_dot2_f32_bf16", acc, src[p], sSelHi if hi else sSelLo, 0 if h == 0 else acc))
    return o

def tail():
    o = [marker(("iter", 95))]; e = o.append
    G = [[V(16 + k * 8 + i) for i in range(8)] for k in range(2)]
    SA = [[V(32 + k * 8 + i) for i in range(8)] for k in range(2)]
    tmp = [V(96 + i) for i in range(8)]
    T_ = [V(54 + i) for i in range(8)]
    XV = [[V(62 + (k * 2 + t) * 2, 2) for t in range(2)] for k in range(2)]
    vo = [V(70), V(71)]
    c, un, q = V(72), V(73), V(74)
    def silu(k):
        F = G[k]
        for i in range(8): o.extend(round_bf16(F[i]))
        for i in range(8): e(valu("v_mul_f32", T_[i], -LOG2E, F[i]))
        for i in range(8): e(valu("v_exp_f32", T_[i], T_[i]))
        for i in range(8): e(valu("v_add_f32", T_[i], 1.0, T_[i]))
        for i in range(8): e(valu("v_rcp_f32", T_[i], T_[i]))
        for i in range(8): e(valu("v_mul_f32", F[i], F[i], T_[i]))
        for i in range(8): o.extend(round_bf16(F[i]))
    def final(k):
        for i in range(8): o.extend(round_bf16(SA[k][i]))
        for i in range(8): e(valu("v_mul_f32", SA[k][i], SA[k][i], G[k][i]))
        for i in range(8): o.extend(round_bf16(SA[k][i]))
        for t in range(2):
            for p in range(2):
                x = XV[k][t][p]
                e(valu("v_lshlrev_b32", tmp[0], 16, x)); e(valu("v_and_b32", tmp[1], 0xffff0000, x))
                e(valu("v_add_f32", tmp[0], tmp[0], SA[k][4 * t + 2 * p])); e(valu("v_add_f32", tmp[1], tmp[1], SA[k][4 * t + 2 * p + 1]))
                e(valu("v_cvt_pk_bf16_f32", x, tmp[0], tmp[1]))
            e(bstore(XV[k][t], vo[k], sOUT, 0, off=32 * t))
    e(salu("s_mov_b32", sSelLo, 0x00003f80)); e(salu("s_mov_b32", sSelHi, 0x3f800000))
    sA, sB = S(74), S(75)
    def rawloads(k):
        for x_ in red_loads(PART, LDV, [k]): e(raw(x_.text, "salu"))
    e(valu("v_readfirstlane_b32", sA, FREEQ[15][0])); e(valu("v_readfirstlane_b32", sB, FREEQ[15][1]))
    e(salu("s_lshl_b32", sTmp[0], sHead, 2)); e(salu("s_add_u32", sTmp[0], sTmp[0], sWave))
    e(salu("s_mul_i32", sTmp[1], sQblk, PBLK))
    e(salu("s_lshr_b32", sTmp[2], sTmp[0], 3)); e(salu("s_mul_i32", sTmp[2], sTmp[2], 16 * 896)); e(salu("s_add_u32", sTmp[2], sTmp[2], sTmp[1]))
    e(salu("s_and_b32", sTmp[3], sTmp[0], 7)); e(salu("s_lshl_b32", sTmp[3], sTmp[3], 6)); e(salu("s_add_u32", sTmp[2], sTmp[2], sTmp[3]))
    e(valu("v_and_b32", vo[0], 15, vLane)); e(valu("v_mul_u32_u24", vo[0], 896, vo[0]))
    e(valu("v_lshrrev_b32", un, 4, vLane)); e(valu("v_lshl_add_u32", vo[0], un, 3, vo[0])); e(valu("v_add_u32", vo[0], sTmp[2], vo[0]))
    e(salu("s_mul_i32", sTmp[0], sTmp[0], 48)); e(salu("s_add_u32", sTmp[1], sTmp[1], 512))
    e(valu("v_add_u32", c, sTmp[0], vLane)); e(valu("v_lshrrev_b32", un, 6, c))
    e(valu("v_mul_u32_u24", q, 43, un)); e(valu("v_lshrrev_b32", q, 8, q))
    e(valu("v_mul_u32_u24", vo[1], 6, q)); e(valu("v_sub_u32", un, un, vo[1]))
    e(valu("v_and_b32", vo[1], 15, c)); e(valu("v_lshl_add_u32", vo[1], q, 4, vo[1]))
    e(valu("v_mul_u32_u24", vo[1], 896, vo[1])); e(valu("v_lshl_add_u32", vo[1], un, 6, vo[1]))
    e(valu("v_bfe_u32", un, c, 4, 2)); e(valu("v_lshl_add_u32", vo[1], un, 3, vo[1]))
    e(valu("v_add_u32", vo[1], sTmp[1], vo[1]))
    e(valu("v_cmp_gt_u32", "vcc", 48, vLane)); e(valu("v_mov_b32", un, 0x7fffff00))
    e(valu("v_cndmask_b32", vo[1], un, vo[1]))
    for k in range(2):
        for t in range(2): e(raw(bload(XV[k][t], vo[k], sX, 0, off=32 * t).text, "salu", rd=vo[k].regs()))
    e(salu("s_cmp_ge_u32", sA, 15)); e(raw("s_cbranch_scc0 L_noA", "branch"))
    rawloads(0)
    e(raw("s_waitcnt vmcnt(20)", "wait")); e(raw("s_branch L_drained", "branch"))
    e(label("L_noA"))
    e(raw("s_waitcnt vmcnt(4)", "wait"))
    e(label("L_drained"))
    o += stamp(2, 7)
    e(barrier())
    o += signal16(1, V(75), V(76), sTmp[0])
    o += stamp(3, 7)
    e(salu("s_cmp_ge_u32", sA, 15)); e(raw("s_cbranch_scc1 L_haveA", "branch"))
    o += red_sum(G, LDA, 0, tmp)
    o += poll2("A", 0, V(75), V(76, 2))
    e(salu("s_mov_b32", sB, sTmp[3]))
    rawloads(0)
    e(raw("s_branch L_joinA", "branch"))
    e(label("L_haveA"))
    e(salu("s_cmp_ge_u32", sB, 15)); e(raw("s_cbranch_scc0 L_noB1", "branch"))
    rawloads(1)
    e(salu("s_mov_b32", sA, 99))
    e(label("L_noB1"))
    o += red_sum(G, LDA, 0, tmp)
    e(label("L_joinA"))
    o += stamp(4, 7)
    silu(0)
    o += red_sum(G, LDA, 1, tmp)
    silu(1)
    o += stamp(5, 7)
    e(salu("s_cmp_eq_u32", sA, 99)); e(raw("s_cbranch_scc1 L_haveB", "branch"))
    e(salu("s_cmp_ge_u32", sB, 15)); e(raw("s_cbranch_scc1 L_pdone_B", "branch"))
    o += poll2("B", 1, V(75), V(76, 2))
    rawloads(1)
    e(label("L_haveB"))
    o += stamp(6, 7)
    e(raw("s_waitcnt vmcnt(16)", "wait"))
    o += red_sum(SA, LDV, 0, tmp)
    e(raw("s_waitcnt vmcnt(0)", "wait"))
    o += red_sum(SA, LDV, 1, tmp)
    final(0)
    final(1)
    return o
assert all((u * 43) >> 8 == u // 6 for u in range(50))

def pfpat(d, t):
    if OPT["pfpat"] == 0: return [valu("v_lshlrev_b32", d, 5, vLane)]
    sh = OPT["pfpat"]
    return [valu("v_lshrrev_b32", d, sh, vLane), valu("v_lshlrev_b32", d, 5 + sh, d),
            valu("v_and_b32", t, (1 << sh) - 1, vLane), valu("v_lshl_add_u32", d, t, 2, d)]

def build_main():
    prog, late, pfl = setup()
    if OPT["pfearly"]: prog += pfl; pfl = []
    prog += stamp(1) + stamp(4, 2)
    prog += ln_stats(late) + stamp(5, 2)
    prog += stamp(2) + stamp(6, 2)
    f1 = [f for st in range(18) for f in frags_stage(st)]
    Sn = SBUF[0]
    vK0 = vT[5]
    fK0 = frags_K(0, Sn, [0] * 4, kaddr=vK0, f0=16)
    prog += bar_ops(0) + stamp(7, 2)
    for f in f1[:len(FRA)]: prog += f.reads
    LEFT = []
    def extra(info):
        def first_of(key): return min(info.first[i] for i, f in enumerate(f1) if f.key == key)
        def last_of(key): return max(info.last[i] for i, f in enumerate(f1) if f.key == key)
        ln = []
        for ks in range(2, 14): ln += items(ln_apply(ks, 1), -1, first_of(("U", ks)) - 3)
        endU, endP = last_of(("U", 13)), last_of(("P", 13))
        sil = items(silu_ops(), endU + 5, first_of(("D", 0)) - 3)
        xa = [salu("s_lshr_b32", sTmp[5], sWave, 1), salu("s_mul_i32", sTmp[5], sTmp[5], (RB[20 % 4] - RB[19 % 4]) & 0xffffffff),
              salu("s_add_u32", sTmp[5], sTmp[5], sKh), salu("s_add_u32", sTmp[5], sTmp[5], RB[19 % 4]),
              valu("v_add_u32", vXaddr, sTmp[5], vSt)]
        qc = qconv_ops(None)
        relq = endP + 5
        qi = items(xa, relq, info.n - 1)
        qv = [o for o in qc if o.kind != "dsw"]
        qend = info.bar[17] + 4 if OPT["qspread"] else info.n - 1
        for k, o in enumerate(qv):
            qi.append(Item(o, rel=relq, dl=(relq + (qend - relq) * (k + 1) // len(qv)) if OPT["qspread"] else info.n - 1))
        qi += [Item(o, rel=max(relq, info.bar[17] + 1), dl=info.n - 1) for o in qc if o.kind == "dsw"]
        Q12 = [V(96 + 4 * i, 4) for i in range(4)] + [V(80 + 4 * i, 4) for i in range(4)] + [V(112 + 4 * i, 4) for i in range(4)]
        oc, os_, left = paced_out([last_of(("D", g)) + 5 for g in range(7)],
                                  [first_of(("D", g + 2)) - 3 if g + 2 <= 6 else info.n - 1 for g in range(7)], info.n, sStF, Q12, OPT["dpace"])
        LEFT.extend(left)
        pfi = []
        when = [OPT["pfwq"], OPT["pfw2"]] + [OPT["pfkv0"] + OPT["pfkvs"] * k for k in range(OPT["pfdist"] + 1)]
        k = 0
        for o in pfl:
            pfi.append(Item(o, rel=when[k], dl=when[k] + 40))
            if o.kind == "vmem": k += 1
        return dict(ln=ln, sil=sil, qc=qi, oc=oc, os=os_, pf=pfi)
    body, carry = section(f1, len(FRA), [], extra=extra, dma_first=[2, 3], verbose=OPT["verbose"])
    prog += body
    prog += stamp(3) + stamp(7, 5)
    if OPT["stamps"] == 8:
        prog += [raw("s_memtime s[100:101]", "smem"), raw("s_waitcnt lgkmcnt(0)", "wait"),
                 salu("s_lshl_b32", sTmp[0], S(2), 2), salu("s_add_u32", sTmp[0], sTmp[0], sWave), salu("s_lshl_b32", sTmp[0], sTmp[0], 7),
                 salu("s_add_u32", sTmp[0], sTmp[0], 2 * PART + 65536), valu("v_mov_b32", V(100), 0)]
        for k, sr in enumerate(S8 + [100]):
            prog += [salu("s_sub_u32", sTmp[1], S(sr), S(sStamp)), valu("v_mov_b32", V(101 + k), sTmp[1]), bstore(V(101 + k), V(100), sWS, sTmp[0], off=4 * k)]
    assert carry == 20, carry
    print("deferred f stores:", len(LEFT))
    early = [so for so in LEFT if 80 <= int(so[1].extra[1][0][1:]) < 96]
    later = [so for so in LEFT if so not in early]
    for so in early[:2]: prog += so
    prog += [wait_lgkm0(), barrier()]
    prog += [salu("s_sub_u32", sTmp[0], SLOT, sKh), salu("s_sub_u32", sTmp[0], sTmp[0], sKh),
             valu("v_add_u32", vXaddr, sTmp[0], vXaddr)]
    for u in range(2):
        for ks in range(8): prog.append(dsr("ds_read_b128", Q[2 + u][ks], vXaddr, (u * 8 + ks) * 1024))
    for grp in dma_ops(21): prog += grp
    prog += [valu("v_subrev_u32", vK0, HALF, vKaddr), valu("v_add_u32", vV31, HALF, vVaddr), ] + pfpat(vPFa, V(10))
    for u in range(4): prog.append(valu("v_mov_b32", vL[u], 0))
    prog.append(salu("s_mov_b32", sCnt, (LOOP_HI - LOOP_LO) // UNR))
    for so in early[2:]: prog += so
    prog += bar_ops(K0)
    for f in fK0[:NPRE]: prog += f.reads
    nin = min(len(later), 4)
    def extraK0(info):
        it = []
        for k, so in enumerate(later[:nin]): it += [Item(so[0], rel=3 + 16 * k, dl=6 + 16 * k), Item(so[1], rel=4 + 16 * k, dl=7 + 16 * k)]
        return dict(os=it)
    body, carry = section(fK0, NPRE, frags_K(1, SBUF[1], NEGM)[:NPRE], dma_first=23, extra=extraK0)
    prog += body
    for grp in dma_ops(22): prog += grp
    later = later[nin:]
    for u in range(4):
        tm, t2 = vX[0], vX[1]
        prog += rowmax(Sn[u], tm, t2)
        for r in range(8): prog.append(valu("v_sub_f32", Sn[u][r], Sn[u][r], tm))
        for r in range(4): prog.append(valu("v_sub_f32", NEGM[u][r], 0, tm))
        if u % 2 == 1 and later: prog += later.pop(0)
    prog += sprinkle([o_ for it in sm_part(Sn, 0, 0, 0) for o_ in it.ops], later)
    prog += stamp(4)
    if OPT["stamps"] == 3:
        prog += [salu("s_lshl_b32", S(90), S(2), 2), salu("s_add_u32", S(90), S(90), sWave), salu("s_lshl_b32", S(90), S(90), 7),
                 salu("s_add_u32", S(90), S(90), 2 * PART + 65536)]
    for j in range(31):
        it, carry = iteration(j, carry)
        if LOOP_LO <= j < LOOP_HI and (j - LOOP_LO) % UNR == UNR - 1:
            it += [salu("s_sub_u32", sCnt, sCnt, 1), salu("s_cmp_lg_u32", sCnt, 0), raw("s_cbranch_scc1 L_loop", "branch", rd=["scc"])]
        if OPT["stamps"] == 3:
            st3 = [raw("s_memtime s[100:101]", "smem"), wait_lgkm0(), raw("s_waitcnt lgkmcnt(0)", "wait"), salu("s_sub_u32", S(100), S(100), S(sStamp)),
                   valu("v_mov_b32", V(12), S(100)), valu("v_mov_b32", V(14), 0), bstore(V(12), V(14), sWS, S(90)), salu("s_add_u32", S(90), S(90), 4)]
            k = len(it) - 3 if it[-1].kind == "branch" else len(it)
            it = it[:k] + st3 + it[k:]
        prog += it
    prog += last_iteration()
    prog += stamp(5)
    cmb, RX = combine()
    prog += cmb
    prog += stamp(6)
    fW = frags_W()
    prog += bar_ops(W0)
    for f in fW[:len(FRW)]: prog += f.reads
    LEFTW = []
    def extraW(info):
        QW = [V(80 + 4 * i, 4) for i in range(4)] + FREEQ[8:14]
        oc, os_, left = paced_out([info.last[32 * g + 31] + 5 for g in range(7)],
                                  [info.first[32 * (g + 2)] - 3 if g + 2 <= 6 else info.n - 1 for g in range(7)], info.n, sStS, QW, OPT["wpace"])
        LEFTW.extend(left)
        sg = [Item(signal16(0, FREEQ[14][0], FREEQ[14][1], sTmp[6]), rel=info.bar[W0 + 6] + 1, dl=info.bar[W0 + 6] + 1)]
        sg += [Item(valu("v_mov_b32", FREEQ[14][2], 0), rel=info.n - 40, dl=info.n - 36),
               Item(bload(FREEQ[15][0:2], FREEQ[14][2], sWS, sCW, flags="sc1", tag="cnt"), rel=info.n - 34, dl=info.n - 30)]
        fl = []
        for k, g_ in enumerate(FLG[OPT["fl1"] + OPT["fl2"]:]):
            for x_ in g_: fl.append(Item(x_, rel=2 + OPT["flpace"] * k, dl=8 + OPT["flpace"] * k))
        return dict(oc=oc, os=os_, sg=sg, fl=fl)
    body, _ = section(fW, len(FRW), [], extra=extraW, dma_first=W0 + 3, verbose=OPT["verbose"])
    prog += body
    print("deferred s stores:", len(LEFTW))
    for so in LEFTW: prog += so
    prog += stamp(5, 6) + stamp(1, 7)
    prog += tail()
    prog += stamp(7) + stamp(7, 7)
    if OPT["stamps"] in (1, 2, 4, 5, 6, 7):
        prog += [salu("s_lshl_b32", sTmp[0], S(2), 2), salu("s_add_u32", sTmp[0], sTmp[0], sWave), salu("s_lshl_b32", sTmp[0], sTmp[0], 6),
                 salu("s_add_u32", sTmp[0], sTmp[0], 2 * PART), valu("v_mov_b32", V(20), 0)]
        for k in range(1, 8):
            prog += [salu("s_sub_u32", sTmp[1], S(sStamp + k), S(sStamp)), valu("v_mov_b32", V(21), sTmp[1]),
                     bstore(V(21), V(20), sWS, sTmp[0], off=4 * k)]
    prog += [label("L_done"), raw("s_endpgm", "branch")]
    return prog

def finish(prog):
    for tag in ("stA", "stF"):
        w = [i for i, o in enumerate(prog) if o.kind == "pseudo" and o.tag and o.tag[0] == "waitvm" and tag in o.tag[1]]
        st = [i for i, o in enumerate(prog) if o.tag == tag]
        assert len(w) == 1 and max(st) < w[0], (tag, w, max(st))
    prog = insert_waits(prog)
    rep = []
    prog = pad_hazards(prog, report=rep)
    segs = []; cur = ("pro", [])
    segs.append(cur)
    for op in prog:
        if op.kind == "pseudo" and op.tag and op.tag[0] == "mark":
            cur = (op.tag[1][1], []); segs.append(cur)
        cur[1].append(op)
    d = dict(segs)
    for j in range(LOOP_LO + UNR, LOOP_HI):
        a, b = text_of(d[j]), text_of(d[j - UNR])
        if a != b:
            import difflib
            print("MISMATCH iter", j); print("\n".join(list(difflib.unified_diff(b.split("\n"), a.split("\n"), lineterm=""))[:40])); sys.exit(1)
    body = ""
    for k, ops in segs:
        if isinstance(k, int) and LOOP_LO + UNR <= k < LOOP_HI: continue
        if k == LOOP_LO: body += ".p2align 6\nL_loop:\n"
        body += text_of(ops) + "\n"
    tail = []
    for nm, tgt in stubs:
        tail += [label(f"L_stub_{nm}"), raw(f"s_call_b64 {sRet}, {tgt}", "branch"), raw(f"s_branch L_ret_{nm}", "branch")]
    tail += pad_hazards(rare1(0)) + pad_hazards(rare1(1)) + pad_hazards(rare2())
    body += text_of(tail) + "\nL_end:\n"
    print("nops inserted:", len(rep), "in loop:", [o.text for o in d[LOOP_LO] if o.kind == "nop"], "total instrs", body.count("\n"))
    return body

def build_reduce():
    o = []; e = o.append
    e(raw("s_cmp_ge_u32 s2, 448")); e(raw("s_cbranch_scc1 L_rdone", "branch"))
    e(raw("s_load_dwordx2 s[4:5], s[0:1], 0", "smem")); e(raw("s_load_dwordx2 s[6:7], s[0:1], 72", "smem")); e(raw("s_load_dwordx2 s[20:21], s[0:1], 88", "smem"))
    rX, rO, rW = S(8, 4), S(12, 4), S(16, 4)
    e(valu("v_lshrrev_b32", V(1), 6, V(0))); e(valu("v_and_b32", V(0), 63, V(0)))
    e(valu("v_readfirstlane_b32", S(22), V(1)))
    e(salu("s_lshl_b32", S(23), S(2), 2)); e(salu("s_add_u32", S(23), S(23), S(22)))
    e(valu("v_lshlrev_b32", V(2), 4, V(0)))
    e(salu("s_lshl_b32", S(24), S(23), 14))
    e(salu("s_add_u32", S(25), S(24), PART))
    e(raw("s_waitcnt lgkmcnt(0)", "wait"))
    for d, lo, sz in ((rX, 4, 2048 * 896), (rO, 6, 2048 * 896), (rW, 20, 2 * PART)):
        e(salu("s_mov_b32", d[0], S(lo))); e(salu("s_mov_b32", d[1], S(lo + 1))); e(salu("s_mov_b32", d[2], sz)); e(salu("s_mov_b32", d[3], 0x20000))
    LD = [[V(32 + (m * 16 + h) * 4, 4) for h in range(16)] for m in range(2)]
    for h4 in range(4):
        for m in range(2):
            for hh in range(4): e(bload(LD[m][4 * h4 + hh], V(2), rW, S(24 + (1 if OPT["rednof"] else m)), off=hh * 1024))
        if h4 < 3:
            e(salu("s_add_u32", S(24), S(24), 4096)); e(salu("s_add_u32", S(25), S(25), 4096))
    e(salu("s_mul_i32", S(26), S(23), 4682)); e(salu("s_lshr_b32", S(26), S(26), 16))
    e(salu("s_mul_i32", S(27), S(26), 14)); e(salu("s_sub_u32", S(27), S(23), S(27)))
    e(salu("s_mul_i32", S(26), S(26), 16 * 896)); e(salu("s_lshl_b32", S(27), S(27), 6)); e(salu("s_add_u32", S(26), S(26), S(27)))
    e(valu("v_and_b32", V(3), 15, V(0))); e(valu("v_mul_u32_u24", V(3), 896, V(3)))
    e(valu("v_lshrrev_b32", V(4), 4, V(0))); e(valu("v_lshl_add_u32", V(3), V(4), 3, V(3)))
    XV = [V(6, 2), V(8, 2)]
    for t in range(2): e(bload(XV[t], V(3), rX, S(26), off=32 * t))
    ACC = [[V(10 + m * 8 + i) for i in range(8)] for m in range(2)]
    tmp = [V(26 + i) for i in range(4)]
    for h in range(16):
        for m in range(2):
            for p in range(4):
                x = LD[m][h][p]
                if h == 0:
                    e(valu("v_lshlrev_b32", ACC[m][2 * p], 16, x)); e(valu("v_and_b32", ACC[m][2 * p + 1], 0xffff0000, x))
                else:
                    a, b = tmp[2 * (p & 1)], tmp[2 * (p & 1) + 1]
                    e(valu("v_lshlrev_b32", a, 16, x)); e(valu("v_and_b32", b, 0xffff0000, x))
                    e(valu("v_add_f32", ACC[m][2 * p], ACC[m][2 * p], a)); e(valu("v_add_f32", ACC[m][2 * p + 1], ACC[m][2 * p + 1], b))
    F, Sx = ACC[0], ACC[1]
    T_ = [V(32 + i) for i in range(8)]
    for i in range(8): o += round_bf16(F[i]) + round_bf16(Sx[i])
    for i in range(8): e(valu("v_mul_f32", T_[i], -LOG2E, F[i]))
    for i in range(8): e(valu("v_exp_f32", T_[i], T_[i]))
    for i in range(8): e(valu("v_add_f32", T_[i], 1.0, T_[i]))
    for i in range(8): e(valu("v_rcp_f32", T_[i], T_[i]))
    for i in range(8): e(valu("v_mul_f32", F[i], F[i], T_[i]))
    for i in range(8): o += round_bf16(F[i])
    for i in range(8): e(valu("v_mul_f32", F[i], F[i], Sx[i]))
    for i in range(8): o += round_bf16(F[i])
    for t in range(2):
        for p in range(2):
            x = XV[t][p]
            e(valu("v_lshlrev_b32", tmp[0], 16, x)); e(valu("v_and_b32", tmp[1], 0xffff0000, x))
            e(valu("v_add_f32", tmp[0], tmp[0], F[4 * t + 2 * p])); e(valu("v_add_f32", tmp[1], tmp[1], F[4 * t + 2 * p + 1]))
            e(valu("v_cvt_pk_bf16_f32", x, tmp[0], tmp[1]))
        e(bstore(XV[t], V(3), rO, S(26), off=32 * t))
    e(label("L_rdone")); e(raw("s_endpgm", "branch"))
    return text_of(pad_hazards(insert_waits(o))) + "\n"
assert all((w * 4682) >> 16 == w // 14 for w in range(1792))

HDR = open("recurrent_scan__mha_block_cached__glu_gated_swiglu__prompt.s.ref").read().split("; Override")[0]
def kd(name, vg, acc, sg):
    return f""".amdhsa_kernel {name}
  .amdhsa_next_free_vgpr {vg}
  .amdhsa_next_free_sgpr {sg}
  .amdhsa_accum_offset {acc}
  .amdhsa_group_segment_fixed_size 0
  .amdhsa_kernarg_size 96
  .amdhsa_user_sgpr_count 2
  .amdhsa_user_sgpr_kernarg_segment_ptr 1
  .amdhsa_system_sgpr_workgroup_id_x 1
.end_amdhsa_kernel
"""
main = finish(build_main())
NAME = "recurrent_scan__mha_block_cached__glu_gated_swiglu__prompt_kernel"
txt = HDR + f"""; @launch {'kernel=' + NAME + ' ' if OPT['aslist'] else ''}grid=(256,1,1) block=(256,1,1) lds=163840
.amdgcn_target "amdgcn-amd-amdhsa--gfx950"
.text
.globl {NAME}
.p2align 8
.type {NAME},@function
{NAME}:
""" + main + """.section .rodata,"a"
.p2align 6
""" + kd(NAME, 512, 256, 102)
open(sys.argv[1], "w").write(txt)
```

```python
import sys
from asmlib import *

OPT = dict(cap=8, bardelay=4, verbose=0, brk=78, split=16, stamps=0, dbg=0, stflag=0, nofst=0, kvflag=0, rt=0, wflag=0, pf=1, pfflag=0, pfdist=4, pfcode=1, xpre=12, rednof=0, aslist=1, pfearly=0, pfw2=330, pfkv0=450, pfkvs=100, pfwq=30, xfirst=22, touch=1, mix=0, qspread=1, dpace=11, wpace=15, chain=1, chaind=2, nba=8, nbv=6, bous=1, pfpat=2, unroll=2, fbyte=0, hmap=2, fl1=6, fl2=12, flpace=12, delay=0, pf128=1, wqearly=0, sweep=0, wqp=4, pfwqs=70, tailv=2, dbgout=0)
for a in sys.argv[2:]:
    k, v = a.split("="); OPT[k] = int(v)

TIMER = 's_memrealtime' if OPT['rt'] else 's_memtime'
BSTR = 1056
SLOT = 16 * BSTR
STG = 2 * SLOT
RB = [0, 2 * STG, STG, 3 * STG]
HALF = 2 * STG
SPARE = 4 * STG
THR = 16.0
XSTR = 928
PBLK = 128 * 448 * 2
CNT = 2 * PART + (1 << 20)
XB = 163840 - 128 * XSTR
assert XB >= STG
QSCALE = 1.4426950408889634 / 16.0
LOG2E = 1.4426950408889634
PART = 2048 * 448 * 2 * 16

vLane = V(0)
vKaddr, vVaddr, vDma = V(1), V(2), V(3)
vL = [V(4 + i) for i in range(4)]
vTmax = V(8)
vT = [V(9 + i) for i in range(7)]
FRV = [V(16 + 4 * i, 4) for i in range(6)]
if OPT["nbv"] == 6: BSEQ = [b for n_ in (6, 5, 5, 6, 5, 5) for b in range(n_)]
else: BSEQ = [f % 4 for f in range(32)]
NPRE = 5 if OPT["nbv"] == 6 else 4
vF = [V(40 + i) for i in range(4)]
vX = [V(44 + i) for i in range(4)]
NEGM = [V(48 + 4 * u, 4) for u in range(4)]
SBUF = [[V(64 + 32 * p + 8 * u, 8) for u in range(4)] for p in range(2)]
Q = [[V(128 + 32 * u + 4 * ks, 4) for ks in range(8)] for u in range(4)]
O = [[A((4 * dt + u) * 4, 4) for u in range(4)] for dt in range(16)]
XN = [[V(128 + 56 * u + 4 * ks, 4) for ks in range(14)] for u in range(2)]
GU = [[[V(16 + ((m * 7 + ft) * 2 + u) * 4, 4) for u in range(2)] for ft in range(7)] for m in range(2)]
QT = [[A((2 * dt + u) * 4, 4) for u in range(2)] for dt in range(16)]
FRA = ([A(128 + 4 * i, 4) for i in range(8)] + [A(192 + 4 * i, 4) for i in range(8)])[:OPT["nba"]]
HB = [[A(160 + (u * 4 + kf) * 4, 4) for kf in range(4)] for u in range(2)]
vP = [V(240 + i) for i in range(16)]
vNaddrLo, vNaddrHi = V(4), V(5)
vPaddrLo, vPaddrHi = V(6), V(7)
vDmaU, vDmaP, vDmaN = V(8), V(9), V(10)
vSt = V(11)
ACCD = [[[V(16 + ((b * 4 + nt) * 2 + u) * 4, 4) for u in range(2)] for nt in range(4)] for b in range(2)]
vPk = [V(80 + 4 * i, 4) for i in range(4)]

sX, sK, sV, sWQ, sWO, sU, sW2, sWS = [S(8 + 4 * i, 4) for i in range(8)]
sRet = S(40, 2)
sWave, sHead, sQblk, sM0, sCnt = S(42), S(43), S(44), S(45), S(46)
sKoff, sVoff, sUoff, sPoff, sDoff, sWoff = S(47), S(48), S(49), S(50), S(51), S(52)
sStF, sStS = [S(53), S(54)], [S(55), S(56)]
sTmp = [S(57 + i) for i in range(7)]
sKh = S(80)
sStamp = 82

if OPT["mix"] == 1: MID = [("P", 0), ("P", 1), ("P", 2), ("P", 3), ("P", 4), ("D", 0), ("P", 5), ("D", 1), ("P", 6), ("D", 2), ("D", 3)]
elif OPT["mix"] == 2: MID = [("P", 0), ("P", 1), ("P", 2), ("P", 3), ("D", 0), ("P", 4), ("D", 1), ("P", 5), ("D", 2), ("P", 6), ("D", 3)]
else: MID = [("P", i) for i in range(7)] + [("D", i) for i in range(4)]
STAGES = [("U", i) for i in range(7)] + MID + [("K", 0), ("X", 0), ("X", 1)]
K0 = 18
for j in range(31): STAGES += [("K", j + 1), ("V", j)]
STAGES += [("V", 31)]
V31 = len(STAGES) - 1
W0 = len(STAGES)
STAGES += [("W", i) for i in range(7)]
NST = len(STAGES)
def stK(j): return K0 if j == 0 else 19 + 2 * j
def stV(j): return V31 if j == 31 else 22 + 2 * j
assert STAGES[stK(5)] == ("K", 5) and STAGES[stV(5)] == ("V", 5) and stK(1) % 4 == 1 and V31 % 4 == 3
NEXT_OVERRIDE = {21: 23, 23: 22, 22: 24}

def has_dma(st): return st < NST and STAGES[st][0] != "X"
def next_dma_stage(st):
    if st in NEXT_OVERRIDE: return NEXT_OVERRIDE[st]
    st += 1
    while st < NST and not has_dma(st): st += 1
    return st
def m0_init(st):
    return [salu("s_add_u32", "m0", sM0, RB[st % 4])] if st < NST else []

def dma_ops(st):
    ty, i = STAGES[st]
    groups = []
    nxt = m0_init(next_dma_stage(st))
    for ii in range(8):
        if ty in "KV":
            srd, soff = (sK, sKoff) if ty == "K" else (sV, sVoff)
            g = [dma(vDma, srd, soff, off=ii * 512, tag=st, flags=["", "nt", "sc1"][OPT["kvflag"]])]
            g += [salu("s_add_u32", "m0", "m0", BSTR - 512)] if ii < 7 else nxt + [salu("s_add_u32", soff, soff, 32768)]
        else:
            if ty == "U":   srd, soff, vo, rowb = sU, sUoff, vDmaU, 3584
            elif ty == "P": srd, soff, vo, rowb = sWQ, sPoff, vDmaP, 8192
            elif ty == "D": srd, soff, vo, rowb = sW2, sDoff, vDmaN, 896
            else:           srd, soff, vo, rowb = sWO, sWoff, vDmaN, 896
            g = [dma(vo, srd, soff, tag=st, flags=["", "nt", "sc1"][OPT["wflag"]])]
            if ty in "UP":
                step = [1, 1, 1, 5, 1, 1, 1, 64 - 11][ii] * rowb
            elif ty == "D":
                step = rowb if ii < 7 else 256 - 7 * rowb
            else:
                step = rowb if ii < 7 else 128 - 7 * rowb
            g += [salu("s_add_u32", "m0", "m0", BSTR)] if ii < 7 else nxt
            g.append(salu("s_add_u32", soff, soff, step & 0xffffffff))
        groups.append(g)
    return groups

def dma_items(st, lo, hi):
    if not has_dma(st): return []
    items = []
    for ii, g in enumerate(dma_ops(st)):
        r = lo + (hi - lo) * ii // 8
        items.append(Item(g[0], rel=r, dl=min(r + 3, hi - 1)))
        for o in g[1:]: items.append(Item(o, rel=min(r + 1, hi - 1), dl=min(r + 5, hi - 1)))
    return items

S8 = [83, 84, 85, 86, 87, 88, 89, 90, 91, 72, 73, 74, 75, 76, 77, 78, 79, 81]
BARSTAMP = {0: 1, 3: 2, 7: 3, 10: 4, 14: 5, 16: 6}
def bar_ops(st):
    r = [wait_vm_tag([st] + {W0 + 6: ["stA"], stK(2): ["stF"]}.get(st, []), lgkm0=True), barrier()]
    if st in BARSTAMP: r += stamp(BARSTAMP[st], 5)
    if st >= W0: r += stamp(st - W0 + 1, 9) if st < W0 + 6 else []
    if OPT["stamps"] == 8 and st < 18:
        r += [raw("s_memtime s[100:101]", "smem"), raw("s_waitcnt lgkmcnt(0)", "wait"), raw(f"s_mov_b32 s{S8[st]}, s100")]
    return r

class Frag:
    def __init__(self, st, buf, reads, mfmas, first=False):
        self.st, self.buf, self.reads, self.mfmas, self.first = st, buf, reads, mfmas, first
        self.chain = None

def tr2(buf, lo, hi, addr, o0, o1):
    a, base = (lo, 0) if addr < HALF else (hi, HALF)
    return [dsr("ds_read_b64_tr_b16", buf[0:2], a, addr - base + o0), dsr("ds_read_b64_tr_b16", buf[2:4], a, addr - base + o1)]

_fa = [0]
def nextA():
    b = FRA[_fa[0] % len(FRA)]; _fa[0] += 1; return b

def frags_stage(st):
    ty, i = STAGES[st]
    out = []
    ch = OPT["chain"]
    if ty in "UP":
        tiles = [(ft, m) for ft in range(7) for m in range(2)] if ty == "U" else list(range(16))
        order = [(t, sl) for t in tiles for sl in range(2)] if ch else [(t, sl) for sl in range(2) for t in tiles]
        for t, sl in order:
            ks = 2 * i + sl
            b = nextA()
            if ty == "U":
                ft, m = t
                rd = tr2(b, vNaddrLo, vNaddrHi, RB[st % 4] + sl * SLOT + m * 8 * BSTR + ft * 32, 0, 256); acc = GU[m][ft]
            else:
                rd = tr2(b, vNaddrLo, vNaddrHi, RB[st % 4] + sl * SLOT + t * 32, 0, 8 * BSTR); acc = QT[t]
            out.append(Frag(st, b, rd, [mfma(acc[u], b, XN[u][ks], 0 if ks == 0 else acc[u]) for u in range(2)]))
            out[-1].key = (ty, ks)
            if ch: out[-1].chain = (st, t)
    else:
        cd = OPT["chaind"] if ch else 1
        for sl in range(2):
            grp = 2 * i + sl
            if grp > 6: continue
            acc = ACCD[grp & 1]
            for k0 in range(0, 4, cd):
                for nt in range(4):
                    for kf in range(k0, k0 + cd):
                        b = nextA()
                        base = RB[st % 4] + sl * SLOT + 2 * kf * 128 + nt * 32
                        out.append(Frag(st, b, tr2(b, vPaddrLo, vPaddrHi, base, 0, 128),
                                        [mfma(acc[nt][u], b, HB[u][kf], 0 if kf == 0 else acc[nt][u]) for u in range(2)]))
                        out[-1].key = ("D", grp); out[-1].chain = (grp, k0, nt)
    out[0].first = True
    return out

def frags_K(j, Sn, cinit, kaddr=None, f0=0):
    st = stK(j)
    out = []
    for f in range(16):
        kt, ks = f >> 3, f & 7
        b = FRV[BSEQ[f0 + f]]
        rb = RB[st % 4]
        a, base = (vKaddr, HALF) if kaddr is None else (kaddr, 0)
        rd = [dsr("ds_read_b128", b, a, rb - base + kt * 512 + ks * 64)]
        mf = []
        for u in range(4):
            d = Sn[u][4 * kt:4 * kt + 4]
            mf.append(mfma(d, b, Q[u][ks], cinit[u] if ks == 0 else d))
        if OPT["chain"] and OPT["bous"] and (f >> 1) & 1: mf.reverse()
        out.append(Frag(st, b, rd, mf, first=(f == 0)))
        if OPT["chain"]: out[-1].chain = ("K", f >> 1)
    return out

def frags_V(j, Sc, zero=False, vaddr=None, f0=16):
    st = stV(j)
    out = []
    for f in range(16):
        b = FRV[BSEQ[f0 + f]]
        rb = RB[st % 4]
        a, base = (vVaddr, 0) if vaddr is None else (vaddr, HALF)
        rd = [dsr("ds_read_b64_tr_b16", b[2 * jj:2 * jj + 2], a, rb - base + jj * 512 + f * 32) for jj in range(2)]
        out.append(Frag(st, b, rd, [mfma(O[f][u], b, Sc[u][0:4], 0 if zero else O[f][u]) for u in range(4)], first=(f == 0)))
    return out

FREEQ = [V(128 + (dt * 2 + u) * 4, 4) for dt in range(1, 16, 2) for u in range(2)]
OB = [[V(128 + (2 * ks * 2 + u) * 4, 4) for ks in range(8)] for u in range(2)]
FRW = ([V(96 + 4 * i, 4) for i in range(8)] + FREEQ[:8])[:OPT["nba"]]
def frags_W():
    out = []
    n = 0
    cd = OPT["chaind"] if OPT["chain"] else 1
    for grp in range(7):
        st = W0 + grp
        acc = ACCD[grp & 1]
        for k0 in range(0, 8, cd):
            for nt in range(4):
                for ks in range(k0, k0 + cd):
                    sl, kq = ks >> 2, ks & 3
                    b = FRW[n % len(FRW)]; n += 1
                    base = RB[st % 4] + sl * SLOT + 2 * kq * 128 + nt * 32
                    out.append(Frag(st, b, tr2(b, vPaddrLo, vPaddrHi, base, 0, 128),
                                    [mfma(acc[nt][u], b, OB[u][ks], 0 if ks == 0 else acc[nt][u]) for u in range(2)],
                                    first=(ks == 0 and nt == 0)))
                    out[-1].chain = (grp, k0, nt)
    return out

def section(frags, npre, nxt, extra=None, post_extra=None, dma_first=None, verbose=False, no_dma_after=None):
    bb = []; first = [None] * len(frags); last = [None] * len(frags)
    i = 0
    while i < len(frags):
        k = i + 1
        while k < len(frags) and frags[i].chain is not None and frags[k].chain == frags[i].chain: k += 1
        for u in range(len(frags[i].mfmas)):
            for g_ in range(i, k):
                if first[g_] is None: first[g_] = len(bb)
                last[g_] = len(bb); bb.append(frags[g_].mfmas[u])
        i = k
    n = len(bb)
    lastuse = {}
    rel_of = {}
    seq = list(frags) + list(nxt)
    for i, f in enumerate(seq):
        key = str(f.buf)
        rel_of[i] = lastuse.get(key, -1)
        if i < len(frags): lastuse[key] = last[i]
        else: lastuse[key] = n - 1
    rd = []; bar = {}
    prev = -1
    for i in range(npre, len(seq)):
        f = seq[i]
        rel = max(rel_of[i], prev)
        if f.first:
            rel = min(n - 1, max(rel, prev + OPT["bardelay"]))
            rd.append(Item(bar_ops(f.st), rel=rel, dl=rel)); bar[f.st] = rel
        for o in f.reads: rd.append(Item(o, rel=min(rel, n - 1), dl=min(n - 1, rel + 2)))
        prev = rel
    post = {}
    for i in range(1, len(frags)): post[first[i] - 1] = [wait_regs(frags[i].buf.regs())]
    if nxt: post[n - 1] = [wait_regs(nxt[0].buf.regs())]
    dm = []
    bars = sorted(bar.items(), key=lambda x: x[1])
    if dma_first is not None:
        hi = max((bars[0][1] if bars else n) - 1, 8)
        lst = dma_first if isinstance(dma_first, list) else [dma_first]
        for k, s_ in enumerate(lst): dm += dma_items(s_, hi * k // len(lst), hi * (k + 1) // len(lst))
    carry = None
    for k, (s_, g) in enumerate(bars):
        if k + 1 < len(bars):
            if no_dma_after is None or s_ + 3 <= no_dma_after: dm += dma_items(s_ + 3, g + 1, bars[k + 1][1] - 1)
        else: carry = s_ + 3
    class Info: pass
    info = Info(); info.first, info.last, info.bar, info.n = first, last, bar, n
    streams = dict(rd=rd, dma=dm)
    if extra: streams.update(extra(info))
    if post_extra:
        for g, ops in post_extra(info).items():
            post[g] = post.get(g, []) + ops
    return schedule2(bb, streams, OPT["cap"], post=post, verbose=verbose), carry

def xreduce(op, x, t):
    return [valu("v_mov_b32", t, x), perm16(x, t), valu(op, x, x, t), valu("v_mov_b32", t, x), perm32(x, t), valu(op, x, x, t)]

def round_bf16(x):
    return [valu("v_cvt_pk_bf16_f32", x, x, x), valu("v_and_b32", x, 0xffff0000, x)]

def stamp(k, which=1):
    if OPT["stamps"] != which: return []
    return [raw(f"{TIMER} s[100:101]", "smem"), raw("s_waitcnt lgkmcnt(0)", "wait"), raw(f"s_mov_b32 s{sStamp + k}, s100")]

sDBG = S(64, 4)
sOUT = S(68, 4)
sPF = S(92, 4)
sPFoff = S(96)
sCW = S(97)
vPFd = V(13)
vPFa = V(9)
def pfload(voff, srd_, soff, off=0):
    o = bload(vPFd, voff, srd_, soff, off=off, tag="pf", flags=["", "nt", "sc1"][OPT["pfflag"]]); o.wr = []
    return o
PFFLAG = ["", "nt", "sc1"][OPT["pfflag"]]
def setup():
    o = []; e = o.append
    e(raw("s_cmp_ge_u32 s2, 256")); e(raw("s_cbranch_scc1 L_done", "branch"))
    e(raw("s_load_dwordx16 s[64:79], s[0:1], 0", "smem"))
    e(raw("s_load_dwordx2 s[4:5], s[0:1], 64", "smem"))
    e(raw("s_load_dwordx2 s[6:7], s[0:1], 88", "smem"))
    if OPT["stamps"]: e(raw(f"{TIMER} s[100:101]", "smem"))
    if OPT["delay"]:
        e(salu("s_mul_i32", sTmp[0], S(2), 37)); e(salu("s_and_b32", sTmp[0], sTmp[0], 15)); e(salu("s_mul_i32", sTmp[0], sTmp[0], OPT["delay"]))
        e(label("L_dly")); e(salu("s_cmp_eq_u32", sTmp[0], 0)); e(raw("s_cbranch_scc1 L_dlyd", "branch")); e(raw("s_sleep 64", "salu"))
        e(salu("s_sub_u32", sTmp[0], sTmp[0], 1)); e(raw("s_branch L_dly", "branch")); e(label("L_dlyd"))
    if OPT["pfcode"]:
        e(raw("s_getpc_b64 s[98:99]\nL_pc:", "salu", wr=["s98", "s99"]))
        e(salu("s_bfe_u32", sTmp[0], S(2), 0x30003))
        e(raw(f"s_mul_i32 {sTmp[0]}, {sTmp[0]}, (L_end-L_pc-16384)/7", "salu", rd=sTmp[0].regs(), wr=sTmp[0].regs()))
        e(salu("s_and_b32", sTmp[0], sTmp[0], 0xffffffc0))
        e(valu("v_and_b32", vP[1], 0xfe if OPT["pf128"] else 0xff, V(0)))
        e(valu("v_lshlrev_b32", vP[1], 6, vP[1])); e(valu("v_add_u32", vP[1], sTmp[0], vP[1]))
        e(Op(f"global_load_dword {vPFd}, {vP[1]}, s[98:99]", "vmem", rd=vP[1].regs() + ["s98", "s99"], tag="pf"))
    e(valu("v_lshrrev_b32", vP[0], 6, V(0)))
    e(valu("v_and_b32", vLane, 63, V(0)))
    e(valu("v_readfirstlane_b32", sWave, vP[0]))
    if OPT["hmap"] == 2:
        e(salu("s_and_b32", sHead, S(2), 7)); e(salu("s_lshl_b32", sHead, sHead, 1))
        e(salu("s_bfe_u32", sTmp[0], S(2), 0x10003)); e(salu("s_add_u32", sHead, sHead, sTmp[0]))
        e(salu("s_lshr_b32", sQblk, S(2), 4))
    else:
        e(salu("s_bfe_u32", sHead, S(2), 0x20001)); e(salu("s_lshl_b32", sHead, sHead, 2))
        e(salu("s_bfe_u32", sTmp[0], S(2), 0x20003)); e(salu("s_add_u32", sHead, sHead, sTmp[0]))
        e(salu("s_lshr_b32", sQblk, S(2), 5)); e(salu("s_lshl_b32", sQblk, sQblk, 1))
        e(salu("s_and_b32", sTmp[0], S(2), 1)); e(salu("s_add_u32", sQblk, sQblk, sTmp[0]))
    g, q16 = vP[1], vP[2]
    e(valu("v_lshrrev_b32", g, 4, vLane)); e(valu("v_and_b32", q16, 15, vLane))
    sHi, sLo = sTmp[1], sTmp[2]
    e(salu("s_lshr_b32", sHi, sWave, 1)); e(salu("s_and_b32", sLo, sWave, 1))
    e(salu("s_lshl_b32", sTmp[0], sQblk, 7)); e(salu("s_lshl_b32", sTmp[3], sWave, 5)); e(salu("s_add_u32", sTmp[0], sTmp[0], sTmp[3]))
    e(salu("s_mul_i32", sTmp[6], sTmp[0], 896))
    e(salu("s_mul_i32", sTmp[5], sTmp[3], XSTR)); e(salu("s_add_u32", sTmp[5], sTmp[5], XB))
    e(valu("v_mul_u32_u24", vP[3], XSTR, q16)); e(valu("v_lshl_add_u32", vP[3], g, 4, vP[3])); e(valu("v_add_u32", vP[3], sTmp[5], vP[3]))
    e(valu("v_and_b32", vP[4], 1, g)); e(valu("v_lshrrev_b32", vP[5], 1, g))
    e(valu("v_lshlrev_b32", vP[6], 2, vP[4])); e(valu("v_lshl_add_u32", vP[6], vP[5], 4, vP[6]))
    e(valu("v_mul_u32_u24", vDmaU, 3584, vP[6])); e(valu("v_lshl_add_u32", vDmaU, q16, 4, vDmaU))
    e(salu("s_mul_i32", sM0, sHi, SLOT)); e(salu("s_mul_i32", sTmp[0], sLo, 8 * BSTR)); e(salu("s_add_u32", sM0, sM0, sTmp[0]))
    e(salu("s_mul_i32", sUoff, sHi, 32 * 3584)); e(salu("s_mul_i32", sTmp[0], sHead, 224)); e(salu("s_add_u32", sUoff, sUoff, sTmp[0]))
    e(salu("s_lshl_b32", sKoff, sHi, 14)); e(salu("s_lshl_b32", sTmp[0], sLo, 12)); e(salu("s_add_u32", sKoff, sKoff, sTmp[0]))
    e(salu("s_mov_b32", sVoff, sKoff))
    e(salu("s_lshl_b32", sPoff, sHi, 18)); e(salu("s_lshl_b32", sTmp[0], sLo, 15)); e(salu("s_add_u32", sPoff, sPoff, sTmp[0]))
    e(salu("s_lshl_b32", sTmp[0], sHead, 9)); e(salu("s_add_u32", sPoff, sPoff, sTmp[0]))
    e(salu("s_mul_i32", sDoff, sHead, 112 * 896)); e(salu("s_mul_i32", sTmp[0], sLo, 8 * 896)); e(salu("s_add_u32", sDoff, sDoff, sTmp[0]))
    e(salu("s_lshl_b32", sTmp[3], sHi, 7)); e(salu("s_add_u32", sDoff, sDoff, sTmp[3]))
    e(salu("s_mul_i32", sWoff, sHead, 256 * 896)); e(salu("s_add_u32", sWoff, sWoff, sTmp[0]))
    e(salu("s_mul_i32", sTmp[3], sHi, 128 * 896)); e(salu("s_add_u32", sWoff, sWoff, sTmp[3]))
    e(salu("s_mul_i32", sKh, sLo, SLOT))
    e(salu("s_lshl_b32", sTmp[0], sQblk, 4)); e(salu("s_add_u32", sTmp[0], sTmp[0], sHead)); e(salu("s_mul_i32", sTmp[0], sTmp[0], PBLK))
    e(salu("s_lshl_b32", sTmp[3], sWave, 14)); e(salu("s_add_u32", sStF[0], sTmp[0], sTmp[3]))
    e(salu("s_mul_i32", sTmp[3], sWave, 12288)); e(salu("s_add_u32", sStF[1], sTmp[0], sTmp[3])); e(salu("s_add_u32", sStF[1], sStF[1], 65536))
    e(salu("s_add_u32", sStS[0], sStF[0], PART)); e(salu("s_add_u32", sStS[1], sStF[1], PART))
    e(valu("v_lshrrev_b32", vP[6], 5, vLane)); e(valu("v_and_b32", vP[7], 31, vLane))
    e(valu("v_lshlrev_b32", vDma, 13, vP[6])); e(valu("v_lshl_add_u32", vDma, vP[7], 4, vDma))
    e(valu("v_lshlrev_b32", vDmaP, 17, vP[6])); e(valu("v_lshl_add_u32", vDmaP, vP[7], 4, vDmaP))
    l8, l7 = vP[8], vP[9]
    e(valu("v_lshrrev_b32", l8, 3, vLane)); e(valu("v_and_b32", l7, 7, vLane))
    e(valu("v_mul_u32_u24", vDmaN, 16 * 896, l8)); e(valu("v_lshl_add_u32", vDmaN, l7, 4, vDmaN))
    e(valu("v_lshlrev_b32", vSt, 4, vLane))
    e(valu("v_bfe_u32", vP[6], vLane, 2, 2)); e(valu("v_lshl_add_u32", vP[6], vP[4], 2, vP[6]))
    e(valu("v_and_b32", vP[7], 3, vLane))
    e(valu("v_mul_u32_u24", vNaddrLo, BSTR, vP[6])); e(valu("v_lshl_add_u32", vNaddrLo, vP[5], 9, vNaddrLo))
    e(valu("v_lshl_add_u32", vNaddrLo, vP[7], 3, vNaddrLo)); e(valu("v_add_u32", vNaddrHi, HALF, vNaddrLo))
    e(valu("v_lshrrev_b32", vP[6], 2, vLane)); e(valu("v_mul_u32_u24", vPaddrLo, BSTR, vP[6]))
    e(valu("v_lshl_add_u32", vPaddrLo, vP[7], 3, vPaddrLo)); e(valu("v_add_u32", vPaddrHi, HALF, vPaddrLo))
    e(valu("v_add_u32", vVaddr, sKh, vPaddrLo))
    e(valu("v_mul_u32_u24", vKaddr, BSTR, q16)); e(valu("v_lshl_add_u32", vKaddr, g, 4, vKaddr))
    e(valu("v_add_u32", vKaddr, sKh, vKaddr)); e(valu("v_add_u32", vKaddr, HALF, vKaddr))
    e(raw("s_waitcnt lgkmcnt(0)", "wait"))
    if OPT["stamps"]: e(raw(f"s_mov_b32 s{sStamp}, s100"))
    o += stamp(1, 2) + stamp(1, 4)
    def srd(d, lo, size):
        e(salu("s_mov_b32", d[0], S(lo))); e(salu("s_mov_b32", d[1], S(lo + 1)))
        e(salu("s_mov_b32", d[2], size)); e(salu("s_mov_b32", d[3], 0x20000))
    srd(sX, 64, 2048 * 896)
    e(salu("s_cmp_eq_u32", sLo, 0))
    e(salu("s_cselect_b32", sU[0], S(76), S(78))); e(salu("s_cselect_b32", sU[1], S(77), S(79)))
    e(salu("s_cselect_b32", sPF[0], S(66), S(68))); e(salu("s_cselect_b32", sPF[1], S(67), S(69)))
    e(salu("s_mov_b32", sU[2], 448 * 3584)); e(salu("s_mov_b32", sU[3], 0x20000))
    def pf(voff, srd_, soff, off=0): e(pfload(voff, srd_, soff, off))
    if OPT["sweep"]:
        srd(sWQ, 70, 448 * 8192)
        e(valu("v_lshrrev_b32", vP[10], 1, vLane)); e(valu("v_lshlrev_b32", vP[10], 7, vP[10]))
        if OPT["sweep"] & 1:
            e(salu("s_lshl_b32", sTmp[0], S(2), 1)); e(salu("s_add_u32", sTmp[0], sTmp[0], sHi)); e(salu("s_mul_i32", sTmp[0], sTmp[0], 3136))
            e(salu("s_and_b32", sTmp[0], sTmp[0], 0xffffff80))
            pf(vP[10], sU, sTmp[0])
        if OPT["sweep"] & 2:
            e(salu("s_lshl_b32", sTmp[0], S(2), 2)); e(salu("s_add_u32", sTmp[0], sTmp[0], sWave)); e(salu("s_mul_i32", sTmp[0], sTmp[0], 3584))
            pf(vP[10], sWQ, sTmp[0])
    if OPT["pf"]:
      if OPT['pf128']:
        e(valu("v_and_b32", vP[10], 3, vLane)); e(valu("v_min_u32", vP[10], 2, vP[10])); e(valu("v_lshrrev_b32", vP[11], 2, vLane))
        e(valu("v_mul_u32_u24", vP[11], 3584, vP[11])); e(valu("v_lshl_add_u32", vP[10], vP[10], 7, vP[11]))
        e(salu("s_mul_i32", sTmp[0], sQblk, 28)); e(salu("s_mul_i32", sTmp[3], sHi, 14)); e(salu("s_add_u32", sTmp[0], sTmp[0], sTmp[3]))
        e(salu("s_mul_i32", sTmp[0], sTmp[0], 3584)); e(salu("s_mul_i32", sTmp[3], sHead, 224)); e(salu("s_add_u32", sTmp[0], sTmp[0], sTmp[3]))
        e(salu("s_and_b32", sTmp[0], sTmp[0], 0xffffff80))
        pf(vP[10], sU, sTmp[0])
      else:
        e(valu("v_min_u32", vP[10], 4, l7)); e(valu("v_mul_u32_u24", vP[11], 3584, l8)); e(valu("v_lshl_add_u32", vP[10], vP[10], 6, vP[11]))
        e(salu("s_mul_i32", sTmp[0], sQblk, 28)); e(salu("s_mul_i32", sTmp[3], sHi, 14)); e(salu("s_add_u32", sTmp[0], sTmp[0], sTmp[3]))
        e(salu("s_mul_i32", sTmp[0], sTmp[0], 3584)); e(salu("s_mul_i32", sTmp[3], sHead, 224)); e(salu("s_add_u32", sTmp[0], sTmp[0], sTmp[3]))
        e(salu("s_and_b32", sTmp[0], sTmp[0], 0xffffffc0)); e(salu("s_add_u32", sTmp[3], sTmp[0], 8 * 3584))
        pf(vP[10], sU, sTmp[0]); pf(vP[10], sU, sTmp[3])
    e(salu("s_lshl_b32", sTmp[0], sHead, 20))
    for d, lo in ((sK, 66), (sV, 68)):
        e(salu("s_add_u32", d[0], S(lo), sTmp[0])); e(salu("s_addc_u32", d[1], S(lo + 1), 0))
        e(salu("s_mov_b32", d[2], 1 << 20)); e(salu("s_mov_b32", d[3], 0x20000))
    e(salu("s_add_u32", sPF[0], sPF[0], sTmp[0])); e(salu("s_addc_u32", sPF[1], sPF[1], 0))
    e(salu("s_mov_b32", sPF[2], 1 << 20)); e(salu("s_mov_b32", sPF[3], 0x20000))
    srd(sWQ, 70, 448 * 8192); srd(sWO, 72, 4096 * 896); srd(sW2, 4, 1792 * 896); srd(sWS, 6, 2 * PART + (2 << 20))
    if OPT["pf"] and OPT["wqearly"]:
        e(valu("v_lshrrev_b32", vP[10], 3, vLane)); e(valu("v_and_b32", vP[11], 6 if OPT["pf128"] else 7, vLane))
        e(valu("v_lshlrev_b32", vP[10], 13, vP[10])); e(valu("v_lshl_add_u32", vP[10], vP[11], 6, vP[10]))
        e(salu("s_mul_i32", sTmp[0], sQblk, 28)); e(salu("s_mul_i32", sTmp[3], sWave, 7)); e(salu("s_add_u32", sTmp[0], sTmp[0], sTmp[3]))
        e(salu("s_lshl_b32", sTmp[0], sTmp[0], 13)); e(salu("s_lshl_b32", sTmp[3], sHead, 9)); e(salu("s_add_u32", sTmp[0], sTmp[0], sTmp[3]))
        pf(vP[10], sWQ, sTmp[0])
    e(salu("s_lshl_b32", sCW, sQblk, 4)); e(salu("s_add_u32", sCW, sCW, sHead)); e(salu("s_lshl_b32", sCW, sCW, 8)); e(salu("s_add_u32", sCW, sCW, CNT))
    e(valu("v_mov_b32", V(16), 0)); e(valu("v_mov_b32", V(17), 0))
    e(raw("s_mov_b64 exec, 1", "salu")); e(bstore(V(16, 2), V(16), sWS, sCW, tag="stF", flags="sc1")); e(raw("s_mov_b64 exec, -1", "salu"))
    if OPT["touch"]:
        e(valu("v_mov_b32", vP[10], 0))
        for srd_, so in ((sWQ, sPoff), (sK, 0), (sV, 0), (sW2, sDoff), (sWO, sWoff), (sWS, sStF[0]), (sWS, sStS[0])): pf(vP[10], srd_, so)
    o += stamp(2, 4)
    e(valu("v_mov_b32", vP[11], vP[3]))
    e(salu("s_mov_b32", "m0", sTmp[5]))
    xg = []
    for r in range(32):
        g_ = [dma(vSt, sX, sTmp[6], off=(r % 4) * 896, tag="x%d" % (r // 16))]
        if r % 4 < 3: g_.append(salu("s_add_u32", "m0", "m0", XSTR - 896))
        else: g_ += [salu("s_add_u32", "m0", "m0", XSTR + 3 * 896), salu("s_add_u32", sTmp[6], sTmp[6], 4 * 896)]
        xg.append(g_)
    EXM, EXF = raw("s_mov_b32 exec_hi, 0x00ffffff", "salu"), raw("s_mov_b32 exec_hi, -1", "salu")
    e(EXM)
    for g_ in xg[:OPT["xfirst"]]: o += g_
    e(EXF)
    mid0 = [[EXM] + g_ + [EXF] for g_ in xg[OPT["xfirst"]:]]
    mid0[-1] += m0_init(0)
    mid1 = dma_ops(0)
    o += stamp(2, 2) + stamp(6, 4)
    late = []
    for st in (1,):
        for grp in dma_ops(st): late += grp
    e(raw("s_load_dwordx4 s[72:75], s[0:1], 72", "smem")); e(raw("s_waitcnt lgkmcnt(0)", "wait"))
    srd(sOUT, 72, 2048 * 896); srd(sDBG, 74, 256)
    if OPT["touch"]:
        pf(vP[10], sDBG, 0); pf(vP[10], sOUT, sTmp[6])
    pfl = []
    e = pfl.append
    t0, t1 = sTmp[5], sTmp[6]
    va, vb = V(14), V(15)
    if OPT["pf"]:
        R = 448 // OPT["wqp"]; L = R // 16; sh = {28: 1, 14: 2, 7: 3}[L]
        e(salu("s_lshl_b32", t0, sQblk, 2)); e(salu("s_add_u32", t0, t0, sWave)); e(salu("s_mul_i32", t0, t0, L))
        e(valu("v_lshrrev_b32", va, sh, vLane)); e(valu("v_min_u32", va, L - 1, va)); e(valu("v_add_u32", va, t0, va))
        e(valu("v_and_b32", vb, 3, va)); e(valu("v_lshrrev_b32", va, 2, va)); e(valu("v_lshlrev_b32", va, 13, va))
        e(valu("v_lshl_add_u32", va, vb, 7, va)); e(salu("s_lshl_b32", t0, sHead, 9))
        for k in range(OPT["wqp"]):
            pf(va, sWQ, t0)
            if k + 1 < OPT["wqp"]: e(salu("s_add_u32", t0, t0, R * 8192))
        if OPT["pf128"]: e(valu("v_lshrrev_b32", va, 2, vLane)); e(valu("v_lshlrev_b32", va, 7, va))
        else: e(valu("v_lshlrev_b32", va, 5, vLane))
        e(salu("s_lshl_b32", t0, sQblk, 2)); e(salu("s_add_u32", t0, t0, sWave)); e(salu("s_mul_i32", t0, t0, 25 * 64))
        e(salu("s_mul_i32", t1, sHead, 112 * 896)); e(salu("s_add_u32", t0, t0, t1))
        pf(va, sW2, t0)
        e(salu("s_lshr_b32", t0, sWave, 1))
        e(salu("s_lshl_b32", sPFoff, sQblk, 1)); e(salu("s_add_u32", sPFoff, sPFoff, t0)); e(salu("s_lshl_b32", sPFoff, sPFoff, 11))
        for k in range(OPT["pfdist"]):
            pf(va, sPF, sPFoff); e(salu("s_add_u32", sPFoff, sPFoff, 65536))
    return o, (late, mid0, mid1), pfl

vR = [vP[12], vP[13]]; vNB = [vP[14], vP[15]]
def sprinkle(ops, groups):
    out = []; n = len(groups); step = len(ops) // (n + 1) if n else 0
    k = 0
    for i, o_ in enumerate(ops):
        if k < n and i == step * k: out += groups[k]; k += 1
        out.append(o_)
    for g_ in groups[k:]: out += g_
    return out

def ln_stats(x):
    late, mid0, mid1 = x
    o = []
    ones = sTmp[4]
    o.append(salu("s_mov_b32", ones, 0x3f803f80))
    for i in range(8): o.append(valu("v_mov_b32", vP[i], 0))
    for u in range(2):
        o.append(wait_vm_tag(["x%d" % u]))
        if u == 1: o += stamp(7, 4)
        for ks in range(14): o.append(dsr("ds_read_b128", XN[u][ks], vP[11], u * 16 * XSTR + ks * 64))
        w = []; e = w.append
        a = [vP[4 * u + i] for i in range(4)]
        for ks in range(14):
            for i in range(4):
                x = XN[u][ks][i]
                e(valu("v_dot2c_f32_bf16", a[i & 1], ones, x)); e(valu("v_dot2c_f32_bf16", a[2 + (i & 1)], x, x))
        if u == 1:
            o += sprinkle(w, mid1) + [wait_lgkm0(), barrier()] + late
            w = []; e = w.append
        t = vP[8 + u]
        e(valu("v_add_f32", a[0], a[0], a[1])); e(valu("v_add_f32", a[2], a[2], a[3]))
        w += xreduce("v_add_f32", a[0], t) + xreduce("v_add_f32", a[2], t)
        mean, var = a[0], a[2]
        e(valu("v_mul_f32", mean, 1.0 / 448, mean)); e(valu("v_mul_f32", var, 1.0 / 448, var))
        e(valu("v_fma_f32", var, f"-{mean}", mean, var)); e(valu("v_max_f32", var, 0, var))
        w += round_bf16(var)
        e(valu("v_add_f32", var, 1e-5, var)); w += round_bf16(var)
        e(valu("v_sqrt_f32", var, var)); w += round_bf16(var)
        e(valu("v_rcp_f32", vR[u], var))
        w += round_bf16(mean)
        e(valu("v_mul_f32", vNB[u], mean, vR[u])); e(valu("v_sub_f32", vNB[u], 0, vNB[u]))
        for ks in range(14 if u == 0 else 2): w += ln_apply(ks, u, True)
        o += sprinkle(w, mid0) if u == 0 else w
    return o

def ln_apply(ks, u, burst=False):
    o = []; e = o.append
    if burst:
        t = V(16 + 8 * (ks & 1), 8)
        sel = "op_sel:[0,%d,%d] op_sel_hi:[1,%d,%d]" % (u, u, u, u)
        for i in range(4):
            e(valu("v_lshlrev_b32", t[2 * i], 16, XN[u][ks][i])); e(valu("v_and_b32", t[2 * i + 1], 0xffff0000, XN[u][ks][i]))
        for i in range(4): e(valu("v_pk_fma_f32", t[2 * i:2 * i + 2], t[2 * i:2 * i + 2], V(252, 2), V(254, 2), mods=sel))
        for i in range(4): e(valu("v_cvt_pk_bf16_f32", XN[u][ks][i], t[2 * i], t[2 * i + 1]))
        return o
    for i in range(4):
        x = XN[u][ks][i]
        lo, hi = vP[2 * i], vP[2 * i + 1]
        e(valu("v_lshlrev_b32", lo, 16, x)); e(valu("v_and_b32", hi, 0xffff0000, x))
        e(valu("v_fma_f32", lo, lo, vR[u], vNB[u])); e(valu("v_fma_f32", hi, hi, vR[u], vNB[u]))
        e(valu("v_cvt_pk_bf16_f32", x, lo, hi))
    return o

def silu_ops():
    o = []; e = o.append
    for ft in range(7):
        for u in range(2):
            g, up = GU[0][ft][u], GU[1][ft][u]
            t = [vP[4 * (u & 1) + i] for i in range(4)]
            for r in range(4): e(valu("v_mul_f32", t[r], -LOG2E, g[r]))
            for r in range(4): e(valu("v_exp_f32", t[r], t[r]))
            for r in range(4): e(valu("v_mul_f32", g[r], g[r], up[r]))
            for r in range(4): e(valu("v_add_f32", t[r], 1.0, t[r]))
            for r in range(4): e(valu("v_rcp_f32", t[r], t[r]))
            for r in range(4): e(valu("v_mul_f32", g[r], g[r], t[r]))
            for p in range(2):
                e(valu("v_cvt_pk_bf16_f32", up[p], g[2 * p], g[2 * p + 1]))
            for p in range(2):
                e(valu("v_accvgpr_write_b32", HB[u][ft >> 1][2 * (ft & 1) + p], up[p]))
    for u in range(2):
        for p in range(2): e(valu("v_accvgpr_write_b32", HB[u][3][2 + p], 0))
    return o

vXaddr = vT[3]
def qconv_ops(xbase_own):
    o = []; e = o.append
    for u in range(2):
        for ks in range(8):
            q = Q[u][ks]
            t = [vP[8 * (ks & 1) + i] for i in range(8)]
            for h in range(2):
                for r in range(4): e(valu("v_accvgpr_read_b32", t[4 * h + r], QT[2 * ks + h][u][r]))
            for i in range(8): e(valu("v_mul_f32", t[i], QSCALE, t[i]))
            for p in range(4): e(valu("v_cvt_pk_bf16_f32", q[p], t[2 * p], t[2 * p + 1]))
            e(perm32(q[0], q[2])); e(perm32(q[1], q[3])); e(perm16(q[0], q[2])); e(perm16(q[1], q[3]))
            e(dsw("ds_write_b128", vXaddr, q, (u * 8 + ks) * 1024))
    return o

def piece(acc, grp, u, half, pk, sbase, st):
    cv = []
    for t in range(2):
        a = acc[2 * half + t][u]
        cv += [valu("v_cvt_pk_bf16_f32", pk[2 * t], a[0], a[1]), valu("v_cvt_pk_bf16_f32", pk[2 * t + 1], a[2], a[3])]
    rem = grp * 2 + half
    so = [salu("s_add_u32", st, sbase[0], (u * 8 + rem) * 1024) if rem < 8 else salu("s_add_u32", st, sbase[1], (u * 6 + rem - 8) * 1024),
          bstore(pk, vSt, sWS, st, tag="stF" if sbase is sStF else ("stA" if rem < 8 else "stB"), flags="sc1")]
    return cv, so

def paced_out(avail, reuse, n, sbase, quads, pace):
    cvi, sti, left = [], [], []
    tS = []
    nq = len(quads)
    t = -10**9
    for p in range(28):
        g, u, half = p // 4, (p >> 1) & 1, p & 1
        cv, so = piece(ACCD[g & 1], g, u, half, quads[p % nq], sbase, sTmp[p % 4])
        c0 = min(avail[g], n - 1)
        if p >= nq:
            assert tS[p - nq] is not None, "staging overflow"
            c0 = max(c0, tS[p - nq] + 3)
        c1 = max(c0, min(reuse[g], c0 + 12, n - 1))
        assert c0 <= max(reuse[g], avail[g]), (p, c0, reuse[g])
        cvi += [Item(o, rel=c0, dl=c1) for o in cv]
        t = max(t + pace, c1 + 1)
        if t + 2 < n:
            sti += [Item(so[0], rel=t - 1, dl=t + 1), Item(so[1], rel=t, dl=t + 2)]; tS.append(t + 2)
        else:
            left.append(so); tS.append(None)
    return cvi, sti, left

def items(ops, rel, dl): return [Item(o, rel=rel, dl=dl) for o in ops]

def exp_groups(Sc):
    groups = []
    for u in range(4):
        for hp in range(2):
            r = 4 * hp; x = Sc[u]
            groups.append([valu("v_exp_f32", x[r], x[r]), valu("v_exp_f32", x[r + 1], x[r + 1]), valu("v_exp_f32", x[r + 2], x[r + 2]),
                           valu("v_add_f32", vL[u], vL[u], x[r]), valu("v_add_f32", vL[u], vL[u], x[r + 1]),
                           valu("v_exp_f32", x[r + 3], x[r + 3]),
                           valu("v_cvt_pk_bf16_f32", x[2 * hp], x[r], x[r + 1]),
                           valu("v_add_f32", vL[u], vL[u], x[r + 2]), valu("v_add_f32", vL[u], vL[u], x[r + 3]),
                           valu("v_cvt_pk_bf16_f32", x[2 * hp + 1], x[r + 2], x[r + 3])])
    return groups
NG1 = OPT["split"] // 4
def sm_part(Sc, part, rel, dl):
    g = exp_groups(Sc)
    g = g[:NG1] if part == 0 else g[NG1:]
    return [Item(o, rel=rel, dl=dl) for grp in g for o in grp]

def max_items(Sn, rel0, rel1, dl):
    r0 = [Sn[u][r] for u in range(4) for r in range(4)]
    r1 = [Sn[u][4 + r] for u in range(4) for r in range(4)]
    seq = [(valu("v_max3_f32", vTmax, r0[0], r0[1], r0[2]), rel0)]
    for i in range(3, 15, 2): seq.append((valu("v_max3_f32", vTmax, vTmax, r0[i], r0[i + 1]), rel0))
    seq.append((valu("v_max3_f32", vTmax, vTmax, r0[15], r1[0]), rel1))
    for i in range(1, 15, 2): seq.append((valu("v_max3_f32", vTmax, vTmax, r1[i], r1[i + 1]), rel1))
    seq.append((valu("v_max_f32", vTmax, vTmax, r1[15]), rel1))
    seq.append((valu("v_cmp_lt_f32", "vcc", THR, vTmax), rel1))
    return [Item(o, rel=r, dl=dl) for o, r in seq]

stubs = []
def branch(kind, site, par):
    nm = f"{kind}_{site}"
    if nm not in [s[0] for s in stubs]: stubs.append((nm, f"L_r1_{par}" if kind == "r1" else "L_r2"))
    return [raw(f"s_cbranch_vccnz L_stub_{nm}", "branch", rd=["vcc"]), label(f"L_ret_{nm}")]

def rowmax(x, tm, t2):
    return [valu("v_max3_f32", tm, x[0], x[1], x[2]), valu("v_max3_f32", tm, tm, x[3], x[4]), valu("v_max3_f32", tm, tm, x[5], x[6]),
            valu("v_max_f32", tm, tm, x[7])] + xreduce("v_max_f32", tm, t2)

def rare1(par):
    Sx = SBUF[par]
    ops = [label(f"L_r1_{par}"), nop(7)]
    for u in range(4):
        tm, t2 = vX[0], vX[1]
        ops += rowmax(Sx[u], tm, t2)
        ops.append(valu("v_max_f32", tm, 0, tm))
        for r in range(8): ops.append(valu("v_sub_f32", Sx[u][r], Sx[u][r], tm))
        for r in range(4): ops.append(valu("v_sub_f32", NEGM[u][r], NEGM[u][r], tm))
        ops.append(valu("v_exp_f32", vF[u], f"-{tm}"))
        ops.append(valu("v_mul_f32", vL[u], vL[u], vF[u]))
    return ops + [nop(3), raw(f"s_setpc_b64 {sRet}", "branch", rd=sRet.regs())]

def rare2():
    ops = [label("L_r2"), nop(15)]
    for dt in range(16):
        for u in range(4):
            for i in range(4): ops.append(valu("v_accvgpr_read_b32", vX[i], O[dt][u][i]))
            for i in range(4): ops.append(valu("v_mul_f32", vX[i], vX[i], vF[u]))
            for i in range(4): ops.append(valu("v_accvgpr_write_b32", O[dt][u][i], vX[i]))
    return ops + [nop(3), raw(f"s_setpc_b64 {sRet}", "branch", rd=sRet.regs())]

vV31 = vT[6]
UNR = OPT['unroll']
LOOP_LO = 2
LOOP_HI = 2 + (26 // UNR) * UNR
def iteration(j, carry):
    Sc, Sn = SBUF[j & 1], SBUF[(j + 1) & 1]
    ops = [marker(("iter", j))]
    site = f"{(j - LOOP_LO) % UNR}" if LOOP_LO <= j < LOOP_HI else f"p{j}"
    if j > 0: ops += branch("r2", site, 0)
    brk = OPT["brk"]
    fr = frags_K(j + 1, Sn, NEGM) + frags_V(j, Sc, zero=(j == 0))
    nxt = frags_K(j + 2, Sc, NEGM)[:NPRE] if j < 30 else frags_V(31, Sn, vaddr=vV31, f0=0)[:NPRE]
    def extra(info):
        pfi = []
        if OPT["pf"] and j % 2 == 0 and j < 28:
            pfi = [Item(pfload(vPFa, sPF, sPFoff), rel=56, dl=66), Item(salu("s_add_u32", sPFoff, sPFoff, 65536), rel=57, dl=70)]
        if j == 1:
            pfi = [Item(signal(offF, V(10), V(11)), rel=1, dl=2)]
        if j == 30:
            pfi = [Item(salu("s_lshl_b32", sTmp[0], sQblk, 4), rel=10, dl=40), Item(valu("v_and_b32", V(10), 3 if OPT["fbyte"] else 0, vLane), rel=12, dl=50),
                   Item(valu("v_lshlrev_b32", V(10), 2, V(10)), rel=12, dl=50),
                   Item(bload(V(11), V(10), sDBG, sTmp[0], flags="sc1", tag="pollF"), rel=56, dl=66)]
        if OPT["pf"] and j == 28:
            pfi = [Item(salu("s_lshl_b32", sTmp[0], sQblk, 2), rel=10, dl=40), Item(salu("s_add_u32", sTmp[0], sTmp[0], sWave), rel=10, dl=40),
                   Item(salu("s_mul_i32", sTmp[0], sTmp[0], 3584), rel=10, dl=40), Item(salu("s_mul_i32", sTmp[1], sHead, 256 * 896), rel=10, dl=40),
                   Item(salu("s_add_u32", sTmp[0], sTmp[0], sTmp[1]), rel=10, dl=40),
                   Item(valu("v_and_b32", vPFa, 62 if OPT["pf128"] else 63, vLane), rel=10, dl=50),
                   Item(valu("v_lshlrev_b32", vPFa, 6, vPFa), rel=10, dl=50), Item(pfload(vPFa, sWO, sTmp[0]), rel=56, dl=66)]
        return dict(sm=sm_part(Sc, 1, -1, 61) + sm_part(Sn, 0, brk, 127), mx=max_items(Sn, 36, 67, brk - 1), pf=pfi)
    def pe(info): return {brk: branch("r1", site, (j + 1) & 1)}
    body, carry = section(fr, NPRE, nxt, extra=extra, post_extra=pe, dma_first=carry if carry is not None and carry <= V31 else None,
                          verbose=OPT["verbose"] and j == 2, no_dma_after=V31)
    return ops + body, carry

XA = lambda w: 0
def last_iteration():
    Sc = SBUF[1]
    ops = [marker(("iter", 31))] + branch("r2", "p31", 0)
    fr = frags_V(31, Sc, vaddr=vV31, f0=0)
    vOa, vOb = V(12), V(14)
    pre = [valu("v_lshlrev_b32", vOa, 4, vLane), salu("s_mul_i32", sTmp[0], sWave, 24576), salu("s_lshl_b32", sTmp[1], sWave, 13),
           salu("s_add_u32", sTmp[1], sTmp[1], 3 * STG),
           valu("v_add_u32", vOb, sTmp[1], vOa), valu("v_add_u32", vOa, sTmp[0], vOa)]
    def extra(info):
        wr = []
        for dt in range(12):
            for u in (2, 3):
                wr.append(Item(dsw("ds_write_b128", vOa, O[dt][u], (dt * 2 + u - 2) * 1024), rel=min(63, info.last[dt] + 6), dl=63))
        return dict(sm=sm_part(Sc, 1, -1, -1), wr=wr)
    body, _ = section(fr, NPRE, [], extra=extra)
    ops += pre + body
    ops += [wait_lgkm0(), barrier()]
    for dt in range(12, 16):
        for u in (2, 3): ops.append(dsw("ds_write_b128", vOb, O[dt][u], ((dt - 12) * 2 + u - 2) * 1024))
    return ops

def fcheck(vd, sd):
    if not OPT["fbyte"]: return [valu("v_readfirstlane_b32", sd, vd), raw("s_nop 3", "salu")]
    return [valu("v_cmp_ne_u32", "vcc", 0x01010101, vd), raw("s_nop 3", "salu"), raw("s_cmp_eq_u64 vcc, 0", "salu", rd=["vcc"], wr=["scc"]),
            salu("s_cselect_b32", sd, 16, 0)]

FLG = []
def combine():
    o = [marker(("iter", 90))]; e = o.append
    o += fcheck(V(11), S(76))
    t = vX[0]
    for u in range(4): o += xreduce("v_add_f32", vL[u], t)
    st = V(32 + 4, 4)
    e(valu("v_mov_b32", st[0], NEGM[2][0])); e(valu("v_mov_b32", st[1], vL[2])); e(valu("v_mov_b32", st[2], NEGM[3][0])); e(valu("v_mov_b32", st[3], vL[3]))
    a = vX[1]
    e(salu("s_lshl_b32", sTmp[0], sWave, 10)); e(salu("s_add_u32", sTmp[0], sTmp[0], SPARE))
    e(valu("v_lshlrev_b32", vSt, 4, vLane))
    e(valu("v_add_u32", a, sTmp[0], vSt))
    e(dsw("ds_write_b128", a, st, 0))
    e(salu("s_xor_b32", sTmp[2], sWave, 1))
    e(salu("s_lshl_b32", sTmp[0], sTmp[2], 10)); e(salu("s_add_u32", sTmp[0], sTmp[0], SPARE)); e(valu("v_add_u32", a, sTmp[0], vSt))
    pa, pb = vX[2], vX[3]
    e(salu("s_mul_i32", sTmp[0], sTmp[2], 24576)); e(valu("v_add_u32", pa, sTmp[0], vSt))
    e(salu("s_lshl_b32", sTmp[1], sTmp[2], 13)); e(salu("s_add_u32", sTmp[1], sTmp[1], 3 * STG)); e(valu("v_add_u32", pb, sTmp[1], vSt))
    e(salu("s_cmp_ge_u32", S(76), 16)); e(raw("s_cbranch_scc1 L_pdone_F", "branch"))
    o += poll("F", offF, V(64), V(65))
    o += [wait_lgkm0(), barrier()]
    o += red_addr()
    cur = []
    for x_ in red_loads(0, LDA, [0, 1]):
        cur.append(x_)
        if x_.kind == "vmem": FLG.append(cur); cur = []
    g1 = FLG[:OPT["fl1"]]
    if g1: o += g1.pop(0)
    e(dsr("ds_read_b128", st, a, 0))
    RX = [[V(128 + (dt * 2 + u) * 4, 4) for u in range(2)] for dt in range(16)]
    for dt in range(16):
        for u in range(2):
            if dt < 12: e(dsr("ds_read_b128", RX[dt][u], pa, (dt * 2 + u) * 1024))
            else: e(dsr("ds_read_b128", RX[dt][u], pb, ((dt - 12) * 2 + u) * 1024))
            if (dt * 2 + u) % 6 == 5 and g1: o += g1.pop(0)
    wk = [vF[0], vF[1]]; wp = [vF[2], vF[3]]
    for u in range(2):
        nm_o, l_o, nm_p, l_p = NEGM[u][0], vL[u], st[2 * u], st[2 * u + 1]
        mn, fa, fb = vT[0], vT[1], vT[2]
        e(valu("v_min_f32", mn, nm_o, nm_p))
        e(valu("v_sub_f32", fa, mn, nm_o)); e(valu("v_sub_f32", fb, mn, nm_p))
        e(valu("v_exp_f32", fa, fa)); e(valu("v_exp_f32", fb, fb))
        e(valu("v_mul_f32", mn, fa, l_o)); e(valu("v_fma_f32", mn, fb, l_p, mn))
        e(valu("v_rcp_f32", mn, mn))
        e(valu("v_mul_f32", wk[u], fa, mn)); e(valu("v_mul_f32", wp[u], fb, mn))
    for x_ in g1: o += x_
    o += [wait_lgkm0(), barrier()]
    e(valu("v_lshrrev_b32", vX[0], 3, vLane)); e(valu("v_and_b32", vX[1], 7, vLane))
    e(valu("v_mul_u32_u24", vDmaN, 16 * 896, vX[0])); e(valu("v_lshl_add_u32", vDmaN, vX[1], 4, vDmaN))
    o += m0_init(W0)
    for s_ in range(W0, W0 + 3):
        for grp in dma_ops(s_): o += grp
    e(valu("v_sub_u32", vPaddrLo, vVaddr, sKh)); e(valu("v_add_u32", vPaddrHi, HALF, vPaddrLo))
    e(valu("v_lshlrev_b32", vSt, 4, vLane))
    TMPB = [[A((4 * dt + 2) * 4 + 0, 2) for dt in range(16)], [A((4 * dt + 3) * 4, 2) for dt in range(16)]]
    tt = [V(64 + i) for i in range(16)]
    n = 0
    g2 = FLG[OPT["fl1"]:OPT["fl1"] + OPT["fl2"]]
    for dt in range(16):
        for u in range(2):
            if g2 and (n * OPT["fl2"]) // 32 != ((n + 1) * OPT["fl2"]) // 32: o += g2.pop(0)
            x = [tt[(4 * n + i) % 16] for i in range(4)]; n += 1
            for r in range(4): e(valu("v_accvgpr_read_b32", x[r], O[dt][u][r]))
            xx = Reg("v", x[0].lo, 4)
            sel = "op_sel:[0,%d] op_sel_hi:[1,%d]" % (u, u)
            sel3 = "op_sel:[0,%d,0] op_sel_hi:[1,%d,1]" % (u, u)
            for h in range(2): e(valu("v_pk_mul_f32", xx[2 * h:2 * h + 2], xx[2 * h:2 * h + 2], V(40, 2), mods=sel))
            for h in range(2): e(valu("v_pk_fma_f32", xx[2 * h:2 * h + 2], RX[dt][u][2 * h:2 * h + 2], V(42, 2), xx[2 * h:2 * h + 2], mods=sel3))
            ob = RX[dt & ~1][u]
            e(valu("v_cvt_pk_bf16_f32", ob[2 * (dt & 1)], x[0], x[1])); e(valu("v_cvt_pk_bf16_f32", ob[2 * (dt & 1) + 1], x[2], x[3]))
    return o, RX

offA2 = [salu("s_lshl_b32", sTmp[6], sQblk, 2), salu("s_add_u32", sTmp[6], sTmp[6], 64)]
def signal(off_sgpr_ops, va, vd):
    o = list(off_sgpr_ops)
    t = Reg("s", int(o[-1].wr[0][1:]))
    o += [salu("s_cmp_eq_u32", sWave, 0), salu("s_cselect_b32", t, t, 0x10000),
          valu("v_mov_b32", va, t), valu("v_mov_b32", vd, 1), raw("s_mov_b64 exec, 1", "salu"),
          Op(f"buffer_store_byte {vd}, {va}, {sDBG}, {sHead} offen sc1" if OPT["fbyte"] else f"buffer_atomic_add {vd}, {va}, {sDBG}, 0 offen",
             "vmem", rd=va.regs() + vd.regs() + sDBG.regs(), tag="sig"),
          raw("s_mov_b64 exec, -1", "salu")]
    return o
def signal16(which, va, vd, t):
    return [salu("s_lshl_b32", t, sQblk, 12), salu("s_add_u32", t, t, CNT + 4 * which),
            salu("s_cmp_eq_u32", sWave, 0), salu("s_cselect_b32", t, t, 0x7ff00000),
            valu("v_lshlrev_b32", va, 8, vLane), valu("v_add_u32", va, t, va), valu("v_mov_b32", vd, 1),
            salu("s_lshl_b32", t, 1, sHead), salu("s_xor_b32", t, t, 0xffff),
            raw(f"s_mov_b32 exec_lo, {t}", "salu", rd=t.regs()), raw("s_mov_b32 exec_hi, 0", "salu"),
            Op(f"buffer_atomic_add {vd}, {va}, {sWS}, 0 offen", "vmem", rd=va.regs() + vd.regs() + sWS.regs(), tag="sig"),
            raw("s_mov_b64 exec, -1", "salu")]
def poll2(name, which, va, vd2):
    return [valu("v_mov_b32", va, 0), salu("s_mov_b32", sTmp[1], 0), label(f"L_poll_{name}"),
            raw(f"buffer_load_dwordx2 {vd2}, {va}, {sWS}, {sCW} offen sc1", "salu"), raw("s_waitcnt vmcnt(0)", "wait"),
            raw(f"v_readfirstlane_b32 {sTmp[2]}, {vd2[0]}", "salu"), raw(f"v_readfirstlane_b32 {sTmp[3]}, {vd2[1]}", "salu"),
            salu("s_add_u32", sTmp[1], sTmp[1], 1), raw("s_nop 3", "salu"),
            salu("s_cmp_ge_u32", sTmp[2 + which], 15), raw(f"s_cbranch_scc1 L_pdone_{name}", "branch"),
            raw("s_sleep 2", "salu"), salu("s_cmp_lt_u32", sTmp[1], 0x40000), raw(f"s_cbranch_scc1 L_poll_{name}", "branch"),
            label(f"L_pdone_{name}")]
offF = [salu("s_lshl_b32", sTmp[0], sQblk, 4)]
offA = [salu("s_lshl_b32", sTmp[0], sQblk, 2), salu("s_add_u32", sTmp[0], sTmp[0], 64)]
offB = [salu("s_lshl_b32", sTmp[0], sQblk, 3), salu("s_add_u32", sTmp[0], sTmp[0], 128)]

def poll(name, off_ops, va, vd):
    o = list(off_ops) + [valu("v_and_b32", va, 3 if OPT["fbyte"] else 0, vLane), valu("v_lshlrev_b32", va, 2, va),
         salu("s_mov_b32", sTmp[1], 0), label(f"L_poll_{name}"),
         raw(f"buffer_load_dword {vd}, {va}, {sDBG}, {sTmp[0]} offen sc1", "salu"), raw("s_waitcnt vmcnt(0)", "wait")]
    o += fcheck(vd, sTmp[2])
    o += [salu("s_add_u32", sTmp[1], sTmp[1], 1),
         salu("s_cmp_ge_u32", sTmp[2], 16), raw(f"s_cbranch_scc1 L_pdone_{name}", "branch"),
         raw("s_sleep 2", "salu"), salu("s_cmp_lt_u32", sTmp[1], 0x40000), raw(f"s_cbranch_scc1 L_poll_{name}", "branch"),
         label(f"L_pdone_{name}")]
    return o
def poll0(name, off_ops, va, vd):
    return [salu("s_cmp_lg_u32", sWave, 0), raw(f"s_cbranch_scc1 L_pdone_{name}", "branch")] + poll(name, off_ops, va, vd)

LDV = [[V(128 + (k * 16 + h) * 4, 4) for h in range(16)] for k in range(2)]
LDA = [[O[h][2 + k] for h in range(16)] for k in range(2)]
vRa = [V(12), V(14)]
def red_addr():
    return [salu("s_lshl_b32", sTmp[0], sHead, 2), salu("s_add_u32", sTmp[0], sTmp[0], sWave),
            salu("s_lshl_b32", sTmp[1], sTmp[0], 10), salu("s_mul_i32", sTmp[2], sTmp[0], 768), salu("s_add_u32", sTmp[2], sTmp[2], 65536),
            valu("v_lshlrev_b32", vRa[1], 4, vLane), valu("v_add_u32", vRa[0], sTmp[1], vRa[1]), valu("v_add_u32", vRa[1], sTmp[2], vRa[1])]
def red_loads(region, LD, parts):
    o = []
    t = [sTmp[4], sTmp[5]]
    o += [salu("s_mul_i32", t[0], sQblk, 16 * PBLK), salu("s_add_u32", t[0], t[0], region)]
    for h in range(16):
        for k in parts: o.append(bload(LD[k][h], vRa[k], sWS, t[h & 1], flags="sc1", tag="red"))
        if h < 15: o.append(salu("s_add_u32", t[(h + 1) & 1], t[h & 1], PBLK))
    return o
sSelLo, sSelHi = S(72), S(73)
def red_sum(ACC, LD, k, tmp):
    o = []; e = o.append
    for h in range(16):
        src = []
        for p in range(4):
            x = LD[k][h][p]
            if x.k == "a":
                y = tmp[(4 * h + p) % 8]; e(valu("v_accvgpr_read_b32", y, x)); x = y
            src.append(x)
        for p in range(4):
            for hi in range(2):
                acc = ACC[k][2 * p + hi]
                e(valu("v_dot2_f32_bf16", acc, src[p], sSelHi if hi else sSelLo, 0 if h == 0 else acc))
    return o

def tail():
    o = [marker(("iter", 95))]; e = o.append
    G = [[V(16 + k * 8 + i) for i in range(8)] for k in range(2)]
    SA = [[V(32 + k * 8 + i) for i in range(8)] for k in range(2)]
    tmp = [V(96 + i) for i in range(8)]
    T_ = [V(54 + i) for i in range(8)]
    XV = [[V(62 + (k * 2 + t) * 2, 2) for t in range(2)] for k in range(2)]
    vo = [V(70), V(71)]
    c, un, q = V(72), V(73), V(74)
    def silu(k):
        F = G[k]
        for i in range(8): o.extend(round_bf16(F[i]))
        for i in range(8): e(valu("v_mul_f32", T_[i], -LOG2E, F[i]))
        for i in range(8): e(valu("v_exp_f32", T_[i], T_[i]))
        for i in range(8): e(valu("v_add_f32", T_[i], 1.0, T_[i]))
        for i in range(8): e(valu("v_rcp_f32", T_[i], T_[i]))
        for i in range(8): e(valu("v_mul_f32", F[i], F[i], T_[i]))
        for i in range(8): o.extend(round_bf16(F[i]))
    def final(k):
        for i in range(8): o.extend(round_bf16(SA[k][i]))
        for i in range(8): e(valu("v_mul_f32", SA[k][i], SA[k][i], G[k][i]))
        for i in range(8): o.extend(round_bf16(SA[k][i]))
        for t in range(2):
            for p in range(2):
                x = XV[k][t][p]
                e(valu("v_lshlrev_b32", tmp[0], 16, x)); e(valu("v_and_b32", tmp[1], 0xffff0000, x))
                e(valu("v_add_f32", tmp[0], tmp[0], SA[k][4 * t + 2 * p])); e(valu("v_add_f32", tmp[1], tmp[1], SA[k][4 * t + 2 * p + 1]))
                e(valu("v_cvt_pk_bf16_f32", x, tmp[0], tmp[1]))
            e(bstore(XV[k][t], vo[k], sOUT, 0, off=32 * t))
    e(salu("s_mov_b32", sSelLo, 0x00003f80)); e(salu("s_mov_b32", sSelHi, 0x3f800000))
    sA, sB = S(74), S(75)
    def rawloads(k):
        for x_ in red_loads(PART, LDV, [k]): e(raw(x_.text, "salu"))
    e(valu("v_readfirstlane_b32", sA, FREEQ[15][0])); e(valu("v_readfirstlane_b32", sB, FREEQ[15][1]))
    e(salu("s_lshl_b32", sTmp[0], sHead, 2)); e(salu("s_add_u32", sTmp[0], sTmp[0], sWave))
    e(salu("s_mul_i32", sTmp[1], sQblk, PBLK))
    e(salu("s_lshr_b32", sTmp[2], sTmp[0], 3)); e(salu("s_mul_i32", sTmp[2], sTmp[2], 16 * 896)); e(salu("s_add_u32", sTmp[2], sTmp[2], sTmp[1]))
    e(salu("s_and_b32", sTmp[3], sTmp[0], 7)); e(salu("s_lshl_b32", sTmp[3], sTmp[3], 6)); e(salu("s_add_u32", sTmp[2], sTmp[2], sTmp[3]))
    e(valu("v_and_b32", vo[0], 15, vLane)); e(valu("v_mul_u32_u24", vo[0], 896, vo[0]))
    e(valu("v_lshrrev_b32", un, 4, vLane)); e(valu("v_lshl_add_u32", vo[0], un, 3, vo[0])); e(valu("v_add_u32", vo[0], sTmp[2], vo[0]))
    e(salu("s_mul_i32", sTmp[0], sTmp[0], 48)); e(salu("s_add_u32", sTmp[1], sTmp[1], 512))
    e(valu("v_add_u32", c, sTmp[0], vLane)); e(valu("v_lshrrev_b32", un, 6, c))
    e(valu("v_mul_u32_u24", q, 43, un)); e(valu("v_lshrrev_b32", q, 8, q))
    e(valu("v_mul_u32_u24", vo[1], 6, q)); e(valu("v_sub_u32", un, un, vo[1]))
    e(valu("v_and_b32", vo[1], 15, c)); e(valu("v_lshl_add_u32", vo[1], q, 4, vo[1]))
    e(valu("v_mul_u32_u24", vo[1], 896, vo[1])); e(valu("v_lshl_add_u32", vo[1], un, 6, vo[1]))
    e(valu("v_bfe_u32", un, c, 4, 2)); e(valu("v_lshl_add_u32", vo[1], un, 3, vo[1]))
    e(valu("v_add_u32", vo[1], sTmp[1], vo[1]))
    e(valu("v_cmp_gt_u32", "vcc", 48, vLane)); e(valu("v_mov_b32", un, 0x7fffff00))
    e(valu("v_cndmask_b32", vo[1], un, vo[1]))
    for k in range(2):
        for t in range(2): e(raw(bload(XV[k][t], vo[k], sX, 0, off=32 * t).text, "salu", rd=vo[k].regs()))
    if OPT["tailv"] == 1:
        e(salu("s_cmp_ge_u32", sA, 15)); e(raw("s_cbranch_scc0 L_noA", "branch"))
        rawloads(0)
        e(raw("s_waitcnt vmcnt(20)", "wait")); e(raw("s_branch L_drained", "branch"))
        e(label("L_noA"))
        e(raw("s_waitcnt vmcnt(4)", "wait"))
        e(label("L_drained"))
        o += stamp(2, 7)
        e(barrier())
        o += signal16(1, V(75), V(76), sTmp[0])
        o += stamp(3, 7)
        e(salu("s_cmp_ge_u32", sA, 15)); e(raw("s_cbranch_scc1 L_haveA", "branch"))
        o += red_sum(G, LDA, 0, tmp)
        o += poll2("A", 0, V(75), V(76, 2))
        e(salu("s_mov_b32", sB, sTmp[3]))
        rawloads(0)
        e(raw("s_branch L_joinA", "branch"))
        e(label("L_haveA"))
        e(salu("s_cmp_ge_u32", sB, 15)); e(raw("s_cbranch_scc0 L_noB1", "branch"))
        rawloads(1)
        e(salu("s_mov_b32", sA, 99))
        e(label("L_noB1"))
        o += red_sum(G, LDA, 0, tmp)
        e(label("L_joinA"))
    else:
        e(raw("s_waitcnt vmcnt(4)", "wait"))
        o += stamp(2, 7)
        e(barrier())
        o += signal16(1, V(75), V(76), sTmp[0])
        o += stamp(3, 7)
        e(salu("s_cmp_ge_u32", sA, 15)); e(raw("s_cbranch_scc1 L_haveA", "branch"))
        o += red_sum(G, LDA, 0, tmp)
        o += poll2("A", 0, V(75), V(76, 2))
        e(salu("s_mov_b32", sB, sTmp[3]))
        rawloads(0)
        e(raw("s_branch L_joinA", "branch"))
        e(label("L_haveA"))
        rawloads(0)
        e(salu("s_cmp_ge_u32", sB, 15)); e(raw("s_cbranch_scc0 L_noB1", "branch"))
        rawloads(1)
        e(salu("s_mov_b32", sA, 99))
        e(label("L_noB1"))
        o += red_sum(G, LDA, 0, tmp)
        e(label("L_joinA"))
    o += stamp(4, 7)
    silu(0)
    o += red_sum(G, LDA, 1, tmp)
    silu(1)
    o += stamp(5, 7)
    e(salu("s_cmp_eq_u32", sA, 99)); e(raw("s_cbranch_scc1 L_haveB", "branch"))
    e(salu("s_cmp_ge_u32", sB, 15)); e(raw("s_cbranch_scc1 L_pdone_B", "branch"))
    o += poll2("B", 1, V(75), V(76, 2))
    rawloads(1)
    e(label("L_haveB"))
    o += stamp(6, 7)
    e(raw("s_waitcnt vmcnt(16)", "wait"))
    o += red_sum(SA, LDV, 0, tmp)
    e(raw("s_waitcnt vmcnt(0)", "wait"))
    o += red_sum(SA, LDV, 1, tmp)
    final(0)
    final(1)
    return o
assert all((u * 43) >> 8 == u // 6 for u in range(50))

def pfpat(d, t):
    if OPT["pfpat"] == 0: return [valu("v_lshlrev_b32", d, 5, vLane)]
    sh = OPT["pfpat"]
    return [valu("v_lshrrev_b32", d, sh, vLane), valu("v_lshlrev_b32", d, 5 + sh, d),
            valu("v_and_b32", t, (1 << sh) - 1, vLane), valu("v_lshl_add_u32", d, t, 2, d)]

def build_main():
    prog, late, pfl = setup()
    if OPT["pfearly"]: prog += pfl; pfl = []
    prog += stamp(1) + stamp(4, 2)
    prog += ln_stats(late) + stamp(5, 2)
    prog += stamp(2) + stamp(6, 2)
    f1 = [f for st in range(18) for f in frags_stage(st)]
    Sn = SBUF[0]
    vK0 = vT[5]
    fK0 = frags_K(0, Sn, [0] * 4, kaddr=vK0, f0=16)
    prog += bar_ops(0) + stamp(7, 2)
    for f in f1[:len(FRA)]: prog += f.reads
    LEFT = []
    def extra(info):
        def first_of(key): return min(info.first[i] for i, f in enumerate(f1) if f.key == key)
        def last_of(key): return max(info.last[i] for i, f in enumerate(f1) if f.key == key)
        ln = []
        for ks in range(2, 14): ln += items(ln_apply(ks, 1), -1, first_of(("U", ks)) - 3)
        endU, endP = last_of(("U", 13)), last_of(("P", 13))
        sil = items(silu_ops(), endU + 5, first_of(("D", 0)) - 3)
        xa = [salu("s_lshr_b32", sTmp[5], sWave, 1), salu("s_mul_i32", sTmp[5], sTmp[5], (RB[20 % 4] - RB[19 % 4]) & 0xffffffff),
              salu("s_add_u32", sTmp[5], sTmp[5], sKh), salu("s_add_u32", sTmp[5], sTmp[5], RB[19 % 4]),
              valu("v_add_u32", vXaddr, sTmp[5], vSt)]
        qc = qconv_ops(None)
        relq = endP + 5
        qi = items(xa, relq, info.n - 1)
        qv = [o for o in qc if o.kind != "dsw"]
        qend = info.bar[17] + 4 if OPT["qspread"] else info.n - 1
        for k, o in enumerate(qv):
            qi.append(Item(o, rel=relq, dl=(relq + (qend - relq) * (k + 1) // len(qv)) if OPT["qspread"] else info.n - 1))
        qi += [Item(o, rel=max(relq, info.bar[17] + 1), dl=info.n - 1) for o in qc if o.kind == "dsw"]
        Q12 = [V(96 + 4 * i, 4) for i in range(4)] + [V(80 + 4 * i, 4) for i in range(4)] + [V(112 + 4 * i, 4) for i in range(4)]
        oc, os_, left = paced_out([last_of(("D", g)) + 5 for g in range(7)],
                                  [first_of(("D", g + 2)) - 3 if g + 2 <= 6 else info.n - 1 for g in range(7)], info.n, sStF, Q12, OPT["dpace"])
        LEFT.extend(left)
        pfi = []
        when = [OPT["pfwq"] + OPT["pfwqs"] * k for k in range(OPT["wqp"])] + [OPT["pfw2"]] + [OPT["pfkv0"] + OPT["pfkvs"] * k for k in range(OPT["pfdist"] + 1)]
        k = 0
        for o in pfl:
            pfi.append(Item(o, rel=when[k], dl=when[k] + 40))
            if o.kind == "vmem": k += 1
        return dict(ln=ln, sil=sil, qc=qi, oc=oc, os=os_, pf=pfi)
    body, carry = section(f1, len(FRA), [], extra=extra, dma_first=[2, 3], verbose=OPT["verbose"])
    prog += body
    prog += stamp(3) + stamp(7, 5)
    if OPT["stamps"] == 8:
        prog += [raw("s_memtime s[100:101]", "smem"), raw("s_waitcnt lgkmcnt(0)", "wait"),
                 salu("s_lshl_b32", sTmp[0], S(2), 2), salu("s_add_u32", sTmp[0], sTmp[0], sWave), salu("s_lshl_b32", sTmp[0], sTmp[0], 7),
                 salu("s_add_u32", sTmp[0], sTmp[0], 2 * PART + 65536), valu("v_mov_b32", V(100), 0)]
        for k, sr in enumerate(S8 + [100]):
            prog += [salu("s_sub_u32", sTmp[1], S(sr), S(sStamp)), valu("v_mov_b32", V(101 + k), sTmp[1]), bstore(V(101 + k), V(100), sWS, sTmp[0], off=4 * k)]
    assert carry == 20, carry
    print("deferred f stores:", len(LEFT))
    early = [so for so in LEFT if 80 <= int(so[1].extra[1][0][1:]) < 96]
    later = [so for so in LEFT if so not in early]
    for so in early[:2]: prog += so
    prog += [wait_lgkm0(), barrier()]
    prog += [salu("s_sub_u32", sTmp[0], SLOT, sKh), salu("s_sub_u32", sTmp[0], sTmp[0], sKh),
             valu("v_add_u32", vXaddr, sTmp[0], vXaddr)]
    for u in range(2):
        for ks in range(8): prog.append(dsr("ds_read_b128", Q[2 + u][ks], vXaddr, (u * 8 + ks) * 1024))
    for grp in dma_ops(21): prog += grp
    prog += [valu("v_subrev_u32", vK0, HALF, vKaddr), valu("v_add_u32", vV31, HALF, vVaddr), ] + pfpat(vPFa, V(10))
    for u in range(4): prog.append(valu("v_mov_b32", vL[u], 0))
    prog.append(salu("s_mov_b32", sCnt, (LOOP_HI - LOOP_LO) // UNR))
    for so in early[2:]: prog += so
    prog += bar_ops(K0)
    for f in fK0[:NPRE]: prog += f.reads
    nin = min(len(later), 4)
    def extraK0(info):
        it = []
        for k, so in enumerate(later[:nin]): it += [Item(so[0], rel=3 + 16 * k, dl=6 + 16 * k), Item(so[1], rel=4 + 16 * k, dl=7 + 16 * k)]
        return dict(os=it)
    body, carry = section(fK0, NPRE, frags_K(1, SBUF[1], NEGM)[:NPRE], dma_first=23, extra=extraK0)
    prog += body
    for grp in dma_ops(22): prog += grp
    later = later[nin:]
    for u in range(4):
        tm, t2 = vX[0], vX[1]
        prog += rowmax(Sn[u], tm, t2)
        for r in range(8): prog.append(valu("v_sub_f32", Sn[u][r], Sn[u][r], tm))
        for r in range(4): prog.append(valu("v_sub_f32", NEGM[u][r], 0, tm))
        if u % 2 == 1 and later: prog += later.pop(0)
    prog += sprinkle([o_ for it in sm_part(Sn, 0, 0, 0) for o_ in it.ops], later)
    prog += stamp(4)
    if OPT["stamps"] == 3:
        prog += [salu("s_lshl_b32", S(90), S(2), 2), salu("s_add_u32", S(90), S(90), sWave), salu("s_lshl_b32", S(90), S(90), 7),
                 salu("s_add_u32", S(90), S(90), 2 * PART + 65536)]
    for j in range(31):
        it, carry = iteration(j, carry)
        if LOOP_LO <= j < LOOP_HI and (j - LOOP_LO) % UNR == UNR - 1:
            it += [salu("s_sub_u32", sCnt, sCnt, 1), salu("s_cmp_lg_u32", sCnt, 0), raw("s_cbranch_scc1 L_loop", "branch", rd=["scc"])]
        if OPT["stamps"] == 3:
            st3 = [raw("s_memtime s[100:101]", "smem"), wait_lgkm0(), raw("s_waitcnt lgkmcnt(0)", "wait"), salu("s_sub_u32", S(100), S(100), S(sStamp)),
                   valu("v_mov_b32", V(12), S(100)), valu("v_mov_b32", V(14), 0), bstore(V(12), V(14), sWS, S(90)), salu("s_add_u32", S(90), S(90), 4)]
            k = len(it) - 3 if it[-1].kind == "branch" else len(it)
            it = it[:k] + st3 + it[k:]
        prog += it
    prog += last_iteration()
    prog += stamp(5)
    cmb, RX = combine()
    prog += cmb
    prog += stamp(6)
    fW = frags_W()
    prog += bar_ops(W0)
    for f in fW[:len(FRW)]: prog += f.reads
    LEFTW = []
    def extraW(info):
        QW = [V(80 + 4 * i, 4) for i in range(4)] + FREEQ[8:14]
        oc, os_, left = paced_out([info.last[32 * g + 31] + 5 for g in range(7)],
                                  [info.first[32 * (g + 2)] - 3 if g + 2 <= 6 else info.n - 1 for g in range(7)], info.n, sStS, QW, OPT["wpace"])
        LEFTW.extend(left)
        sg = [Item(signal16(0, FREEQ[14][0], FREEQ[14][1], sTmp[6]), rel=info.bar[W0 + 6] + 1, dl=info.bar[W0 + 6] + 1)]
        sg += [Item(valu("v_mov_b32", FREEQ[14][2], 0), rel=info.n - 40, dl=info.n - 36),
               Item(bload(FREEQ[15][0:2], FREEQ[14][2], sWS, sCW, flags="sc1", tag="cnt"), rel=info.n - 34, dl=info.n - 30)]
        fl = []
        for k, g_ in enumerate(FLG[OPT["fl1"] + OPT["fl2"]:]):
            for x_ in g_: fl.append(Item(x_, rel=2 + OPT["flpace"] * k, dl=8 + OPT["flpace"] * k))
        return dict(oc=oc, os=os_, sg=sg, fl=fl)
    body, _ = section(fW, len(FRW), [], extra=extraW, dma_first=W0 + 3, verbose=OPT["verbose"])
    prog += body
    print("deferred s stores:", len(LEFTW))
    for so in LEFTW: prog += so
    prog += stamp(5, 6) + stamp(1, 7) + stamp(7, 9)
    prog += tail()
    prog += stamp(7) + stamp(7, 7)
    if OPT["stamps"] in (1, 2, 4, 5, 6, 7, 9):
        prog += [salu("s_lshl_b32", sTmp[0], S(2), 2), salu("s_add_u32", sTmp[0], sTmp[0], sWave), salu("s_lshl_b32", sTmp[0], sTmp[0], 6),
                 salu("s_add_u32", sTmp[0], sTmp[0], 2 * PART), valu("v_mov_b32", V(20), 0)]
        for k in range(1, 8):
            prog += [salu("s_sub_u32", sTmp[1], S(sStamp + k), S(sStamp)), valu("v_mov_b32", V(21), sTmp[1]),
                     bstore(V(21), V(20), sWS, sTmp[0], off=4 * k)]
    if OPT["dbgout"]:
        prog += [raw("s_mov_b64 exec, 1", "salu")]
        for k, wd in zip(range(1, 8), (1, 2, 3, 5, 6, 7, 9)):
            prog += [salu("s_sub_u32", sTmp[1], S(sStamp + k), S(sStamp)), valu("v_mov_b32", V(21), sTmp[1]), valu("v_mov_b32", V(20), 4 * wd),
                     raw(f"buffer_atomic_umax v21, v20, {sDBG}, 0 offen", "salu")]
    prog += [label("L_done"), raw("s_endpgm", "branch")]
    return prog

def finish(prog):
    for tag in ("stA", "stF"):
        w = [i for i, o in enumerate(prog) if o.kind == "pseudo" and o.tag and o.tag[0] == "waitvm" and tag in o.tag[1]]
        st = [i for i, o in enumerate(prog) if o.tag == tag]
        assert len(w) == 1 and max(st) < w[0], (tag, w, max(st))
    prog = insert_waits(prog)
    rep = []
    prog = pad_hazards(prog, report=rep)
    segs = []; cur = ("pro", [])
    segs.append(cur)
    for op in prog:
        if op.kind == "pseudo" and op.tag and op.tag[0] == "mark":
            cur = (op.tag[1][1], []); segs.append(cur)
        cur[1].append(op)
    d = dict(segs)
    for j in range(LOOP_LO + UNR, LOOP_HI):
        a, b = text_of(d[j]), text_of(d[j - UNR])
        if a != b:
            import difflib
            print("MISMATCH iter", j); print("\n".join(list(difflib.unified_diff(b.split("\n"), a.split("\n"), lineterm=""))[:40])); sys.exit(1)
    body = ""
    for k, ops in segs:
        if isinstance(k, int) and LOOP_LO + UNR <= k < LOOP_HI: continue
        if k == LOOP_LO: body += ".p2align 6\nL_loop:\n"
        body += text_of(ops) + "\n"
    tail = []
    for nm, tgt in stubs:
        tail += [label(f"L_stub_{nm}"), raw(f"s_call_b64 {sRet}, {tgt}", "branch"), raw(f"s_branch L_ret_{nm}", "branch")]
    tail += pad_hazards(rare1(0)) + pad_hazards(rare1(1)) + pad_hazards(rare2())
    body += text_of(tail) + "\nL_end:\n"
    print("nops inserted:", len(rep), "in loop:", [o.text for o in d[LOOP_LO] if o.kind == "nop"], "total instrs", body.count("\n"))
    return body

def build_reduce():
    o = []; e = o.append
    e(raw("s_cmp_ge_u32 s2, 448")); e(raw("s_cbranch_scc1 L_rdone", "branch"))
    e(raw("s_load_dwordx2 s[4:5], s[0:1], 0", "smem")); e(raw("s_load_dwordx2 s[6:7], s[0:1], 72", "smem")); e(raw("s_load_dwordx2 s[20:21], s[0:1], 88", "smem"))
    rX, rO, rW = S(8, 4), S(12, 4), S(16, 4)
    e(valu("v_lshrrev_b32", V(1), 6, V(0))); e(valu("v_and_b32", V(0), 63, V(0)))
    e(valu("v_readfirstlane_b32", S(22), V(1)))
    e(salu("s_lshl_b32", S(23), S(2), 2)); e(salu("s_add_u32", S(23), S(23), S(22)))
    e(valu("v_lshlrev_b32", V(2), 4, V(0)))
    e(salu("s_lshl_b32", S(24), S(23), 14))
    e(salu("s_add_u32", S(25), S(24), PART))
    e(raw("s_waitcnt lgkmcnt(0)", "wait"))
    for d, lo, sz in ((rX, 4, 2048 * 896), (rO, 6, 2048 * 896), (rW, 20, 2 * PART)):
        e(salu("s_mov_b32", d[0], S(lo))); e(salu("s_mov_b32", d[1], S(lo + 1))); e(salu("s_mov_b32", d[2], sz)); e(salu("s_mov_b32", d[3], 0x20000))
    LD = [[V(32 + (m * 16 + h) * 4, 4) for h in range(16)] for m in range(2)]
    for h4 in range(4):
        for m in range(2):
            for hh in range(4): e(bload(LD[m][4 * h4 + hh], V(2), rW, S(24 + (1 if OPT["rednof"] else m)), off=hh * 1024))
        if h4 < 3:
            e(salu("s_add_u32", S(24), S(24), 4096)); e(salu("s_add_u32", S(25), S(25), 4096))
    e(salu("s_mul_i32", S(26), S(23), 4682)); e(salu("s_lshr_b32", S(26), S(26), 16))
    e(salu("s_mul_i32", S(27), S(26), 14)); e(salu("s_sub_u32", S(27), S(23), S(27)))
    e(salu("s_mul_i32", S(26), S(26), 16 * 896)); e(salu("s_lshl_b32", S(27), S(27), 6)); e(salu("s_add_u32", S(26), S(26), S(27)))
    e(valu("v_and_b32", V(3), 15, V(0))); e(valu("v_mul_u32_u24", V(3), 896, V(3)))
    e(valu("v_lshrrev_b32", V(4), 4, V(0))); e(valu("v_lshl_add_u32", V(3), V(4), 3, V(3)))
    XV = [V(6, 2), V(8, 2)]
    for t in range(2): e(bload(XV[t], V(3), rX, S(26), off=32 * t))
    ACC = [[V(10 + m * 8 + i) for i in range(8)] for m in range(2)]
    tmp = [V(26 + i) for i in range(4)]
    for h in range(16):
        for m in range(2):
            for p in range(4):
                x = LD[m][h][p]
                if h == 0:
                    e(valu("v_lshlrev_b32", ACC[m][2 * p], 16, x)); e(valu("v_and_b32", ACC[m][2 * p + 1], 0xffff0000, x))
                else:
                    a, b = tmp[2 * (p & 1)], tmp[2 * (p & 1) + 1]
                    e(valu("v_lshlrev_b32", a, 16, x)); e(valu("v_and_b32", b, 0xffff0000, x))
                    e(valu("v_add_f32", ACC[m][2 * p], ACC[m][2 * p], a)); e(valu("v_add_f32", ACC[m][2 * p + 1], ACC[m][2 * p + 1], b))
    F, Sx = ACC[0], ACC[1]
    T_ = [V(32 + i) for i in range(8)]
    for i in range(8): o += round_bf16(F[i]) + round_bf16(Sx[i])
    for i in range(8): e(valu("v_mul_f32", T_[i], -LOG2E, F[i]))
    for i in range(8): e(valu("v_exp_f32", T_[i], T_[i]))
    for i in range(8): e(valu("v_add_f32", T_[i], 1.0, T_[i]))
    for i in range(8): e(valu("v_rcp_f32", T_[i], T_[i]))
    for i in range(8): e(valu("v_mul_f32", F[i], F[i], T_[i]))
    for i in range(8): o += round_bf16(F[i])
    for i in range(8): e(valu("v_mul_f32", F[i], F[i], Sx[i]))
    for i in range(8): o += round_bf16(F[i])
    for t in range(2):
        for p in range(2):
            x = XV[t][p]
            e(valu("v_lshlrev_b32", tmp[0], 16, x)); e(valu("v_and_b32", tmp[1], 0xffff0000, x))
            e(valu("v_add_f32", tmp[0], tmp[0], F[4 * t + 2 * p])); e(valu("v_add_f32", tmp[1], tmp[1], F[4 * t + 2 * p + 1]))
            e(valu("v_cvt_pk_bf16_f32", x, tmp[0], tmp[1]))
        e(bstore(XV[t], V(3), rO, S(26), off=32 * t))
    e(label("L_rdone")); e(raw("s_endpgm", "branch"))
    return text_of(pad_hazards(insert_waits(o))) + "\n"
assert all((w * 4682) >> 16 == w // 14 for w in range(1792))

HDR = open("recurrent_scan__mha_block_cached__glu_gated_swiglu__prompt.s.ref").read().split("; Override")[0]
def kd(name, vg, acc, sg):
    return f""".amdhsa_kernel {name}
  .amdhsa_next_free_vgpr {vg}
  .amdhsa_next_free_sgpr {sg}
  .amdhsa_accum_offset {acc}
  .amdhsa_group_segment_fixed_size 0
  .amdhsa_kernarg_size 96
  .amdhsa_user_sgpr_count 2
  .amdhsa_user_sgpr_kernarg_segment_ptr 1
  .amdhsa_system_sgpr_workgroup_id_x 1
.end_amdhsa_kernel
"""
main = finish(build_main())
NAME = "recurrent_scan__mha_block_cached__glu_gated_swiglu__prompt_kernel"
txt = HDR + f"""; @launch {'kernel=' + NAME + ' ' if OPT['aslist'] else ''}grid=(256,1,1) block=(256,1,1) lds=163840
.amdgcn_target "amdgcn-amd-amdhsa--gfx950"
.text
.globl {NAME}
.p2align 8
.type {NAME},@function
{NAME}:
""" + main + """.section .rodata,"a"
.p2align 6
""" + kd(NAME, 512, 256, 102)
open(sys.argv[1], "w").write(txt)
```

```python
import sys
from asmlib import *

OPT = dict(cap=8, bardelay=4, verbose=0, brk=78, split=16, stamps=0, dbg=0, stflag=0, nofst=0, kvflag=0, rt=0, wflag=0, pf=1, pfflag=0, pfdist=4, pfcode=1, xpre=12, rednof=0, aslist=1, pfearly=0, pfw2=330, pfkv0=450, pfkvs=100, pfwq=30, xfirst=22, touch=1, mix=0, qspread=1, dpace=11, wpace=15, chain=1, chaind=2, nba=8, nbv=6, bous=1, pfpat=2, unroll=2, fbyte=0, hmap=2, fl1=6, fl2=12, flpace=12, delay=0, pf128=1, wqearly=0, sweep=0, wqp=4, pfwqs=70, tailv=2, dbgout=0, oflag=0)
for a in sys.argv[2:]:
    k, v = a.split("="); OPT[k] = int(v)

TIMER = 's_memrealtime' if OPT['rt'] else 's_memtime'
BSTR = 1056
SLOT = 16 * BSTR
STG = 2 * SLOT
RB = [0, 2 * STG, STG, 3 * STG]
HALF = 2 * STG
SPARE = 4 * STG
THR = 16.0
XSTR = 928
PBLK = 128 * 448 * 2
CNT = 2 * PART + (1 << 20)
XB = 163840 - 128 * XSTR
assert XB >= STG
QSCALE = 1.4426950408889634 / 16.0
LOG2E = 1.4426950408889634
PART = 2048 * 448 * 2 * 16

vLane = V(0)
vKaddr, vVaddr, vDma = V(1), V(2), V(3)
vL = [V(4 + i) for i in range(4)]
vTmax = V(8)
vT = [V(9 + i) for i in range(7)]
FRV = [V(16 + 4 * i, 4) for i in range(6)]
if OPT["nbv"] == 6: BSEQ = [b for n_ in (6, 5, 5, 6, 5, 5) for b in range(n_)]
else: BSEQ = [f % 4 for f in range(32)]
NPRE = 5 if OPT["nbv"] == 6 else 4
vF = [V(40 + i) for i in range(4)]
vX = [V(44 + i) for i in range(4)]
NEGM = [V(48 + 4 * u, 4) for u in range(4)]
SBUF = [[V(64 + 32 * p + 8 * u, 8) for u in range(4)] for p in range(2)]
Q = [[V(128 + 32 * u + 4 * ks, 4) for ks in range(8)] for u in range(4)]
O = [[A((4 * dt + u) * 4, 4) for u in range(4)] for dt in range(16)]
XN = [[V(128 + 56 * u + 4 * ks, 4) for ks in range(14)] for u in range(2)]
GU = [[[V(16 + ((m * 7 + ft) * 2 + u) * 4, 4) for u in range(2)] for ft in range(7)] for m in range(2)]
QT = [[A((2 * dt + u) * 4, 4) for u in range(2)] for dt in range(16)]
FRA = ([A(128 + 4 * i, 4) for i in range(8)] + [A(192 + 4 * i, 4) for i in range(8)])[:OPT["nba"]]
HB = [[A(160 + (u * 4 + kf) * 4, 4) for kf in range(4)] for u in range(2)]
vP = [V(240 + i) for i in range(16)]
vNaddrLo, vNaddrHi = V(4), V(5)
vPaddrLo, vPaddrHi = V(6), V(7)
vDmaU, vDmaP, vDmaN = V(8), V(9), V(10)
vSt = V(11)
ACCD = [[[V(16 + ((b * 4 + nt) * 2 + u) * 4, 4) for u in range(2)] for nt in range(4)] for b in range(2)]
vPk = [V(80 + 4 * i, 4) for i in range(4)]

sX, sK, sV, sWQ, sWO, sU, sW2, sWS = [S(8 + 4 * i, 4) for i in range(8)]
sRet = S(40, 2)
sWave, sHead, sQblk, sM0, sCnt = S(42), S(43), S(44), S(45), S(46)
sKoff, sVoff, sUoff, sPoff, sDoff, sWoff = S(47), S(48), S(49), S(50), S(51), S(52)
sStF, sStS = [S(53), S(54)], [S(55), S(56)]
sTmp = [S(57 + i) for i in range(7)]
sKh = S(80)
sStamp = 82

if OPT["mix"] == 1: MID = [("P", 0), ("P", 1), ("P", 2), ("P", 3), ("P", 4), ("D", 0), ("P", 5), ("D", 1), ("P", 6), ("D", 2), ("D", 3)]
elif OPT["mix"] == 2: MID = [("P", 0), ("P", 1), ("P", 2), ("P", 3), ("D", 0), ("P", 4), ("D", 1), ("P", 5), ("D", 2), ("P", 6), ("D", 3)]
else: MID = [("P", i) for i in range(7)] + [("D", i) for i in range(4)]
STAGES = [("U", i) for i in range(7)] + MID + [("K", 0), ("X", 0), ("X", 1)]
K0 = 18
for j in range(31): STAGES += [("K", j + 1), ("V", j)]
STAGES += [("V", 31)]
V31 = len(STAGES) - 1
W0 = len(STAGES)
STAGES += [("W", i) for i in range(7)]
NST = len(STAGES)
def stK(j): return K0 if j == 0 else 19 + 2 * j
def stV(j): return V31 if j == 31 else 22 + 2 * j
assert STAGES[stK(5)] == ("K", 5) and STAGES[stV(5)] == ("V", 5) and stK(1) % 4 == 1 and V31 % 4 == 3
NEXT_OVERRIDE = {21: 23, 23: 22, 22: 24}

def has_dma(st): return st < NST and STAGES[st][0] != "X"
def next_dma_stage(st):
    if st in NEXT_OVERRIDE: return NEXT_OVERRIDE[st]
    st += 1
    while st < NST and not has_dma(st): st += 1
    return st
def m0_init(st):
    return [salu("s_add_u32", "m0", sM0, RB[st % 4])] if st < NST else []

def dma_ops(st):
    ty, i = STAGES[st]
    groups = []
    nxt = m0_init(next_dma_stage(st))
    for ii in range(8):
        if ty in "KV":
            srd, soff = (sK, sKoff) if ty == "K" else (sV, sVoff)
            g = [dma(vDma, srd, soff, off=ii * 512, tag=st, flags=["", "nt", "sc1"][OPT["kvflag"]])]
            g += [salu("s_add_u32", "m0", "m0", BSTR - 512)] if ii < 7 else nxt + [salu("s_add_u32", soff, soff, 32768)]
        else:
            if ty == "U":   srd, soff, vo, rowb = sU, sUoff, vDmaU, 3584
            elif ty == "P": srd, soff, vo, rowb = sWQ, sPoff, vDmaP, 8192
            elif ty == "D": srd, soff, vo, rowb = sW2, sDoff, vDmaN, 896
            else:           srd, soff, vo, rowb = sWO, sWoff, vDmaN, 896
            g = [dma(vo, srd, soff, tag=st, flags=["", "nt", "sc1"][OPT["wflag"]])]
            if ty in "UP":
                step = [1, 1, 1, 5, 1, 1, 1, 64 - 11][ii] * rowb
            elif ty == "D":
                step = rowb if ii < 7 else 256 - 7 * rowb
            else:
                step = rowb if ii < 7 else 128 - 7 * rowb
            g += [salu("s_add_u32", "m0", "m0", BSTR)] if ii < 7 else nxt
            g.append(salu("s_add_u32", soff, soff, step & 0xffffffff))
        groups.append(g)
    return groups

def dma_items(st, lo, hi):
    if not has_dma(st): return []
    items = []
    for ii, g in enumerate(dma_ops(st)):
        r = lo + (hi - lo) * ii // 8
        items.append(Item(g[0], rel=r, dl=min(r + 3, hi - 1)))
        for o in g[1:]: items.append(Item(o, rel=min(r + 1, hi - 1), dl=min(r + 5, hi - 1)))
    return items

S8 = [83, 84, 85, 86, 87, 88, 89, 90, 91, 72, 73, 74, 75, 76, 77, 78, 79, 81]
BARSTAMP = {0: 1, 3: 2, 7: 3, 10: 4, 14: 5, 16: 6}
def bar_ops(st):
    r = [wait_vm_tag([st] + {W0 + 6: ["stA"], stK(2): ["stF"]}.get(st, []), lgkm0=True), barrier()]
    if st in BARSTAMP: r += stamp(BARSTAMP[st], 5)
    if st >= W0: r += stamp(st - W0 + 1, 9) if st < W0 + 6 else []
    if OPT["stamps"] == 8 and st < 18:
        r += [raw("s_memtime s[100:101]", "smem"), raw("s_waitcnt lgkmcnt(0)", "wait"), raw(f"s_mov_b32 s{S8[st]}, s100")]
    return r

class Frag:
    def __init__(self, st, buf, reads, mfmas, first=False):
        self.st, self.buf, self.reads, self.mfmas, self.first = st, buf, reads, mfmas, first
        self.chain = None

def tr2(buf, lo, hi, addr, o0, o1):
    a, base = (lo, 0) if addr < HALF else (hi, HALF)
    return [dsr("ds_read_b64_tr_b16", buf[0:2], a, addr - base + o0), dsr("ds_read_b64_tr_b16", buf[2:4], a, addr - base + o1)]

_fa = [0]
def nextA():
    b = FRA[_fa[0] % len(FRA)]; _fa[0] += 1; return b

def frags_stage(st):
    ty, i = STAGES[st]
    out = []
    ch = OPT["chain"]
    if ty in "UP":
        tiles = [(ft, m) for ft in range(7) for m in range(2)] if ty == "U" else list(range(16))
        order = [(t, sl) for t in tiles for sl in range(2)] if ch else [(t, sl) for sl in range(2) for t in tiles]
        for t, sl in order:
            ks = 2 * i + sl
            b = nextA()
            if ty == "U":
                ft, m = t
                rd = tr2(b, vNaddrLo, vNaddrHi, RB[st % 4] + sl * SLOT + m * 8 * BSTR + ft * 32, 0, 256); acc = GU[m][ft]
            else:
                rd = tr2(b, vNaddrLo, vNaddrHi, RB[st % 4] + sl * SLOT + t * 32, 0, 8 * BSTR); acc = QT[t]
            out.append(Frag(st, b, rd, [mfma(acc[u], b, XN[u][ks], 0 if ks == 0 else acc[u]) for u in range(2)]))
            out[-1].key = (ty, ks)
            if ch: out[-1].chain = (st, t)
    else:
        cd = OPT["chaind"] if ch else 1
        for sl in range(2):
            grp = 2 * i + sl
            if grp > 6: continue
            acc = ACCD[grp & 1]
            for k0 in range(0, 4, cd):
                for nt in range(4):
                    for kf in range(k0, k0 + cd):
                        b = nextA()
                        base = RB[st % 4] + sl * SLOT + 2 * kf * 128 + nt * 32
                        out.append(Frag(st, b, tr2(b, vPaddrLo, vPaddrHi, base, 0, 128),
                                        [mfma(acc[nt][u], b, HB[u][kf], 0 if kf == 0 else acc[nt][u]) for u in range(2)]))
                        out[-1].key = ("D", grp); out[-1].chain = (grp, k0, nt)
    out[0].first = True
    return out

def frags_K(j, Sn, cinit, kaddr=None, f0=0):
    st = stK(j)
    out = []
    for f in range(16):
        kt, ks = f >> 3, f & 7
        b = FRV[BSEQ[f0 + f]]
        rb = RB[st % 4]
        a, base = (vKaddr, HALF) if kaddr is None else (kaddr, 0)
        rd = [dsr("ds_read_b128", b, a, rb - base + kt * 512 + ks * 64)]
        mf = []
        for u in range(4):
            d = Sn[u][4 * kt:4 * kt + 4]
            mf.append(mfma(d, b, Q[u][ks], cinit[u] if ks == 0 else d))
        if OPT["chain"] and OPT["bous"] and (f >> 1) & 1: mf.reverse()
        out.append(Frag(st, b, rd, mf, first=(f == 0)))
        if OPT["chain"]: out[-1].chain = ("K", f >> 1)
    return out

def frags_V(j, Sc, zero=False, vaddr=None, f0=16):
    st = stV(j)
    out = []
    for f in range(16):
        b = FRV[BSEQ[f0 + f]]
        rb = RB[st % 4]
        a, base = (vVaddr, 0) if vaddr is None else (vaddr, HALF)
        rd = [dsr("ds_read_b64_tr_b16", b[2 * jj:2 * jj + 2], a, rb - base + jj * 512 + f * 32) for jj in range(2)]
        out.append(Frag(st, b, rd, [mfma(O[f][u], b, Sc[u][0:4], 0 if zero else O[f][u]) for u in range(4)], first=(f == 0)))
    return out

FREEQ = [V(128 + (dt * 2 + u) * 4, 4) for dt in range(1, 16, 2) for u in range(2)]
OB = [[V(128 + (2 * ks * 2 + u) * 4, 4) for ks in range(8)] for u in range(2)]
FRW = ([V(96 + 4 * i, 4) for i in range(8)] + FREEQ[:8])[:OPT["nba"]]
def frags_W():
    out = []
    n = 0
    cd = OPT["chaind"] if OPT["chain"] else 1
    for grp in range(7):
        st = W0 + grp
        acc = ACCD[grp & 1]
        for k0 in range(0, 8, cd):
            for nt in range(4):
                for ks in range(k0, k0 + cd):
                    sl, kq = ks >> 2, ks & 3
                    b = FRW[n % len(FRW)]; n += 1
                    base = RB[st % 4] + sl * SLOT + 2 * kq * 128 + nt * 32
                    out.append(Frag(st, b, tr2(b, vPaddrLo, vPaddrHi, base, 0, 128),
                                    [mfma(acc[nt][u], b, OB[u][ks], 0 if ks == 0 else acc[nt][u]) for u in range(2)],
                                    first=(ks == 0 and nt == 0)))
                    out[-1].chain = (grp, k0, nt)
    return out

def section(frags, npre, nxt, extra=None, post_extra=None, dma_first=None, verbose=False, no_dma_after=None):
    bb = []; first = [None] * len(frags); last = [None] * len(frags)
    i = 0
    while i < len(frags):
        k = i + 1
        while k < len(frags) and frags[i].chain is not None and frags[k].chain == frags[i].chain: k += 1
        for u in range(len(frags[i].mfmas)):
            for g_ in range(i, k):
                if first[g_] is None: first[g_] = len(bb)
                last[g_] = len(bb); bb.append(frags[g_].mfmas[u])
        i = k
    n = len(bb)
    lastuse = {}
    rel_of = {}
    seq = list(frags) + list(nxt)
    for i, f in enumerate(seq):
        key = str(f.buf)
        rel_of[i] = lastuse.get(key, -1)
        if i < len(frags): lastuse[key] = last[i]
        else: lastuse[key] = n - 1
    rd = []; bar = {}
    prev = -1
    for i in range(npre, len(seq)):
        f = seq[i]
        rel = max(rel_of[i], prev)
        if f.first:
            rel = min(n - 1, max(rel, prev + OPT["bardelay"]))
            rd.append(Item(bar_ops(f.st), rel=rel, dl=rel)); bar[f.st] = rel
        for o in f.reads: rd.append(Item(o, rel=min(rel, n - 1), dl=min(n - 1, rel + 2)))
        prev = rel
    post = {}
    for i in range(1, len(frags)): post[first[i] - 1] = [wait_regs(frags[i].buf.regs())]
    if nxt: post[n - 1] = [wait_regs(nxt[0].buf.regs())]
    dm = []
    bars = sorted(bar.items(), key=lambda x: x[1])
    if dma_first is not None:
        hi = max((bars[0][1] if bars else n) - 1, 8)
        lst = dma_first if isinstance(dma_first, list) else [dma_first]
        for k, s_ in enumerate(lst): dm += dma_items(s_, hi * k // len(lst), hi * (k + 1) // len(lst))
    carry = None
    for k, (s_, g) in enumerate(bars):
        if k + 1 < len(bars):
            if no_dma_after is None or s_ + 3 <= no_dma_after: dm += dma_items(s_ + 3, g + 1, bars[k + 1][1] - 1)
        else: carry = s_ + 3
    class Info: pass
    info = Info(); info.first, info.last, info.bar, info.n = first, last, bar, n
    streams = dict(rd=rd, dma=dm)
    if extra: streams.update(extra(info))
    if post_extra:
        for g, ops in post_extra(info).items():
            post[g] = post.get(g, []) + ops
    return schedule2(bb, streams, OPT["cap"], post=post, verbose=verbose), carry

def xreduce(op, x, t):
    return [valu("v_mov_b32", t, x), perm16(x, t), valu(op, x, x, t), valu("v_mov_b32", t, x), perm32(x, t), valu(op, x, x, t)]

def round_bf16(x):
    return [valu("v_cvt_pk_bf16_f32", x, x, x), valu("v_and_b32", x, 0xffff0000, x)]

def stamp(k, which=1):
    if OPT["stamps"] != which: return []
    return [raw(f"{TIMER} s[100:101]", "smem"), raw("s_waitcnt lgkmcnt(0)", "wait"), raw(f"s_mov_b32 s{sStamp + k}, s100")]

sDBG = S(64, 4)
sOUT = S(68, 4)
sPF = S(92, 4)
sPFoff = S(96)
sCW = S(97)
vPFd = V(13)
vPFa = V(9)
def pfload(voff, srd_, soff, off=0):
    o = bload(vPFd, voff, srd_, soff, off=off, tag="pf", flags=["", "nt", "sc1"][OPT["pfflag"]]); o.wr = []
    return o
PFFLAG = ["", "nt", "sc1"][OPT["pfflag"]]
def setup():
    o = []; e = o.append
    e(raw("s_cmp_ge_u32 s2, 256")); e(raw("s_cbranch_scc1 L_done", "branch"))
    e(raw("s_load_dwordx16 s[64:79], s[0:1], 0", "smem"))
    e(raw("s_load_dwordx2 s[4:5], s[0:1], 64", "smem"))
    e(raw("s_load_dwordx2 s[6:7], s[0:1], 88", "smem"))
    if OPT["stamps"]: e(raw(f"{TIMER} s[100:101]", "smem"))
    if OPT["delay"]:
        e(salu("s_mul_i32", sTmp[0], S(2), 37)); e(salu("s_and_b32", sTmp[0], sTmp[0], 15)); e(salu("s_mul_i32", sTmp[0], sTmp[0], OPT["delay"]))
        e(label("L_dly")); e(salu("s_cmp_eq_u32", sTmp[0], 0)); e(raw("s_cbranch_scc1 L_dlyd", "branch")); e(raw("s_sleep 64", "salu"))
        e(salu("s_sub_u32", sTmp[0], sTmp[0], 1)); e(raw("s_branch L_dly", "branch")); e(label("L_dlyd"))
    if OPT["pfcode"]:
        e(raw("s_getpc_b64 s[98:99]\nL_pc:", "salu", wr=["s98", "s99"]))
        e(salu("s_bfe_u32", sTmp[0], S(2), 0x30003))
        e(raw(f"s_mul_i32 {sTmp[0]}, {sTmp[0]}, (L_end-L_pc-16384)/7", "salu", rd=sTmp[0].regs(), wr=sTmp[0].regs()))
        e(salu("s_and_b32", sTmp[0], sTmp[0], 0xffffffc0))
        e(valu("v_and_b32", vP[1], 0xfe if OPT["pf128"] else 0xff, V(0)))
        e(valu("v_lshlrev_b32", vP[1], 6, vP[1])); e(valu("v_add_u32", vP[1], sTmp[0], vP[1]))
        e(Op(f"global_load_dword {vPFd}, {vP[1]}, s[98:99]", "vmem", rd=vP[1].regs() + ["s98", "s99"], tag="pf"))
    e(valu("v_lshrrev_b32", vP[0], 6, V(0)))
    e(valu("v_and_b32", vLane, 63, V(0)))
    e(valu("v_readfirstlane_b32", sWave, vP[0]))
    if OPT["hmap"] == 2:
        e(salu("s_and_b32", sHead, S(2), 7)); e(salu("s_lshl_b32", sHead, sHead, 1))
        e(salu("s_bfe_u32", sTmp[0], S(2), 0x10003)); e(salu("s_add_u32", sHead, sHead, sTmp[0]))
        e(salu("s_lshr_b32", sQblk, S(2), 4))
    else:
        e(salu("s_bfe_u32", sHead, S(2), 0x20001)); e(salu("s_lshl_b32", sHead, sHead, 2))
        e(salu("s_bfe_u32", sTmp[0], S(2), 0x20003)); e(salu("s_add_u32", sHead, sHead, sTmp[0]))
        e(salu("s_lshr_b32", sQblk, S(2), 5)); e(salu("s_lshl_b32", sQblk, sQblk, 1))
        e(salu("s_and_b32", sTmp[0], S(2), 1)); e(salu("s_add_u32", sQblk, sQblk, sTmp[0]))
    g, q16 = vP[1], vP[2]
    e(valu("v_lshrrev_b32", g, 4, vLane)); e(valu("v_and_b32", q16, 15, vLane))
    sHi, sLo = sTmp[1], sTmp[2]
    e(salu("s_lshr_b32", sHi, sWave, 1)); e(salu("s_and_b32", sLo, sWave, 1))
    e(salu("s_lshl_b32", sTmp[0], sQblk, 7)); e(salu("s_lshl_b32", sTmp[3], sWave, 5)); e(salu("s_add_u32", sTmp[0], sTmp[0], sTmp[3]))
    e(salu("s_mul_i32", sTmp[6], sTmp[0], 896))
    e(salu("s_mul_i32", sTmp[5], sTmp[3], XSTR)); e(salu("s_add_u32", sTmp[5], sTmp[5], XB))
    e(valu("v_mul_u32_u24", vP[3], XSTR, q16)); e(valu("v_lshl_add_u32", vP[3], g, 4, vP[3])); e(valu("v_add_u32", vP[3], sTmp[5], vP[3]))
    e(valu("v_and_b32", vP[4], 1, g)); e(valu("v_lshrrev_b32", vP[5], 1, g))
    e(valu("v_lshlrev_b32", vP[6], 2, vP[4])); e(valu("v_lshl_add_u32", vP[6], vP[5], 4, vP[6]))
    e(valu("v_mul_u32_u24", vDmaU, 3584, vP[6])); e(valu("v_lshl_add_u32", vDmaU, q16, 4, vDmaU))
    e(salu("s_mul_i32", sM0, sHi, SLOT)); e(salu("s_mul_i32", sTmp[0], sLo, 8 * BSTR)); e(salu("s_add_u32", sM0, sM0, sTmp[0]))
    e(salu("s_mul_i32", sUoff, sHi, 32 * 3584)); e(salu("s_mul_i32", sTmp[0], sHead, 224)); e(salu("s_add_u32", sUoff, sUoff, sTmp[0]))
    e(salu("s_lshl_b32", sKoff, sHi, 14)); e(salu("s_lshl_b32", sTmp[0], sLo, 12)); e(salu("s_add_u32", sKoff, sKoff, sTmp[0]))
    e(salu("s_mov_b32", sVoff, sKoff))
    e(salu("s_lshl_b32", sPoff, sHi, 18)); e(salu("s_lshl_b32", sTmp[0], sLo, 15)); e(salu("s_add_u32", sPoff, sPoff, sTmp[0]))
    e(salu("s_lshl_b32", sTmp[0], sHead, 9)); e(salu("s_add_u32", sPoff, sPoff, sTmp[0]))
    e(salu("s_mul_i32", sDoff, sHead, 112 * 896)); e(salu("s_mul_i32", sTmp[0], sLo, 8 * 896)); e(salu("s_add_u32", sDoff, sDoff, sTmp[0]))
    e(salu("s_lshl_b32", sTmp[3], sHi, 7)); e(salu("s_add_u32", sDoff, sDoff, sTmp[3]))
    e(salu("s_mul_i32", sWoff, sHead, 256 * 896)); e(salu("s_add_u32", sWoff, sWoff, sTmp[0]))
    e(salu("s_mul_i32", sTmp[3], sHi, 128 * 896)); e(salu("s_add_u32", sWoff, sWoff, sTmp[3]))
    e(salu("s_mul_i32", sKh, sLo, SLOT))
    e(salu("s_lshl_b32", sTmp[0], sQblk, 4)); e(salu("s_add_u32", sTmp[0], sTmp[0], sHead)); e(salu("s_mul_i32", sTmp[0], sTmp[0], PBLK))
    e(salu("s_lshl_b32", sTmp[3], sWave, 14)); e(salu("s_add_u32", sStF[0], sTmp[0], sTmp[3]))
    e(salu("s_mul_i32", sTmp[3], sWave, 12288)); e(salu("s_add_u32", sStF[1], sTmp[0], sTmp[3])); e(salu("s_add_u32", sStF[1], sStF[1], 65536))
    e(salu("s_add_u32", sStS[0], sStF[0], PART)); e(salu("s_add_u32", sStS[1], sStF[1], PART))
    e(valu("v_lshrrev_b32", vP[6], 5, vLane)); e(valu("v_and_b32", vP[7], 31, vLane))
    e(valu("v_lshlrev_b32", vDma, 13, vP[6])); e(valu("v_lshl_add_u32", vDma, vP[7], 4, vDma))
    e(valu("v_lshlrev_b32", vDmaP, 17, vP[6])); e(valu("v_lshl_add_u32", vDmaP, vP[7], 4, vDmaP))
    l8, l7 = vP[8], vP[9]
    e(valu("v_lshrrev_b32", l8, 3, vLane)); e(valu("v_and_b32", l7, 7, vLane))
    e(valu("v_mul_u32_u24", vDmaN, 16 * 896, l8)); e(valu("v_lshl_add_u32", vDmaN, l7, 4, vDmaN))
    e(valu("v_lshlrev_b32", vSt, 4, vLane))
    e(valu("v_bfe_u32", vP[6], vLane, 2, 2)); e(valu("v_lshl_add_u32", vP[6], vP[4], 2, vP[6]))
    e(valu("v_and_b32", vP[7], 3, vLane))
    e(valu("v_mul_u32_u24", vNaddrLo, BSTR, vP[6])); e(valu("v_lshl_add_u32", vNaddrLo, vP[5], 9, vNaddrLo))
    e(valu("v_lshl_add_u32", vNaddrLo, vP[7], 3, vNaddrLo)); e(valu("v_add_u32", vNaddrHi, HALF, vNaddrLo))
    e(valu("v_lshrrev_b32", vP[6], 2, vLane)); e(valu("v_mul_u32_u24", vPaddrLo, BSTR, vP[6]))
    e(valu("v_lshl_add_u32", vPaddrLo, vP[7], 3, vPaddrLo)); e(valu("v_add_u32", vPaddrHi, HALF, vPaddrLo))
    e(valu("v_add_u32", vVaddr, sKh, vPaddrLo))
    e(valu("v_mul_u32_u24", vKaddr, BSTR, q16)); e(valu("v_lshl_add_u32", vKaddr, g, 4, vKaddr))
    e(valu("v_add_u32", vKaddr, sKh, vKaddr)); e(valu("v_add_u32", vKaddr, HALF, vKaddr))
    e(raw("s_waitcnt lgkmcnt(0)", "wait"))
    if OPT["stamps"]: e(raw(f"s_mov_b32 s{sStamp}, s100"))
    o += stamp(1, 2) + stamp(1, 4)
    def srd(d, lo, size):
        e(salu("s_mov_b32", d[0], S(lo))); e(salu("s_mov_b32", d[1], S(lo + 1)))
        e(salu("s_mov_b32", d[2], size)); e(salu("s_mov_b32", d[3], 0x20000))
    srd(sX, 64, 2048 * 896)
    e(salu("s_cmp_eq_u32", sLo, 0))
    e(salu("s_cselect_b32", sU[0], S(76), S(78))); e(salu("s_cselect_b32", sU[1], S(77), S(79)))
    e(salu("s_cselect_b32", sPF[0], S(66), S(68))); e(salu("s_cselect_b32", sPF[1], S(67), S(69)))
    e(salu("s_mov_b32", sU[2], 448 * 3584)); e(salu("s_mov_b32", sU[3], 0x20000))
    def pf(voff, srd_, soff, off=0): e(pfload(voff, srd_, soff, off))
    if OPT["sweep"]:
        srd(sWQ, 70, 448 * 8192)
        e(valu("v_lshrrev_b32", vP[10], 1, vLane)); e(valu("v_lshlrev_b32", vP[10], 7, vP[10]))
        if OPT["sweep"] & 1:
            e(salu("s_lshl_b32", sTmp[0], S(2), 1)); e(salu("s_add_u32", sTmp[0], sTmp[0], sHi)); e(salu("s_mul_i32", sTmp[0], sTmp[0], 3136))
            e(salu("s_and_b32", sTmp[0], sTmp[0], 0xffffff80))
            pf(vP[10], sU, sTmp[0])
        if OPT["sweep"] & 2:
            e(salu("s_lshl_b32", sTmp[0], S(2), 2)); e(salu("s_add_u32", sTmp[0], sTmp[0], sWave)); e(salu("s_mul_i32", sTmp[0], sTmp[0], 3584))
            pf(vP[10], sWQ, sTmp[0])
    if OPT["pf"]:
      if OPT['pf128']:
        e(valu("v_and_b32", vP[10], 3, vLane)); e(valu("v_min_u32", vP[10], 2, vP[10])); e(valu("v_lshrrev_b32", vP[11], 2, vLane))
        e(valu("v_mul_u32_u24", vP[11], 3584, vP[11])); e(valu("v_lshl_add_u32", vP[10], vP[10], 7, vP[11]))
        e(salu("s_mul_i32", sTmp[0], sQblk, 28)); e(salu("s_mul_i32", sTmp[3], sHi, 14)); e(salu("s_add_u32", sTmp[0], sTmp[0], sTmp[3]))
        e(salu("s_mul_i32", sTmp[0], sTmp[0], 3584)); e(salu("s_mul_i32", sTmp[3], sHead, 224)); e(salu("s_add_u32", sTmp[0], sTmp[0], sTmp[3]))
        e(salu("s_and_b32", sTmp[0], sTmp[0], 0xffffff80))
        pf(vP[10], sU, sTmp[0])
      else:
        e(valu("v_min_u32", vP[10], 4, l7)); e(valu("v_mul_u32_u24", vP[11], 3584, l8)); e(valu("v_lshl_add_u32", vP[10], vP[10], 6, vP[11]))
        e(salu("s_mul_i32", sTmp[0], sQblk, 28)); e(salu("s_mul_i32", sTmp[3], sHi, 14)); e(salu("s_add_u32", sTmp[0], sTmp[0], sTmp[3]))
        e(salu("s_mul_i32", sTmp[0], sTmp[0], 3584)); e(salu("s_mul_i32", sTmp[3], sHead, 224)); e(salu("s_add_u32", sTmp[0], sTmp[0], sTmp[3]))
        e(salu("s_and_b32", sTmp[0], sTmp[0], 0xffffffc0)); e(salu("s_add_u32", sTmp[3], sTmp[0], 8 * 3584))
        pf(vP[10], sU, sTmp[0]); pf(vP[10], sU, sTmp[3])
    e(salu("s_lshl_b32", sTmp[0], sHead, 20))
    for d, lo in ((sK, 66), (sV, 68)):
        e(salu("s_add_u32", d[0], S(lo), sTmp[0])); e(salu("s_addc_u32", d[1], S(lo + 1), 0))
        e(salu("s_mov_b32", d[2], 1 << 20)); e(salu("s_mov_b32", d[3], 0x20000))
    e(salu("s_add_u32", sPF[0], sPF[0], sTmp[0])); e(salu("s_addc_u32", sPF[1], sPF[1], 0))
    e(salu("s_mov_b32", sPF[2], 1 << 20)); e(salu("s_mov_b32", sPF[3], 0x20000))
    srd(sWQ, 70, 448 * 8192); srd(sWO, 72, 4096 * 896); srd(sW2, 4, 1792 * 896); srd(sWS, 6, 2 * PART + (2 << 20))
    if OPT["pf"] and OPT["wqearly"]:
        e(valu("v_lshrrev_b32", vP[10], 3, vLane)); e(valu("v_and_b32", vP[11], 6 if OPT["pf128"] else 7, vLane))
        e(valu("v_lshlrev_b32", vP[10], 13, vP[10])); e(valu("v_lshl_add_u32", vP[10], vP[11], 6, vP[10]))
        e(salu("s_mul_i32", sTmp[0], sQblk, 28)); e(salu("s_mul_i32", sTmp[3], sWave, 7)); e(salu("s_add_u32", sTmp[0], sTmp[0], sTmp[3]))
        e(salu("s_lshl_b32", sTmp[0], sTmp[0], 13)); e(salu("s_lshl_b32", sTmp[3], sHead, 9)); e(salu("s_add_u32", sTmp[0], sTmp[0], sTmp[3]))
        pf(vP[10], sWQ, sTmp[0])
    e(salu("s_lshl_b32", sCW, sQblk, 4)); e(salu("s_add_u32", sCW, sCW, sHead)); e(salu("s_lshl_b32", sCW, sCW, 8)); e(salu("s_add_u32", sCW, sCW, CNT))
    e(valu("v_mov_b32", V(16), 0)); e(valu("v_mov_b32", V(17), 0))
    e(raw("s_mov_b64 exec, 1", "salu")); e(bstore(V(16, 2), V(16), sWS, sCW, tag="stF", flags="sc1")); e(raw("s_mov_b64 exec, -1", "salu"))
    if OPT["touch"]:
        e(valu("v_mov_b32", vP[10], 0))
        for srd_, so in ((sWQ, sPoff), (sK, 0), (sV, 0), (sW2, sDoff), (sWO, sWoff), (sWS, sStF[0]), (sWS, sStS[0])): pf(vP[10], srd_, so)
    o += stamp(2, 4)
    e(valu("v_mov_b32", vP[11], vP[3]))
    e(salu("s_mov_b32", "m0", sTmp[5]))
    xg = []
    for r in range(32):
        g_ = [dma(vSt, sX, sTmp[6], off=(r % 4) * 896, tag="x%d" % (r // 16))]
        if r % 4 < 3: g_.append(salu("s_add_u32", "m0", "m0", XSTR - 896))
        else: g_ += [salu("s_add_u32", "m0", "m0", XSTR + 3 * 896), salu("s_add_u32", sTmp[6], sTmp[6], 4 * 896)]
        xg.append(g_)
    EXM, EXF = raw("s_mov_b32 exec_hi, 0x00ffffff", "salu"), raw("s_mov_b32 exec_hi, -1", "salu")
    e(EXM)
    for g_ in xg[:OPT["xfirst"]]: o += g_
    e(EXF)
    mid0 = [[EXM] + g_ + [EXF] for g_ in xg[OPT["xfirst"]:]]
    mid0[-1] += m0_init(0)
    mid1 = dma_ops(0)
    o += stamp(2, 2) + stamp(6, 4)
    late = []
    for st in (1,):
        for grp in dma_ops(st): late += grp
    e(raw("s_load_dwordx4 s[72:75], s[0:1], 72", "smem")); e(raw("s_waitcnt lgkmcnt(0)", "wait"))
    srd(sOUT, 72, 2048 * 896); srd(sDBG, 74, 256)
    if OPT["touch"]:
        pf(vP[10], sDBG, 0); pf(vP[10], sOUT, sTmp[6])
    pfl = []
    e = pfl.append
    t0, t1 = sTmp[5], sTmp[6]
    va, vb = V(14), V(15)
    if OPT["pf"]:
        R = 448 // OPT["wqp"]; L = R // 16; sh = {28: 1, 14: 2, 7: 3}[L]
        e(salu("s_lshl_b32", t0, sQblk, 2)); e(salu("s_add_u32", t0, t0, sWave)); e(salu("s_mul_i32", t0, t0, L))
        e(valu("v_lshrrev_b32", va, sh, vLane)); e(valu("v_min_u32", va, L - 1, va)); e(valu("v_add_u32", va, t0, va))
        e(valu("v_and_b32", vb, 3, va)); e(valu("v_lshrrev_b32", va, 2, va)); e(valu("v_lshlrev_b32", va, 13, va))
        e(valu("v_lshl_add_u32", va, vb, 7, va)); e(salu("s_lshl_b32", t0, sHead, 9))
        for k in range(OPT["wqp"]):
            pf(va, sWQ, t0)
            if k + 1 < OPT["wqp"]: e(salu("s_add_u32", t0, t0, R * 8192))
        if OPT["pf128"]: e(valu("v_lshrrev_b32", va, 2, vLane)); e(valu("v_lshlrev_b32", va, 7, va))
        else: e(valu("v_lshlrev_b32", va, 5, vLane))
        e(salu("s_lshl_b32", t0, sQblk, 2)); e(salu("s_add_u32", t0, t0, sWave)); e(salu("s_mul_i32", t0, t0, 25 * 64))
        e(salu("s_mul_i32", t1, sHead, 112 * 896)); e(salu("s_add_u32", t0, t0, t1))
        pf(va, sW2, t0)
        e(salu("s_lshr_b32", t0, sWave, 1))
        e(salu("s_lshl_b32", sPFoff, sQblk, 1)); e(salu("s_add_u32", sPFoff, sPFoff, t0)); e(salu("s_lshl_b32", sPFoff, sPFoff, 11))
        for k in range(OPT["pfdist"]):
            pf(va, sPF, sPFoff); e(salu("s_add_u32", sPFoff, sPFoff, 65536))
    return o, (late, mid0, mid1), pfl

vR = [vP[12], vP[13]]; vNB = [vP[14], vP[15]]
def sprinkle(ops, groups):
    out = []; n = len(groups); step = len(ops) // (n + 1) if n else 0
    k = 0
    for i, o_ in enumerate(ops):
        if k < n and i == step * k: out += groups[k]; k += 1
        out.append(o_)
    for g_ in groups[k:]: out += g_
    return out

def ln_stats(x):
    late, mid0, mid1 = x
    o = []
    ones = sTmp[4]
    o.append(salu("s_mov_b32", ones, 0x3f803f80))
    for i in range(8): o.append(valu("v_mov_b32", vP[i], 0))
    for u in range(2):
        o.append(wait_vm_tag(["x%d" % u]))
        if u == 1: o += stamp(7, 4)
        for ks in range(14): o.append(dsr("ds_read_b128", XN[u][ks], vP[11], u * 16 * XSTR + ks * 64))
        w = []; e = w.append
        a = [vP[4 * u + i] for i in range(4)]
        for ks in range(14):
            for i in range(4):
                x = XN[u][ks][i]
                e(valu("v_dot2c_f32_bf16", a[i & 1], ones, x)); e(valu("v_dot2c_f32_bf16", a[2 + (i & 1)], x, x))
        if u == 1:
            o += sprinkle(w, mid1) + [wait_lgkm0(), barrier()] + late
            w = []; e = w.append
        t = vP[8 + u]
        e(valu("v_add_f32", a[0], a[0], a[1])); e(valu("v_add_f32", a[2], a[2], a[3]))
        w += xreduce("v_add_f32", a[0], t) + xreduce("v_add_f32", a[2], t)
        mean, var = a[0], a[2]
        e(valu("v_mul_f32", mean, 1.0 / 448, mean)); e(valu("v_mul_f32", var, 1.0 / 448, var))
        e(valu("v_fma_f32", var, f"-{mean}", mean, var)); e(valu("v_max_f32", var, 0, var))
        w += round_bf16(var)
        e(valu("v_add_f32", var, 1e-5, var)); w += round_bf16(var)
        e(valu("v_sqrt_f32", var, var)); w += round_bf16(var)
        e(valu("v_rcp_f32", vR[u], var))
        w += round_bf16(mean)
        e(valu("v_mul_f32", vNB[u], mean, vR[u])); e(valu("v_sub_f32", vNB[u], 0, vNB[u]))
        for ks in range(14 if u == 0 else 2): w += ln_apply(ks, u, True)
        o += sprinkle(w, mid0) if u == 0 else w
    return o

def ln_apply(ks, u, burst=False):
    o = []; e = o.append
    if burst:
        t = V(16 + 8 * (ks & 1), 8)
        sel = "op_sel:[0,%d,%d] op_sel_hi:[1,%d,%d]" % (u, u, u, u)
        for i in range(4):
            e(valu("v_lshlrev_b32", t[2 * i], 16, XN[u][ks][i])); e(valu("v_and_b32", t[2 * i + 1], 0xffff0000, XN[u][ks][i]))
        for i in range(4): e(valu("v_pk_fma_f32", t[2 * i:2 * i + 2], t[2 * i:2 * i + 2], V(252, 2), V(254, 2), mods=sel))
        for i in range(4): e(valu("v_cvt_pk_bf16_f32", XN[u][ks][i], t[2 * i], t[2 * i + 1]))
        return o
    for i in range(4):
        x = XN[u][ks][i]
        lo, hi = vP[2 * i], vP[2 * i + 1]
        e(valu("v_lshlrev_b32", lo, 16, x)); e(valu("v_and_b32", hi, 0xffff0000, x))
        e(valu("v_fma_f32", lo, lo, vR[u], vNB[u])); e(valu("v_fma_f32", hi, hi, vR[u], vNB[u]))
        e(valu("v_cvt_pk_bf16_f32", x, lo, hi))
    return o

def silu_ops():
    o = []; e = o.append
    for ft in range(7):
        for u in range(2):
            g, up = GU[0][ft][u], GU[1][ft][u]
            t = [vP[4 * (u & 1) + i] for i in range(4)]
            for r in range(4): e(valu("v_mul_f32", t[r], -LOG2E, g[r]))
            for r in range(4): e(valu("v_exp_f32", t[r], t[r]))
            for r in range(4): e(valu("v_mul_f32", g[r], g[r], up[r]))
            for r in range(4): e(valu("v_add_f32", t[r], 1.0, t[r]))
            for r in range(4): e(valu("v_rcp_f32", t[r], t[r]))
            for r in range(4): e(valu("v_mul_f32", g[r], g[r], t[r]))
            for p in range(2):
                e(valu("v_cvt_pk_bf16_f32", up[p], g[2 * p], g[2 * p + 1]))
            for p in range(2):
                e(valu("v_accvgpr_write_b32", HB[u][ft >> 1][2 * (ft & 1) + p], up[p]))
    for u in range(2):
        for p in range(2): e(valu("v_accvgpr_write_b32", HB[u][3][2 + p], 0))
    return o

vXaddr = vT[3]
def qconv_ops(xbase_own):
    o = []; e = o.append
    for u in range(2):
        for ks in range(8):
            q = Q[u][ks]
            t = [vP[8 * (ks & 1) + i] for i in range(8)]
            for h in range(2):
                for r in range(4): e(valu("v_accvgpr_read_b32", t[4 * h + r], QT[2 * ks + h][u][r]))
            for i in range(8): e(valu("v_mul_f32", t[i], QSCALE, t[i]))
            for p in range(4): e(valu("v_cvt_pk_bf16_f32", q[p], t[2 * p], t[2 * p + 1]))
            e(perm32(q[0], q[2])); e(perm32(q[1], q[3])); e(perm16(q[0], q[2])); e(perm16(q[1], q[3]))
            e(dsw("ds_write_b128", vXaddr, q, (u * 8 + ks) * 1024))
    return o

def piece(acc, grp, u, half, pk, sbase, st):
    cv = []
    for t in range(2):
        a = acc[2 * half + t][u]
        cv += [valu("v_cvt_pk_bf16_f32", pk[2 * t], a[0], a[1]), valu("v_cvt_pk_bf16_f32", pk[2 * t + 1], a[2], a[3])]
    rem = grp * 2 + half
    so = [salu("s_add_u32", st, sbase[0], (u * 8 + rem) * 1024) if rem < 8 else salu("s_add_u32", st, sbase[1], (u * 6 + rem - 8) * 1024),
          bstore(pk, vSt, sWS, st, tag="stF" if sbase is sStF else ("stA" if rem < 8 else "stB"), flags="sc1")]
    return cv, so

def paced_out(avail, reuse, n, sbase, quads, pace):
    cvi, sti, left = [], [], []
    tS = []
    nq = len(quads)
    t = -10**9
    for p in range(28):
        g, u, half = p // 4, (p >> 1) & 1, p & 1
        cv, so = piece(ACCD[g & 1], g, u, half, quads[p % nq], sbase, sTmp[p % 4])
        c0 = min(avail[g], n - 1)
        if p >= nq:
            assert tS[p - nq] is not None, "staging overflow"
            c0 = max(c0, tS[p - nq] + 3)
        c1 = max(c0, min(reuse[g], c0 + 12, n - 1))
        assert c0 <= max(reuse[g], avail[g]), (p, c0, reuse[g])
        cvi += [Item(o, rel=c0, dl=c1) for o in cv]
        t = max(t + pace, c1 + 1)
        if t + 2 < n:
            sti += [Item(so[0], rel=t - 1, dl=t + 1), Item(so[1], rel=t, dl=t + 2)]; tS.append(t + 2)
        else:
            left.append(so); tS.append(None)
    return cvi, sti, left

def items(ops, rel, dl): return [Item(o, rel=rel, dl=dl) for o in ops]

def exp_groups(Sc):
    groups = []
    for u in range(4):
        for hp in range(2):
            r = 4 * hp; x = Sc[u]
            groups.append([valu("v_exp_f32", x[r], x[r]), valu("v_exp_f32", x[r + 1], x[r + 1]), valu("v_exp_f32", x[r + 2], x[r + 2]),
                           valu("v_add_f32", vL[u], vL[u], x[r]), valu("v_add_f32", vL[u], vL[u], x[r + 1]),
                           valu("v_exp_f32", x[r + 3], x[r + 3]),
                           valu("v_cvt_pk_bf16_f32", x[2 * hp], x[r], x[r + 1]),
                           valu("v_add_f32", vL[u], vL[u], x[r + 2]), valu("v_add_f32", vL[u], vL[u], x[r + 3]),
                           valu("v_cvt_pk_bf16_f32", x[2 * hp + 1], x[r + 2], x[r + 3])])
    return groups
NG1 = OPT["split"] // 4
def sm_part(Sc, part, rel, dl):
    g = exp_groups(Sc)
    g = g[:NG1] if part == 0 else g[NG1:]
    return [Item(o, rel=rel, dl=dl) for grp in g for o in grp]

def max_items(Sn, rel0, rel1, dl):
    r0 = [Sn[u][r] for u in range(4) for r in range(4)]
    r1 = [Sn[u][4 + r] for u in range(4) for r in range(4)]
    seq = [(valu("v_max3_f32", vTmax, r0[0], r0[1], r0[2]), rel0)]
    for i in range(3, 15, 2): seq.append((valu("v_max3_f32", vTmax, vTmax, r0[i], r0[i + 1]), rel0))
    seq.append((valu("v_max3_f32", vTmax, vTmax, r0[15], r1[0]), rel1))
    for i in range(1, 15, 2): seq.append((valu("v_max3_f32", vTmax, vTmax, r1[i], r1[i + 1]), rel1))
    seq.append((valu("v_max_f32", vTmax, vTmax, r1[15]), rel1))
    seq.append((valu("v_cmp_lt_f32", "vcc", THR, vTmax), rel1))
    return [Item(o, rel=r, dl=dl) for o, r in seq]

stubs = []
def branch(kind, site, par):
    nm = f"{kind}_{site}"
    if nm not in [s[0] for s in stubs]: stubs.append((nm, f"L_r1_{par}" if kind == "r1" else "L_r2"))
    return [raw(f"s_cbranch_vccnz L_stub_{nm}", "branch", rd=["vcc"]), label(f"L_ret_{nm}")]

def rowmax(x, tm, t2):
    return [valu("v_max3_f32", tm, x[0], x[1], x[2]), valu("v_max3_f32", tm, tm, x[3], x[4]), valu("v_max3_f32", tm, tm, x[5], x[6]),
            valu("v_max_f32", tm, tm, x[7])] + xreduce("v_max_f32", tm, t2)

def rare1(par):
    Sx = SBUF[par]
    ops = [label(f"L_r1_{par}"), nop(7)]
    for u in range(4):
        tm, t2 = vX[0], vX[1]
        ops += rowmax(Sx[u], tm, t2)
        ops.append(valu("v_max_f32", tm, 0, tm))
        for r in range(8): ops.append(valu("v_sub_f32", Sx[u][r], Sx[u][r], tm))
        for r in range(4): ops.append(valu("v_sub_f32", NEGM[u][r], NEGM[u][r], tm))
        ops.append(valu("v_exp_f32", vF[u], f"-{tm}"))
        ops.append(valu("v_mul_f32", vL[u], vL[u], vF[u]))
    return ops + [nop(3), raw(f"s_setpc_b64 {sRet}", "branch", rd=sRet.regs())]

def rare2():
    ops = [label("L_r2"), nop(15)]
    for dt in range(16):
        for u in range(4):
            for i in range(4): ops.append(valu("v_accvgpr_read_b32", vX[i], O[dt][u][i]))
            for i in range(4): ops.append(valu("v_mul_f32", vX[i], vX[i], vF[u]))
            for i in range(4): ops.append(valu("v_accvgpr_write_b32", O[dt][u][i], vX[i]))
    return ops + [nop(3), raw(f"s_setpc_b64 {sRet}", "branch", rd=sRet.regs())]

vV31 = vT[6]
UNR = OPT['unroll']
LOOP_LO = 2
LOOP_HI = 2 + (26 // UNR) * UNR
def iteration(j, carry):
    Sc, Sn = SBUF[j & 1], SBUF[(j + 1) & 1]
    ops = [marker(("iter", j))]
    site = f"{(j - LOOP_LO) % UNR}" if LOOP_LO <= j < LOOP_HI else f"p{j}"
    if j > 0: ops += branch("r2", site, 0)
    brk = OPT["brk"]
    fr = frags_K(j + 1, Sn, NEGM) + frags_V(j, Sc, zero=(j == 0))
    nxt = frags_K(j + 2, Sc, NEGM)[:NPRE] if j < 30 else frags_V(31, Sn, vaddr=vV31, f0=0)[:NPRE]
    def extra(info):
        pfi = []
        if OPT["pf"] and j % 2 == 0 and j < 28:
            pfi = [Item(pfload(vPFa, sPF, sPFoff), rel=56, dl=66), Item(salu("s_add_u32", sPFoff, sPFoff, 65536), rel=57, dl=70)]
        if j == 1:
            pfi = [Item(signal(offF, V(10), V(11)), rel=1, dl=2)]
        if j == 30:
            pfi = [Item(salu("s_lshl_b32", sTmp[0], sQblk, 4), rel=10, dl=40), Item(valu("v_and_b32", V(10), 3 if OPT["fbyte"] else 0, vLane), rel=12, dl=50),
                   Item(valu("v_lshlrev_b32", V(10), 2, V(10)), rel=12, dl=50),
                   Item(bload(V(11), V(10), sDBG, sTmp[0], flags="sc1", tag="pollF"), rel=56, dl=66)]
        if OPT["pf"] and j == 28:
            pfi = [Item(salu("s_lshl_b32", sTmp[0], sQblk, 2), rel=10, dl=40), Item(salu("s_add_u32", sTmp[0], sTmp[0], sWave), rel=10, dl=40),
                   Item(salu("s_mul_i32", sTmp[0], sTmp[0], 3584), rel=10, dl=40), Item(salu("s_mul_i32", sTmp[1], sHead, 256 * 896), rel=10, dl=40),
                   Item(salu("s_add_u32", sTmp[0], sTmp[0], sTmp[1]), rel=10, dl=40),
                   Item(valu("v_and_b32", vPFa, 62 if OPT["pf128"] else 63, vLane), rel=10, dl=50),
                   Item(valu("v_lshlrev_b32", vPFa, 6, vPFa), rel=10, dl=50), Item(pfload(vPFa, sWO, sTmp[0]), rel=56, dl=66)]
        return dict(sm=sm_part(Sc, 1, -1, 61) + sm_part(Sn, 0, brk, 127), mx=max_items(Sn, 36, 67, brk - 1), pf=pfi)
    def pe(info): return {brk: branch("r1", site, (j + 1) & 1)}
    body, carry = section(fr, NPRE, nxt, extra=extra, post_extra=pe, dma_first=carry if carry is not None and carry <= V31 else None,
                          verbose=OPT["verbose"] and j == 2, no_dma_after=V31)
    return ops + body, carry

XA = lambda w: 0
def last_iteration():
    Sc = SBUF[1]
    ops = [marker(("iter", 31))] + branch("r2", "p31", 0)
    fr = frags_V(31, Sc, vaddr=vV31, f0=0)
    vOa, vOb = V(12), V(14)
    pre = [valu("v_lshlrev_b32", vOa, 4, vLane), salu("s_mul_i32", sTmp[0], sWave, 24576), salu("s_lshl_b32", sTmp[1], sWave, 13),
           salu("s_add_u32", sTmp[1], sTmp[1], 3 * STG),
           valu("v_add_u32", vOb, sTmp[1], vOa), valu("v_add_u32", vOa, sTmp[0], vOa)]
    def extra(info):
        wr = []
        for dt in range(12):
            for u in (2, 3):
                wr.append(Item(dsw("ds_write_b128", vOa, O[dt][u], (dt * 2 + u - 2) * 1024), rel=min(63, info.last[dt] + 6), dl=63))
        return dict(sm=sm_part(Sc, 1, -1, -1), wr=wr)
    body, _ = section(fr, NPRE, [], extra=extra)
    ops += pre + body
    ops += [wait_lgkm0(), barrier()]
    for dt in range(12, 16):
        for u in (2, 3): ops.append(dsw("ds_write_b128", vOb, O[dt][u], ((dt - 12) * 2 + u - 2) * 1024))
    return ops

def fcheck(vd, sd):
    if not OPT["fbyte"]: return [valu("v_readfirstlane_b32", sd, vd), raw("s_nop 3", "salu")]
    return [valu("v_cmp_ne_u32", "vcc", 0x01010101, vd), raw("s_nop 3", "salu"), raw("s_cmp_eq_u64 vcc, 0", "salu", rd=["vcc"], wr=["scc"]),
            salu("s_cselect_b32", sd, 16, 0)]

FLG = []
def combine():
    o = [marker(("iter", 90))]; e = o.append
    o += fcheck(V(11), S(76))
    t = vX[0]
    for u in range(4): o += xreduce("v_add_f32", vL[u], t)
    st = V(32 + 4, 4)
    e(valu("v_mov_b32", st[0], NEGM[2][0])); e(valu("v_mov_b32", st[1], vL[2])); e(valu("v_mov_b32", st[2], NEGM[3][0])); e(valu("v_mov_b32", st[3], vL[3]))
    a = vX[1]
    e(salu("s_lshl_b32", sTmp[0], sWave, 10)); e(salu("s_add_u32", sTmp[0], sTmp[0], SPARE))
    e(valu("v_lshlrev_b32", vSt, 4, vLane))
    e(valu("v_add_u32", a, sTmp[0], vSt))
    e(dsw("ds_write_b128", a, st, 0))
    e(salu("s_xor_b32", sTmp[2], sWave, 1))
    e(salu("s_lshl_b32", sTmp[0], sTmp[2], 10)); e(salu("s_add_u32", sTmp[0], sTmp[0], SPARE)); e(valu("v_add_u32", a, sTmp[0], vSt))
    pa, pb = vX[2], vX[3]
    e(salu("s_mul_i32", sTmp[0], sTmp[2], 24576)); e(valu("v_add_u32", pa, sTmp[0], vSt))
    e(salu("s_lshl_b32", sTmp[1], sTmp[2], 13)); e(salu("s_add_u32", sTmp[1], sTmp[1], 3 * STG)); e(valu("v_add_u32", pb, sTmp[1], vSt))
    e(salu("s_cmp_ge_u32", S(76), 16)); e(raw("s_cbranch_scc1 L_pdone_F", "branch"))
    o += poll("F", offF, V(64), V(65))
    o += [wait_lgkm0(), barrier()]
    o += red_addr()
    cur = []
    for x_ in red_loads(0, LDA, [0, 1]):
        cur.append(x_)
        if x_.kind == "vmem": FLG.append(cur); cur = []
    g1 = FLG[:OPT["fl1"]]
    if g1: o += g1.pop(0)
    e(dsr("ds_read_b128", st, a, 0))
    RX = [[V(128 + (dt * 2 + u) * 4, 4) for u in range(2)] for dt in range(16)]
    for dt in range(16):
        for u in range(2):
            if dt < 12: e(dsr("ds_read_b128", RX[dt][u], pa, (dt * 2 + u) * 1024))
            else: e(dsr("ds_read_b128", RX[dt][u], pb, ((dt - 12) * 2 + u) * 1024))
            if (dt * 2 + u) % 6 == 5 and g1: o += g1.pop(0)
    wk = [vF[0], vF[1]]; wp = [vF[2], vF[3]]
    for u in range(2):
        nm_o, l_o, nm_p, l_p = NEGM[u][0], vL[u], st[2 * u], st[2 * u + 1]
        mn, fa, fb = vT[0], vT[1], vT[2]
        e(valu("v_min_f32", mn, nm_o, nm_p))
        e(valu("v_sub_f32", fa, mn, nm_o)); e(valu("v_sub_f32", fb, mn, nm_p))
        e(valu("v_exp_f32", fa, fa)); e(valu("v_exp_f32", fb, fb))
        e(valu("v_mul_f32", mn, fa, l_o)); e(valu("v_fma_f32", mn, fb, l_p, mn))
        e(valu("v_rcp_f32", mn, mn))
        e(valu("v_mul_f32", wk[u], fa, mn)); e(valu("v_mul_f32", wp[u], fb, mn))
    for x_ in g1: o += x_
    o += [wait_lgkm0(), barrier()]
    e(valu("v_lshrrev_b32", vX[0], 3, vLane)); e(valu("v_and_b32", vX[1], 7, vLane))
    e(valu("v_mul_u32_u24", vDmaN, 16 * 896, vX[0])); e(valu("v_lshl_add_u32", vDmaN, vX[1], 4, vDmaN))
    o += m0_init(W0)
    for s_ in range(W0, W0 + 3):
        for grp in dma_ops(s_): o += grp
    e(valu("v_sub_u32", vPaddrLo, vVaddr, sKh)); e(valu("v_add_u32", vPaddrHi, HALF, vPaddrLo))
    e(valu("v_lshlrev_b32", vSt, 4, vLane))
    TMPB = [[A((4 * dt + 2) * 4 + 0, 2) for dt in range(16)], [A((4 * dt + 3) * 4, 2) for dt in range(16)]]
    tt = [V(64 + i) for i in range(16)]
    n = 0
    g2 = FLG[OPT["fl1"]:OPT["fl1"] + OPT["fl2"]]
    for dt in range(16):
        for u in range(2):
            if g2 and (n * OPT["fl2"]) // 32 != ((n + 1) * OPT["fl2"]) // 32: o += g2.pop(0)
            x = [tt[(4 * n + i) % 16] for i in range(4)]; n += 1
            for r in range(4): e(valu("v_accvgpr_read_b32", x[r], O[dt][u][r]))
            xx = Reg("v", x[0].lo, 4)
            sel = "op_sel:[0,%d] op_sel_hi:[1,%d]" % (u, u)
            sel3 = "op_sel:[0,%d,0] op_sel_hi:[1,%d,1]" % (u, u)
            for h in range(2): e(valu("v_pk_mul_f32", xx[2 * h:2 * h + 2], xx[2 * h:2 * h + 2], V(40, 2), mods=sel))
            for h in range(2): e(valu("v_pk_fma_f32", xx[2 * h:2 * h + 2], RX[dt][u][2 * h:2 * h + 2], V(42, 2), xx[2 * h:2 * h + 2], mods=sel3))
            ob = RX[dt & ~1][u]
            e(valu("v_cvt_pk_bf16_f32", ob[2 * (dt & 1)], x[0], x[1])); e(valu("v_cvt_pk_bf16_f32", ob[2 * (dt & 1) + 1], x[2], x[3]))
    return o, RX

offA2 = [salu("s_lshl_b32", sTmp[6], sQblk, 2), salu("s_add_u32", sTmp[6], sTmp[6], 64)]
def signal(off_sgpr_ops, va, vd):
    o = list(off_sgpr_ops)
    t = Reg("s", int(o[-1].wr[0][1:]))
    o += [salu("s_cmp_eq_u32", sWave, 0), salu("s_cselect_b32", t, t, 0x10000),
          valu("v_mov_b32", va, t), valu("v_mov_b32", vd, 1), raw("s_mov_b64 exec, 1", "salu"),
          Op(f"buffer_store_byte {vd}, {va}, {sDBG}, {sHead} offen sc1" if OPT["fbyte"] else f"buffer_atomic_add {vd}, {va}, {sDBG}, 0 offen",
             "vmem", rd=va.regs() + vd.regs() + sDBG.regs(), tag="sig"),
          raw("s_mov_b64 exec, -1", "salu")]
    return o
def signal16(which, va, vd, t):
    return [salu("s_lshl_b32", t, sQblk, 12), salu("s_add_u32", t, t, CNT + 4 * which),
            salu("s_cmp_eq_u32", sWave, 0), salu("s_cselect_b32", t, t, 0x7ff00000),
            valu("v_lshlrev_b32", va, 8, vLane), valu("v_add_u32", va, t, va), valu("v_mov_b32", vd, 1),
            salu("s_lshl_b32", t, 1, sHead), salu("s_xor_b32", t, t, 0xffff),
            raw(f"s_mov_b32 exec_lo, {t}", "salu", rd=t.regs()), raw("s_mov_b32 exec_hi, 0", "salu"),
            Op(f"buffer_atomic_add {vd}, {va}, {sWS}, 0 offen", "vmem", rd=va.regs() + vd.regs() + sWS.regs(), tag="sig"),
            raw("s_mov_b64 exec, -1", "salu")]
def poll2(name, which, va, vd2):
    return [valu("v_mov_b32", va, 0), salu("s_mov_b32", sTmp[1], 0), label(f"L_poll_{name}"),
            raw(f"buffer_load_dwordx2 {vd2}, {va}, {sWS}, {sCW} offen sc1", "salu"), raw("s_waitcnt vmcnt(0)", "wait"),
            raw(f"v_readfirstlane_b32 {sTmp[2]}, {vd2[0]}", "salu"), raw(f"v_readfirstlane_b32 {sTmp[3]}, {vd2[1]}", "salu"),
            salu("s_add_u32", sTmp[1], sTmp[1], 1), raw("s_nop 3", "salu"),
            salu("s_cmp_ge_u32", sTmp[2 + which], 15), raw(f"s_cbranch_scc1 L_pdone_{name}", "branch"),
            raw("s_sleep 2", "salu"), salu("s_cmp_lt_u32", sTmp[1], 0x40000), raw(f"s_cbranch_scc1 L_poll_{name}", "branch"),
            label(f"L_pdone_{name}")]
offF = [salu("s_lshl_b32", sTmp[0], sQblk, 4)]
offA = [salu("s_lshl_b32", sTmp[0], sQblk, 2), salu("s_add_u32", sTmp[0], sTmp[0], 64)]
offB = [salu("s_lshl_b32", sTmp[0], sQblk, 3), salu("s_add_u32", sTmp[0], sTmp[0], 128)]

def poll(name, off_ops, va, vd):
    o = list(off_ops) + [valu("v_and_b32", va, 3 if OPT["fbyte"] else 0, vLane), valu("v_lshlrev_b32", va, 2, va),
         salu("s_mov_b32", sTmp[1], 0), label(f"L_poll_{name}"),
         raw(f"buffer_load_dword {vd}, {va}, {sDBG}, {sTmp[0]} offen sc1", "salu"), raw("s_waitcnt vmcnt(0)", "wait")]
    o += fcheck(vd, sTmp[2])
    o += [salu("s_add_u32", sTmp[1], sTmp[1], 1),
         salu("s_cmp_ge_u32", sTmp[2], 16), raw(f"s_cbranch_scc1 L_pdone_{name}", "branch"),
         raw("s_sleep 2", "salu"), salu("s_cmp_lt_u32", sTmp[1], 0x40000), raw(f"s_cbranch_scc1 L_poll_{name}", "branch"),
         label(f"L_pdone_{name}")]
    return o
def poll0(name, off_ops, va, vd):
    return [salu("s_cmp_lg_u32", sWave, 0), raw(f"s_cbranch_scc1 L_pdone_{name}", "branch")] + poll(name, off_ops, va, vd)

LDV = [[V(128 + (k * 16 + h) * 4, 4) for h in range(16)] for k in range(2)]
LDA = [[O[h][2 + k] for h in range(16)] for k in range(2)]
vRa = [V(12), V(14)]
def red_addr():
    return [salu("s_lshl_b32", sTmp[0], sHead, 2), salu("s_add_u32", sTmp[0], sTmp[0], sWave),
            salu("s_lshl_b32", sTmp[1], sTmp[0], 10), salu("s_mul_i32", sTmp[2], sTmp[0], 768), salu("s_add_u32", sTmp[2], sTmp[2], 65536),
            valu("v_lshlrev_b32", vRa[1], 4, vLane), valu("v_add_u32", vRa[0], sTmp[1], vRa[1]), valu("v_add_u32", vRa[1], sTmp[2], vRa[1]),
            valu("v_cmp_gt_u32", "vcc", 48, vLane), valu("v_mov_b32", V(64), 0x7f000000), valu("v_cndmask_b32", vRa[1], V(64), vRa[1])]
def red_loads(region, LD, parts):
    o = []
    t = [sTmp[4], sTmp[5]]
    o += [salu("s_mul_i32", t[0], sQblk, 16 * PBLK), salu("s_add_u32", t[0], t[0], region)]
    for h in range(16):
        for k in parts: o.append(bload(LD[k][h], vRa[k], sWS, t[h & 1], flags="sc1", tag="red"))
        if h < 15: o.append(salu("s_add_u32", t[(h + 1) & 1], t[h & 1], PBLK))
    return o
sSelLo, sSelHi = S(72), S(73)
def red_sum(ACC, LD, k, tmp):
    o = []; e = o.append
    for h in range(16):
        src = []
        for p in range(4):
            x = LD[k][h][p]
            if x.k == "a":
                y = tmp[(4 * h + p) % 8]; e(valu("v_accvgpr_read_b32", y, x)); x = y
            src.append(x)
        for p in range(4):
            for hi in range(2):
                acc = ACC[k][2 * p + hi]
                e(valu("v_dot2_f32_bf16", acc, src[p], sSelHi if hi else sSelLo, 0 if h == 0 else acc))
    return o

def tail():
    o = [marker(("iter", 95))]; e = o.append
    G = [[V(16 + k * 8 + i) for i in range(8)] for k in range(2)]
    SA = [[V(32 + k * 8 + i) for i in range(8)] for k in range(2)]
    tmp = [V(96 + i) for i in range(8)]
    T_ = [V(54 + i) for i in range(8)]
    XV = [[V(62 + (k * 2 + t) * 2, 2) for t in range(2)] for k in range(2)]
    vo = [V(70), V(71)]
    c, un, q = V(72), V(73), V(74)
    def silu(k):
        F = G[k]
        for i in range(8): o.extend(round_bf16(F[i]))
        for i in range(8): e(valu("v_mul_f32", T_[i], -LOG2E, F[i]))
        for i in range(8): e(valu("v_exp_f32", T_[i], T_[i]))
        for i in range(8): e(valu("v_add_f32", T_[i], 1.0, T_[i]))
        for i in range(8): e(valu("v_rcp_f32", T_[i], T_[i]))
        for i in range(8): e(valu("v_mul_f32", F[i], F[i], T_[i]))
        for i in range(8): o.extend(round_bf16(F[i]))
    def final(k):
        for i in range(8): o.extend(round_bf16(SA[k][i]))
        for i in range(8): e(valu("v_mul_f32", SA[k][i], SA[k][i], G[k][i]))
        for i in range(8): o.extend(round_bf16(SA[k][i]))
        for t in range(2):
            for p in range(2):
                x = XV[k][t][p]
                e(valu("v_lshlrev_b32", tmp[0], 16, x)); e(valu("v_and_b32", tmp[1], 0xffff0000, x))
                e(valu("v_add_f32", tmp[0], tmp[0], SA[k][4 * t + 2 * p])); e(valu("v_add_f32", tmp[1], tmp[1], SA[k][4 * t + 2 * p + 1]))
                e(valu("v_cvt_pk_bf16_f32", x, tmp[0], tmp[1]))
            e(bstore(XV[k][t], vo[k], sOUT, 0, off=32 * t, flags=["", "nt", "sc1", "sc0 sc1"][OPT["oflag"]]))
    e(salu("s_mov_b32", sSelLo, 0x00003f80)); e(salu("s_mov_b32", sSelHi, 0x3f800000))
    sA, sB = S(74), S(75)
    def rawloads(k):
        for x_ in red_loads(PART, LDV, [k]): e(raw(x_.text, "salu"))
    e(valu("v_readfirstlane_b32", sA, FREEQ[15][0])); e(valu("v_readfirstlane_b32", sB, FREEQ[15][1]))
    e(salu("s_lshl_b32", sTmp[0], sHead, 2)); e(salu("s_add_u32", sTmp[0], sTmp[0], sWave))
    e(salu("s_mul_i32", sTmp[1], sQblk, PBLK))
    e(salu("s_lshr_b32", sTmp[2], sTmp[0], 3)); e(salu("s_mul_i32", sTmp[2], sTmp[2], 16 * 896)); e(salu("s_add_u32", sTmp[2], sTmp[2], sTmp[1]))
    e(salu("s_and_b32", sTmp[3], sTmp[0], 7)); e(salu("s_lshl_b32", sTmp[3], sTmp[3], 6)); e(salu("s_add_u32", sTmp[2], sTmp[2], sTmp[3]))
    e(valu("v_and_b32", vo[0], 15, vLane)); e(valu("v_mul_u32_u24", vo[0], 896, vo[0]))
    e(valu("v_lshrrev_b32", un, 4, vLane)); e(valu("v_lshl_add_u32", vo[0], un, 3, vo[0])); e(valu("v_add_u32", vo[0], sTmp[2], vo[0]))
    e(salu("s_mul_i32", sTmp[0], sTmp[0], 48)); e(salu("s_add_u32", sTmp[1], sTmp[1], 512))
    e(valu("v_add_u32", c, sTmp[0], vLane)); e(valu("v_lshrrev_b32", un, 6, c))
    e(valu("v_mul_u32_u24", q, 43, un)); e(valu("v_lshrrev_b32", q, 8, q))
    e(valu("v_mul_u32_u24", vo[1], 6, q)); e(valu("v_sub_u32", un, un, vo[1]))
    e(valu("v_and_b32", vo[1], 15, c)); e(valu("v_lshl_add_u32", vo[1], q, 4, vo[1]))
    e(valu("v_mul_u32_u24", vo[1], 896, vo[1])); e(valu("v_lshl_add_u32", vo[1], un, 6, vo[1]))
    e(valu("v_bfe_u32", un, c, 4, 2)); e(valu("v_lshl_add_u32", vo[1], un, 3, vo[1]))
    e(valu("v_add_u32", vo[1], sTmp[1], vo[1]))
    e(valu("v_cmp_gt_u32", "vcc", 48, vLane)); e(valu("v_mov_b32", un, 0x7fffff00))
    e(valu("v_cndmask_b32", vo[1], un, vo[1]))
    for k in range(2):
        for t in range(2): e(raw(bload(XV[k][t], vo[k], sX, 0, off=32 * t).text, "salu", rd=vo[k].regs()))
    if OPT["tailv"] == 1:
        e(salu("s_cmp_ge_u32", sA, 15)); e(raw("s_cbranch_scc0 L_noA", "branch"))
        rawloads(0)
        e(raw("s_waitcnt vmcnt(20)", "wait")); e(raw("s_branch L_drained", "branch"))
        e(label("L_noA"))
        e(raw("s_waitcnt vmcnt(4)", "wait"))
        e(label("L_drained"))
        o += stamp(2, 7)
        e(barrier())
        o += signal16(1, V(75), V(76), sTmp[0])
        o += stamp(3, 7)
        e(salu("s_cmp_ge_u32", sA, 15)); e(raw("s_cbranch_scc1 L_haveA", "branch"))
        o += red_sum(G, LDA, 0, tmp)
        o += poll2("A", 0, V(75), V(76, 2))
        e(salu("s_mov_b32", sB, sTmp[3]))
        rawloads(0)
        e(raw("s_branch L_joinA", "branch"))
        e(label("L_haveA"))
        e(salu("s_cmp_ge_u32", sB, 15)); e(raw("s_cbranch_scc0 L_noB1", "branch"))
        rawloads(1)
        e(salu("s_mov_b32", sA, 99))
        e(label("L_noB1"))
        o += red_sum(G, LDA, 0, tmp)
        e(label("L_joinA"))
    else:
        e(raw("s_waitcnt vmcnt(4)", "wait"))
        o += stamp(2, 7)
        e(barrier())
        o += signal16(1, V(75), V(76), sTmp[0])
        o += stamp(3, 7)
        e(salu("s_cmp_ge_u32", sA, 15)); e(raw("s_cbranch_scc1 L_haveA", "branch"))
        o += red_sum(G, LDA, 0, tmp)
        o += poll2("A", 0, V(75), V(76, 2))
        e(salu("s_mov_b32", sB, sTmp[3]))
        rawloads(0)
        e(raw("s_branch L_joinA", "branch"))
        e(label("L_haveA"))
        rawloads(0)
        e(salu("s_cmp_ge_u32", sB, 15)); e(raw("s_cbranch_scc0 L_noB1", "branch"))
        rawloads(1)
        e(salu("s_mov_b32", sA, 99))
        e(label("L_noB1"))
        o += red_sum(G, LDA, 0, tmp)
        e(label("L_joinA"))
    o += stamp(4, 7)
    silu(0)
    o += red_sum(G, LDA, 1, tmp)
    silu(1)
    o += stamp(5, 7)
    e(salu("s_cmp_eq_u32", sA, 99)); e(raw("s_cbranch_scc1 L_haveB", "branch"))
    e(salu("s_cmp_ge_u32", sB, 15)); e(raw("s_cbranch_scc1 L_pdone_B", "branch"))
    o += poll2("B", 1, V(75), V(76, 2))
    rawloads(1)
    e(label("L_haveB"))
    o += stamp(6, 7)
    e(raw("s_waitcnt vmcnt(16)", "wait"))
    o += red_sum(SA, LDV, 0, tmp)
    e(raw("s_waitcnt vmcnt(0)", "wait"))
    o += red_sum(SA, LDV, 1, tmp)
    final(0)
    final(1)
    return o
assert all((u * 43) >> 8 == u // 6 for u in range(50))

def pfpat(d, t):
    if OPT["pfpat"] == 0: return [valu("v_lshlrev_b32", d, 5, vLane)]
    sh = OPT["pfpat"]
    return [valu("v_lshrrev_b32", d, sh, vLane), valu("v_lshlrev_b32", d, 5 + sh, d),
            valu("v_and_b32", t, (1 << sh) - 1, vLane), valu("v_lshl_add_u32", d, t, 2, d)]

def build_main():
    prog, late, pfl = setup()
    if OPT["pfearly"]: prog += pfl; pfl = []
    prog += stamp(1) + stamp(4, 2)
    prog += ln_stats(late) + stamp(5, 2)
    prog += stamp(2) + stamp(6, 2)
    f1 = [f for st in range(18) for f in frags_stage(st)]
    Sn = SBUF[0]
    vK0 = vT[5]
    fK0 = frags_K(0, Sn, [0] * 4, kaddr=vK0, f0=16)
    prog += bar_ops(0) + stamp(7, 2)
    for f in f1[:len(FRA)]: prog += f.reads
    LEFT = []
    def extra(info):
        def first_of(key): return min(info.first[i] for i, f in enumerate(f1) if f.key == key)
        def last_of(key): return max(info.last[i] for i, f in enumerate(f1) if f.key == key)
        ln = []
        for ks in range(2, 14): ln += items(ln_apply(ks, 1), -1, first_of(("U", ks)) - 3)
        endU, endP = last_of(("U", 13)), last_of(("P", 13))
        sil = items(silu_ops(), endU + 5, first_of(("D", 0)) - 3)
        xa = [salu("s_lshr_b32", sTmp[5], sWave, 1), salu("s_mul_i32", sTmp[5], sTmp[5], (RB[20 % 4] - RB[19 % 4]) & 0xffffffff),
              salu("s_add_u32", sTmp[5], sTmp[5], sKh), salu("s_add_u32", sTmp[5], sTmp[5], RB[19 % 4]),
              valu("v_add_u32", vXaddr, sTmp[5], vSt)]
        qc = qconv_ops(None)
        relq = endP + 5
        qi = items(xa, relq, info.n - 1)
        qv = [o for o in qc if o.kind != "dsw"]
        qend = info.bar[17] + 4 if OPT["qspread"] else info.n - 1
        for k, o in enumerate(qv):
            qi.append(Item(o, rel=relq, dl=(relq + (qend - relq) * (k + 1) // len(qv)) if OPT["qspread"] else info.n - 1))
        qi += [Item(o, rel=max(relq, info.bar[17] + 1), dl=info.n - 1) for o in qc if o.kind == "dsw"]
        Q12 = [V(96 + 4 * i, 4) for i in range(4)] + [V(80 + 4 * i, 4) for i in range(4)] + [V(112 + 4 * i, 4) for i in range(4)]
        oc, os_, left = paced_out([last_of(("D", g)) + 5 for g in range(7)],
                                  [first_of(("D", g + 2)) - 3 if g + 2 <= 6 else info.n - 1 for g in range(7)], info.n, sStF, Q12, OPT["dpace"])
        LEFT.extend(left)
        pfi = []
        when = [OPT["pfwq"] + OPT["pfwqs"] * k for k in range(OPT["wqp"])] + [OPT["pfw2"]] + [OPT["pfkv0"] + OPT["pfkvs"] * k for k in range(OPT["pfdist"] + 1)]
        k = 0
        for o in pfl:
            pfi.append(Item(o, rel=when[k], dl=when[k] + 40))
            if o.kind == "vmem": k += 1
        return dict(ln=ln, sil=sil, qc=qi, oc=oc, os=os_, pf=pfi)
    body, carry = section(f1, len(FRA), [], extra=extra, dma_first=[2, 3], verbose=OPT["verbose"])
    prog += body
    prog += stamp(3) + stamp(7, 5)
    if OPT["stamps"] == 8:
        prog += [raw("s_memtime s[100:101]", "smem"), raw("s_waitcnt lgkmcnt(0)", "wait"),
                 salu("s_lshl_b32", sTmp[0], S(2), 2), salu("s_add_u32", sTmp[0], sTmp[0], sWave), salu("s_lshl_b32", sTmp[0], sTmp[0], 7),
                 salu("s_add_u32", sTmp[0], sTmp[0], 2 * PART + 65536), valu("v_mov_b32", V(100), 0)]
        for k, sr in enumerate(S8 + [100]):
            prog += [salu("s_sub_u32", sTmp[1], S(sr), S(sStamp)), valu("v_mov_b32", V(101 + k), sTmp[1]), bstore(V(101 + k), V(100), sWS, sTmp[0], off=4 * k)]
    assert carry == 20, carry
    print("deferred f stores:", len(LEFT))
    early = [so for so in LEFT if 80 <= int(so[1].extra[1][0][1:]) < 96]
    later = [so for so in LEFT if so not in early]
    for so in early[:2]: prog += so
    prog += [wait_lgkm0(), barrier()]
    prog += [salu("s_sub_u32", sTmp[0], SLOT, sKh), salu("s_sub_u32", sTmp[0], sTmp[0], sKh),
             valu("v_add_u32", vXaddr, sTmp[0], vXaddr)]
    for u in range(2):
        for ks in range(8): prog.append(dsr("ds_read_b128", Q[2 + u][ks], vXaddr, (u * 8 + ks) * 1024))
    for grp in dma_ops(21): prog += grp
    prog += [valu("v_subrev_u32", vK0, HALF, vKaddr), valu("v_add_u32", vV31, HALF, vVaddr), ] + pfpat(vPFa, V(10))
    for u in range(4): prog.append(valu("v_mov_b32", vL[u], 0))
    prog.append(salu("s_mov_b32", sCnt, (LOOP_HI - LOOP_LO) // UNR))
    for so in early[2:]: prog += so
    prog += bar_ops(K0)
    for f in fK0[:NPRE]: prog += f.reads
    nin = min(len(later), 4)
    def extraK0(info):
        it = []
        for k, so in enumerate(later[:nin]): it += [Item(so[0], rel=3 + 16 * k, dl=6 + 16 * k), Item(so[1], rel=4 + 16 * k, dl=7 + 16 * k)]
        return dict(os=it)
    body, carry = section(fK0, NPRE, frags_K(1, SBUF[1], NEGM)[:NPRE], dma_first=23, extra=extraK0)
    prog += body
    for grp in dma_ops(22): prog += grp
    later = later[nin:]
    for u in range(4):
        tm, t2 = vX[0], vX[1]
        prog += rowmax(Sn[u], tm, t2)
        for r in range(8): prog.append(valu("v_sub_f32", Sn[u][r], Sn[u][r], tm))
        for r in range(4): prog.append(valu("v_sub_f32", NEGM[u][r], 0, tm))
        if u % 2 == 1 and later: prog += later.pop(0)
    prog += sprinkle([o_ for it in sm_part(Sn, 0, 0, 0) for o_ in it.ops], later)
    prog += stamp(4) + stamp(1, 10)
    if OPT["stamps"] == 3:
        prog += [salu("s_lshl_b32", S(90), S(2), 2), salu("s_add_u32", S(90), S(90), sWave), salu("s_lshl_b32", S(90), S(90), 7),
                 salu("s_add_u32", S(90), S(90), 2 * PART + 65536)]
    for j in range(31):
        it, carry = iteration(j, carry)
        if j in (0, 1, 28, 29, 30): it += stamp({0: 2, 1: 3, 28: 5, 29: 6, 30: 7}[j], 10)
        if j == 28: it = it[:1] + stamp(4, 10) + it[1:]
        if LOOP_LO <= j < LOOP_HI and (j - LOOP_LO) % UNR == UNR - 1:
            it += [salu("s_sub_u32", sCnt, sCnt, 1), salu("s_cmp_lg_u32", sCnt, 0), raw("s_cbranch_scc1 L_loop", "branch", rd=["scc"])]
        if OPT["stamps"] == 3:
            st3 = [raw("s_memtime s[100:101]", "smem"), wait_lgkm0(), raw("s_waitcnt lgkmcnt(0)", "wait"), salu("s_sub_u32", S(100), S(100), S(sStamp)),
                   valu("v_mov_b32", V(12), S(100)), valu("v_mov_b32", V(14), 0), bstore(V(12), V(14), sWS, S(90)), salu("s_add_u32", S(90), S(90), 4)]
            k = len(it) - 3 if it[-1].kind == "branch" else len(it)
            it = it[:k] + st3 + it[k:]
        prog += it
    prog += last_iteration()
    prog += stamp(5)
    cmb, RX = combine()
    prog += cmb
    prog += stamp(6)
    fW = frags_W()
    prog += bar_ops(W0)
    for f in fW[:len(FRW)]: prog += f.reads
    LEFTW = []
    def extraW(info):
        QW = [V(80 + 4 * i, 4) for i in range(4)] + FREEQ[8:14]
        oc, os_, left = paced_out([info.last[32 * g + 31] + 5 for g in range(7)],
                                  [info.first[32 * (g + 2)] - 3 if g + 2 <= 6 else info.n - 1 for g in range(7)], info.n, sStS, QW, OPT["wpace"])
        LEFTW.extend(left)
        sg = [Item(signal16(0, FREEQ[14][0], FREEQ[14][1], sTmp[6]), rel=info.bar[W0 + 6] + 1, dl=info.bar[W0 + 6] + 1)]
        sg += [Item(valu("v_mov_b32", FREEQ[14][2], 0), rel=info.n - 40, dl=info.n - 36),
               Item(bload(FREEQ[15][0:2], FREEQ[14][2], sWS, sCW, flags="sc1", tag="cnt"), rel=info.n - 34, dl=info.n - 30)]
        fl = []
        for k, g_ in enumerate(FLG[OPT["fl1"] + OPT["fl2"]:]):
            for x_ in g_: fl.append(Item(x_, rel=2 + OPT["flpace"] * k, dl=8 + OPT["flpace"] * k))
        return dict(oc=oc, os=os_, sg=sg, fl=fl)
    body, _ = section(fW, len(FRW), [], extra=extraW, dma_first=W0 + 3, verbose=OPT["verbose"])
    prog += body
    print("deferred s stores:", len(LEFTW))
    for so in LEFTW: prog += so
    prog += stamp(5, 6) + stamp(1, 7) + stamp(7, 9)
    prog += tail()
    prog += stamp(7) + stamp(7, 7)
    if OPT["stamps"] in (1, 2, 4, 5, 6, 7, 9, 10):
        prog += [salu("s_lshl_b32", sTmp[0], S(2), 2), salu("s_add_u32", sTmp[0], sTmp[0], sWave), salu("s_lshl_b32", sTmp[0], sTmp[0], 6),
                 salu("s_add_u32", sTmp[0], sTmp[0], 2 * PART), valu("v_mov_b32", V(20), 0)]
        for k in range(1, 8):
            prog += [salu("s_sub_u32", sTmp[1], S(sStamp + k), S(sStamp)), valu("v_mov_b32", V(21), sTmp[1]),
                     bstore(V(21), V(20), sWS, sTmp[0], off=4 * k)]
    if OPT["dbgout"]:
        prog += [raw("s_mov_b64 exec, 1", "salu")]
        for k, wd in zip(range(1, 8), (1, 2, 3, 5, 6, 7, 9)):
            prog += [salu("s_sub_u32", sTmp[1], S(sStamp + k), S(sStamp)), valu("v_mov_b32", V(21), sTmp[1]), valu("v_mov_b32", V(20), 4 * wd),
                     raw(f"buffer_atomic_umax v21, v20, {sDBG}, 0 offen", "salu")]
    prog += [label("L_done"), raw("s_endpgm", "branch")]
    return prog

def finish(prog):
    for tag in ("stA", "stF"):
        w = [i for i, o in enumerate(prog) if o.kind == "pseudo" and o.tag and o.tag[0] == "waitvm" and tag in o.tag[1]]
        st = [i for i, o in enumerate(prog) if o.tag == tag]
        assert len(w) == 1 and max(st) < w[0], (tag, w, max(st))
    prog = insert_waits(prog)
    rep = []
    prog = pad_hazards(prog, report=rep)
    segs = []; cur = ("pro", [])
    segs.append(cur)
    for op in prog:
        if op.kind == "pseudo" and op.tag and op.tag[0] == "mark":
            cur = (op.tag[1][1], []); segs.append(cur)
        cur[1].append(op)
    d = dict(segs)
    for j in range(LOOP_LO + UNR, LOOP_HI):
        a, b = text_of(d[j]), text_of(d[j - UNR])
        if a != b:
            import difflib
            print("MISMATCH iter", j); print("\n".join(list(difflib.unified_diff(b.split("\n"), a.split("\n"), lineterm=""))[:40])); sys.exit(1)
    body = ""
    for k, ops in segs:
        if isinstance(k, int) and LOOP_LO + UNR <= k < LOOP_HI: continue
        if k == LOOP_LO: body += ".p2align 6\nL_loop:\n"
        body += text_of(ops) + "\n"
    tail = []
    for nm, tgt in stubs:
        tail += [label(f"L_stub_{nm}"), raw(f"s_call_b64 {sRet}, {tgt}", "branch"), raw(f"s_branch L_ret_{nm}", "branch")]
    tail += pad_hazards(rare1(0)) + pad_hazards(rare1(1)) + pad_hazards(rare2())
    body += text_of(tail) + "\nL_end:\n"
    print("nops inserted:", len(rep), "in loop:", [o.text for o in d[LOOP_LO] if o.kind == "nop"], "total instrs", body.count("\n"))
    return body

def build_reduce():
    o = []; e = o.append
    e(raw("s_cmp_ge_u32 s2, 448")); e(raw("s_cbranch_scc1 L_rdone", "branch"))
    e(raw("s_load_dwordx2 s[4:5], s[0:1], 0", "smem")); e(raw("s_load_dwordx2 s[6:7], s[0:1], 72", "smem")); e(raw("s_load_dwordx2 s[20:21], s[0:1], 88", "smem"))
    rX, rO, rW = S(8, 4), S(12, 4), S(16, 4)
    e(valu("v_lshrrev_b32", V(1), 6, V(0))); e(valu("v_and_b32", V(0), 63, V(0)))
    e(valu("v_readfirstlane_b32", S(22), V(1)))
    e(salu("s_lshl_b32", S(23), S(2), 2)); e(salu("s_add_u32", S(23), S(23), S(22)))
    e(valu("v_lshlrev_b32", V(2), 4, V(0)))
    e(salu("s_lshl_b32", S(24), S(23), 14))
    e(salu("s_add_u32", S(25), S(24), PART))
    e(raw("s_waitcnt lgkmcnt(0)", "wait"))
    for d, lo, sz in ((rX, 4, 2048 * 896), (rO, 6, 2048 * 896), (rW, 20, 2 * PART)):
        e(salu("s_mov_b32", d[0], S(lo))); e(salu("s_mov_b32", d[1], S(lo + 1))); e(salu("s_mov_b32", d[2], sz)); e(salu("s_mov_b32", d[3], 0x20000))
    LD = [[V(32 + (m * 16 + h) * 4, 4) for h in range(16)] for m in range(2)]
    for h4 in range(4):
        for m in range(2):
            for hh in range(4): e(bload(LD[m][4 * h4 + hh], V(2), rW, S(24 + (1 if OPT["rednof"] else m)), off=hh * 1024))
        if h4 < 3:
            e(salu("s_add_u32", S(24), S(24), 4096)); e(salu("s_add_u32", S(25), S(25), 4096))
    e(salu("s_mul_i32", S(26), S(23), 4682)); e(salu("s_lshr_b32", S(26), S(26), 16))
    e(salu("s_mul_i32", S(27), S(26), 14)); e(salu("s_sub_u32", S(27), S(23), S(27)))
    e(salu("s_mul_i32", S(26), S(26), 16 * 896)); e(salu("s_lshl_b32", S(27), S(27), 6)); e(salu("s_add_u32", S(26), S(26), S(27)))
    e(valu("v_and_b32", V(3), 15, V(0))); e(valu("v_mul_u32_u24", V(3), 896, V(3)))
    e(valu("v_lshrrev_b32", V(4), 4, V(0))); e(valu("v_lshl_add_u32", V(3), V(4), 3, V(3)))
    XV = [V(6, 2), V(8, 2)]
    for t in range(2): e(bload(XV[t], V(3), rX, S(26), off=32 * t))
    ACC = [[V(10 + m * 8 + i) for i in range(8)] for m in range(2)]
    tmp = [V(26 + i) for i in range(4)]
    for h in range(16):
        for m in range(2):
            for p in range(4):
                x = LD[m][h][p]
                if h == 0:
                    e(valu("v_lshlrev_b32", ACC[m][2 * p], 16, x)); e(valu("v_and_b32", ACC[m][2 * p + 1], 0xffff0000, x))
                else:
                    a, b = tmp[2 * (p & 1)], tmp[2 * (p & 1) + 1]
                    e(valu("v_lshlrev_b32", a, 16, x)); e(valu("v_and_b32", b, 0xffff0000, x))
                    e(valu("v_add_f32", ACC[m][2 * p], ACC[m][2 * p], a)); e(valu("v_add_f32", ACC[m][2 * p + 1], ACC[m][2 * p + 1], b))
    F, Sx = ACC[0], ACC[1]
    T_ = [V(32 + i) for i in range(8)]
    for i in range(8): o += round_bf16(F[i]) + round_bf16(Sx[i])
    for i in range(8): e(valu("v_mul_f32", T_[i], -LOG2E, F[i]))
    for i in range(8): e(valu("v_exp_f32", T_[i], T_[i]))
    for i in range(8): e(valu("v_add_f32", T_[i], 1.0, T_[i]))
    for i in range(8): e(valu("v_rcp_f32", T_[i], T_[i]))
    for i in range(8): e(valu("v_mul_f32", F[i], F[i], T_[i]))
    for i in range(8): o += round_bf16(F[i])
    for i in range(8): e(valu("v_mul_f32", F[i], F[i], Sx[i]))
    for i in range(8): o += round_bf16(F[i])
    for t in range(2):
        for p in range(2):
            x = XV[t][p]
            e(valu("v_lshlrev_b32", tmp[0], 16, x)); e(valu("v_and_b32", tmp[1], 0xffff0000, x))
            e(valu("v_add_f32", tmp[0], tmp[0], F[4 * t + 2 * p])); e(valu("v_add_f32", tmp[1], tmp[1], F[4 * t + 2 * p + 1]))
            e(valu("v_cvt_pk_bf16_f32", x, tmp[0], tmp[1]))
        e(bstore(XV[t], V(3), rO, S(26), off=32 * t))
    e(label("L_rdone")); e(raw("s_endpgm", "branch"))
    return text_of(pad_hazards(insert_waits(o))) + "\n"
assert all((w * 4682) >> 16 == w // 14 for w in range(1792))

HDR = open("recurrent_scan__mha_block_cached__glu_gated_swiglu__prompt.s.ref").read().split("; Override")[0]
def kd(name, vg, acc, sg):
    return f""".amdhsa_kernel {name}
  .amdhsa_next_free_vgpr {vg}
  .amdhsa_next_free_sgpr {sg}
  .amdhsa_accum_offset {acc}
  .amdhsa_group_segment_fixed_size 0
  .amdhsa_kernarg_size 96
  .amdhsa_user_sgpr_count 2
  .amdhsa_user_sgpr_kernarg_segment_ptr 1
  .amdhsa_system_sgpr_workgroup_id_x 1
.end_amdhsa_kernel
"""
main = finish(build_main())
NAME = "recurrent_scan__mha_block_cached__glu_gated_swiglu__prompt_kernel"
txt = HDR + f"""; @launch {'kernel=' + NAME + ' ' if OPT['aslist'] else ''}grid=(256,1,1) block=(256,1,1) lds=163840
.amdgcn_target "amdgcn-amd-amdhsa--gfx950"
.text
.globl {NAME}
.p2align 8
.type {NAME},@function
{NAME}:
""" + main + """.section .rodata,"a"
.p2align 6
""" + kd(NAME, 512, 256, 102)
open(sys.argv[1], "w").write(txt)
```

```python
import sys
from asmlib import *

OPT = dict(cap=8, bardelay=4, verbose=0, brk=78, split=16, stamps=0, dbg=0, stflag=0, nofst=0, kvflag=0, rt=0, wflag=0, pf=1, pfflag=0, pfdist=4, pfcode=1, xpre=12, rednof=0, aslist=1, pfearly=0, pfw2=330, pfkv0=450, pfkvs=100, pfwq=30, xfirst=22, touch=1, mix=0, qspread=1, dpace=11, wpace=15, chain=1, chaind=2, nba=8, nbv=6, bous=1, pfpat=2, unroll=2, fbyte=0, hmap=2, fl1=6, fl2=12, flpace=12, delay=0, pf128=1, wqearly=0, sweep=0, wqp=4, pfwqs=70, tailv=2, dbgout=0, oflag=0, xearly=16, silupk=7)
for a in sys.argv[2:]:
    k, v = a.split("="); OPT[k] = int(v)

TIMER = 's_memrealtime' if OPT['rt'] else 's_memtime'
BSTR = 1056
SLOT = 16 * BSTR
STG = 2 * SLOT
RB = [0, 2 * STG, STG, 3 * STG]
HALF = 2 * STG
SPARE = 4 * STG
THR = 16.0
XSTR = 928
PBLK = 128 * 448 * 2
CNT = 2 * PART + (1 << 20)
XB = 163840 - 128 * XSTR
assert XB >= STG
QSCALE = 1.4426950408889634 / 16.0
LOG2E = 1.4426950408889634
PART = 2048 * 448 * 2 * 16

vLane = V(0)
vKaddr, vVaddr, vDma = V(1), V(2), V(3)
vL = [V(4 + i) for i in range(4)]
vTmax = V(8)
vT = [V(9 + i) for i in range(7)]
FRV = [V(16 + 4 * i, 4) for i in range(6)]
if OPT["nbv"] == 6: BSEQ = [b for n_ in (6, 5, 5, 6, 5, 5) for b in range(n_)]
else: BSEQ = [f % 4 for f in range(32)]
NPRE = 5 if OPT["nbv"] == 6 else 4
vF = [V(40 + i) for i in range(4)]
vX = [V(44 + i) for i in range(4)]
NEGM = [V(48 + 4 * u, 4) for u in range(4)]
SBUF = [[V(64 + 32 * p + 8 * u, 8) for u in range(4)] for p in range(2)]
Q = [[V(128 + 32 * u + 4 * ks, 4) for ks in range(8)] for u in range(4)]
O = [[A((4 * dt + u) * 4, 4) for u in range(4)] for dt in range(16)]
XN = [[V(128 + 56 * u + 4 * ks, 4) for ks in range(14)] for u in range(2)]
GU = [[[V(16 + ((m * 7 + ft) * 2 + u) * 4, 4) for u in range(2)] for ft in range(7)] for m in range(2)]
QT = [[A((2 * dt + u) * 4, 4) for u in range(2)] for dt in range(16)]
FRA = ([A(128 + 4 * i, 4) for i in range(8)] + [A(192 + 4 * i, 4) for i in range(8)])[:OPT["nba"]]
HB = [[A(160 + (u * 4 + kf) * 4, 4) for kf in range(4)] for u in range(2)]
vP = [V(240 + i) for i in range(16)]
vNaddrLo, vNaddrHi = V(4), V(5)
vPaddrLo, vPaddrHi = V(6), V(7)
vDmaU, vDmaP, vDmaN = V(8), V(9), V(10)
vSt = V(11)
ACCD = [[[V(16 + ((b * 4 + nt) * 2 + u) * 4, 4) for u in range(2)] for nt in range(4)] for b in range(2)]
vPk = [V(80 + 4 * i, 4) for i in range(4)]

sX, sK, sV, sWQ, sWO, sU, sW2, sWS = [S(8 + 4 * i, 4) for i in range(8)]
sRet = S(40, 2)
sWave, sHead, sQblk, sM0, sCnt = S(42), S(43), S(44), S(45), S(46)
sKoff, sVoff, sUoff, sPoff, sDoff, sWoff = S(47), S(48), S(49), S(50), S(51), S(52)
sStF, sStS = [S(53), S(54)], [S(55), S(56)]
sTmp = [S(57 + i) for i in range(7)]
sKh = S(80)
sStamp = 82

if OPT["mix"] == 1: MID = [("P", 0), ("P", 1), ("P", 2), ("P", 3), ("P", 4), ("D", 0), ("P", 5), ("D", 1), ("P", 6), ("D", 2), ("D", 3)]
elif OPT["mix"] == 2: MID = [("P", 0), ("P", 1), ("P", 2), ("P", 3), ("D", 0), ("P", 4), ("D", 1), ("P", 5), ("D", 2), ("P", 6), ("D", 3)]
else: MID = [("P", i) for i in range(7)] + [("D", i) for i in range(4)]
STAGES = [("U", i) for i in range(7)] + MID + [("K", 0), ("X", 0), ("X", 1)]
K0 = 18
for j in range(31): STAGES += [("K", j + 1), ("V", j)]
STAGES += [("V", 31)]
V31 = len(STAGES) - 1
W0 = len(STAGES)
STAGES += [("W", i) for i in range(7)]
NST = len(STAGES)
def stK(j): return K0 if j == 0 else 19 + 2 * j
def stV(j): return V31 if j == 31 else 22 + 2 * j
assert STAGES[stK(5)] == ("K", 5) and STAGES[stV(5)] == ("V", 5) and stK(1) % 4 == 1 and V31 % 4 == 3
NEXT_OVERRIDE = {21: 23, 23: 22, 22: 24}

def has_dma(st): return st < NST and STAGES[st][0] != "X"
def next_dma_stage(st):
    if st in NEXT_OVERRIDE: return NEXT_OVERRIDE[st]
    st += 1
    while st < NST and not has_dma(st): st += 1
    return st
def m0_init(st):
    return [salu("s_add_u32", "m0", sM0, RB[st % 4])] if st < NST else []

def dma_ops(st):
    ty, i = STAGES[st]
    groups = []
    nxt = m0_init(next_dma_stage(st))
    for ii in range(8):
        if ty in "KV":
            srd, soff = (sK, sKoff) if ty == "K" else (sV, sVoff)
            g = [dma(vDma, srd, soff, off=ii * 512, tag=st, flags=["", "nt", "sc1"][OPT["kvflag"]])]
            g += [salu("s_add_u32", "m0", "m0", BSTR - 512)] if ii < 7 else nxt + [salu("s_add_u32", soff, soff, 32768)]
        else:
            if ty == "U":   srd, soff, vo, rowb = sU, sUoff, vDmaU, 3584
            elif ty == "P": srd, soff, vo, rowb = sWQ, sPoff, vDmaP, 8192
            elif ty == "D": srd, soff, vo, rowb = sW2, sDoff, vDmaN, 896
            else:           srd, soff, vo, rowb = sWO, sWoff, vDmaN, 896
            g = [dma(vo, srd, soff, tag=st, flags=["", "nt", "sc1"][OPT["wflag"]])]
            if ty in "UP":
                step = [1, 1, 1, 5, 1, 1, 1, 64 - 11][ii] * rowb
            elif ty == "D":
                step = rowb if ii < 7 else 256 - 7 * rowb
            else:
                step = rowb if ii < 7 else 128 - 7 * rowb
            g += [salu("s_add_u32", "m0", "m0", BSTR)] if ii < 7 else nxt
            g.append(salu("s_add_u32", soff, soff, step & 0xffffffff))
        groups.append(g)
    return groups

def dma_items(st, lo, hi):
    if not has_dma(st): return []
    items = []
    for ii, g in enumerate(dma_ops(st)):
        r = lo + (hi - lo) * ii // 8
        items.append(Item(g[0], rel=r, dl=min(r + 3, hi - 1)))
        for o in g[1:]: items.append(Item(o, rel=min(r + 1, hi - 1), dl=min(r + 5, hi - 1)))
    return items

S8 = [83, 84, 85, 86, 87, 88, 89, 90, 91, 72, 73, 74, 75, 76, 77, 78, 79, 81]
BARSTAMP = {0: 1, 3: 2, 7: 3, 10: 4, 14: 5, 16: 6}
def bar_ops(st):
    r = [wait_vm_tag([st] + {W0 + 6: ["stA"], stK(2): ["stF"]}.get(st, []), lgkm0=True), barrier()]
    if st in BARSTAMP: r += stamp(BARSTAMP[st], 5)
    if st >= W0: r += stamp(st - W0 + 1, 9) if st < W0 + 6 else []
    if OPT["stamps"] == 8 and st < 18:
        r += [raw("s_memtime s[100:101]", "smem"), raw("s_waitcnt lgkmcnt(0)", "wait"), raw(f"s_mov_b32 s{S8[st]}, s100")]
    return r

class Frag:
    def __init__(self, st, buf, reads, mfmas, first=False):
        self.st, self.buf, self.reads, self.mfmas, self.first = st, buf, reads, mfmas, first
        self.chain = None

def tr2(buf, lo, hi, addr, o0, o1):
    a, base = (lo, 0) if addr < HALF else (hi, HALF)
    return [dsr("ds_read_b64_tr_b16", buf[0:2], a, addr - base + o0), dsr("ds_read_b64_tr_b16", buf[2:4], a, addr - base + o1)]

_fa = [0]
def nextA():
    b = FRA[_fa[0] % len(FRA)]; _fa[0] += 1; return b

def frags_stage(st):
    ty, i = STAGES[st]
    out = []
    ch = OPT["chain"]
    if ty in "UP":
        tiles = [(ft, m) for ft in range(7) for m in range(2)] if ty == "U" else list(range(16))
        order = [(t, sl) for t in tiles for sl in range(2)] if ch else [(t, sl) for sl in range(2) for t in tiles]
        for t, sl in order:
            ks = 2 * i + sl
            b = nextA()
            if ty == "U":
                ft, m = t
                rd = tr2(b, vNaddrLo, vNaddrHi, RB[st % 4] + sl * SLOT + m * 8 * BSTR + ft * 32, 0, 256); acc = GU[m][ft]
            else:
                rd = tr2(b, vNaddrLo, vNaddrHi, RB[st % 4] + sl * SLOT + t * 32, 0, 8 * BSTR); acc = QT[t]
            out.append(Frag(st, b, rd, [mfma(acc[u], b, XN[u][ks], 0 if ks == 0 else acc[u]) for u in range(2)]))
            out[-1].key = (ty, ks)
            if ch: out[-1].chain = (st, t)
    else:
        cd = OPT["chaind"] if ch else 1
        for sl in range(2):
            grp = 2 * i + sl
            if grp > 6: continue
            acc = ACCD[grp & 1]
            for k0 in range(0, 4, cd):
                for nt in range(4):
                    for kf in range(k0, k0 + cd):
                        b = nextA()
                        base = RB[st % 4] + sl * SLOT + 2 * kf * 128 + nt * 32
                        out.append(Frag(st, b, tr2(b, vPaddrLo, vPaddrHi, base, 0, 128),
                                        [mfma(acc[nt][u], b, HB[u][kf], 0 if kf == 0 else acc[nt][u]) for u in range(2)]))
                        out[-1].key = ("D", grp); out[-1].chain = (grp, k0, nt)
    out[0].first = True
    return out

def frags_K(j, Sn, cinit, kaddr=None, f0=0):
    st = stK(j)
    out = []
    for f in range(16):
        kt, ks = f >> 3, f & 7
        b = FRV[BSEQ[f0 + f]]
        rb = RB[st % 4]
        a, base = (vKaddr, HALF) if kaddr is None else (kaddr, 0)
        rd = [dsr("ds_read_b128", b, a, rb - base + kt * 512 + ks * 64)]
        mf = []
        for u in range(4):
            d = Sn[u][4 * kt:4 * kt + 4]
            mf.append(mfma(d, b, Q[u][ks], cinit[u] if ks == 0 else d))
        if OPT["chain"] and OPT["bous"] and (f >> 1) & 1: mf.reverse()
        out.append(Frag(st, b, rd, mf, first=(f == 0)))
        if OPT["chain"]: out[-1].chain = ("K", f >> 1)
    return out

def frags_V(j, Sc, zero=False, vaddr=None, f0=16):
    st = stV(j)
    out = []
    for f in range(16):
        b = FRV[BSEQ[f0 + f]]
        rb = RB[st % 4]
        a, base = (vVaddr, 0) if vaddr is None else (vaddr, HALF)
        rd = [dsr("ds_read_b64_tr_b16", b[2 * jj:2 * jj + 2], a, rb - base + jj * 512 + f * 32) for jj in range(2)]
        out.append(Frag(st, b, rd, [mfma(O[f][u], b, Sc[u][0:4], 0 if zero else O[f][u]) for u in range(4)], first=(f == 0)))
    return out

FREEQ = [V(128 + (dt * 2 + u) * 4, 4) for dt in range(1, 16, 2) for u in range(2)]
OB = [[V(128 + (2 * ks * 2 + u) * 4, 4) for ks in range(8)] for u in range(2)]
FRW = ([V(96 + 4 * i, 4) for i in range(8)] + FREEQ[:8])[:OPT["nba"]]
def frags_W():
    out = []
    n = 0
    cd = OPT["chaind"] if OPT["chain"] else 1
    for grp in range(7):
        st = W0 + grp
        acc = ACCD[grp & 1]
        for k0 in range(0, 8, cd):
            for nt in range(4):
                for ks in range(k0, k0 + cd):
                    sl, kq = ks >> 2, ks & 3
                    b = FRW[n % len(FRW)]; n += 1
                    base = RB[st % 4] + sl * SLOT + 2 * kq * 128 + nt * 32
                    out.append(Frag(st, b, tr2(b, vPaddrLo, vPaddrHi, base, 0, 128),
                                    [mfma(acc[nt][u], b, OB[u][ks], 0 if ks == 0 else acc[nt][u]) for u in range(2)],
                                    first=(ks == 0 and nt == 0)))
                    out[-1].chain = (grp, k0, nt)
    return out

def section(frags, npre, nxt, extra=None, post_extra=None, dma_first=None, verbose=False, no_dma_after=None):
    bb = []; first = [None] * len(frags); last = [None] * len(frags)
    i = 0
    while i < len(frags):
        k = i + 1
        while k < len(frags) and frags[i].chain is not None and frags[k].chain == frags[i].chain: k += 1
        for u in range(len(frags[i].mfmas)):
            for g_ in range(i, k):
                if first[g_] is None: first[g_] = len(bb)
                last[g_] = len(bb); bb.append(frags[g_].mfmas[u])
        i = k
    n = len(bb)
    lastuse = {}
    rel_of = {}
    seq = list(frags) + list(nxt)
    for i, f in enumerate(seq):
        key = str(f.buf)
        rel_of[i] = lastuse.get(key, -1)
        if i < len(frags): lastuse[key] = last[i]
        else: lastuse[key] = n - 1
    rd = []; bar = {}
    prev = -1
    for i in range(npre, len(seq)):
        f = seq[i]
        rel = max(rel_of[i], prev)
        if f.first:
            rel = min(n - 1, max(rel, prev + OPT["bardelay"]))
            rd.append(Item(bar_ops(f.st), rel=rel, dl=rel)); bar[f.st] = rel
        for o in f.reads: rd.append(Item(o, rel=min(rel, n - 1), dl=min(n - 1, rel + 2)))
        prev = rel
    post = {}
    for i in range(1, len(frags)): post[first[i] - 1] = [wait_regs(frags[i].buf.regs())]
    if nxt: post[n - 1] = [wait_regs(nxt[0].buf.regs())]
    dm = []
    bars = sorted(bar.items(), key=lambda x: x[1])
    if dma_first is not None:
        hi = max((bars[0][1] if bars else n) - 1, 8)
        lst = dma_first if isinstance(dma_first, list) else [dma_first]
        for k, s_ in enumerate(lst): dm += dma_items(s_, hi * k // len(lst), hi * (k + 1) // len(lst))
    carry = None
    for k, (s_, g) in enumerate(bars):
        if k + 1 < len(bars):
            if no_dma_after is None or s_ + 3 <= no_dma_after: dm += dma_items(s_ + 3, g + 1, bars[k + 1][1] - 1)
        else: carry = s_ + 3
    class Info: pass
    info = Info(); info.first, info.last, info.bar, info.n = first, last, bar, n
    streams = dict(rd=rd, dma=dm)
    if extra: streams.update(extra(info))
    if post_extra:
        for g, ops in post_extra(info).items():
            post[g] = post.get(g, []) + ops
    return schedule2(bb, streams, OPT["cap"], post=post, verbose=verbose), carry

def xreduce(op, x, t):
    return [valu("v_mov_b32", t, x), perm16(x, t), valu(op, x, x, t), valu("v_mov_b32", t, x), perm32(x, t), valu(op, x, x, t)]

def round_bf16(x):
    return [valu("v_cvt_pk_bf16_f32", x, x, x), valu("v_and_b32", x, 0xffff0000, x)]

def stamp(k, which=1):
    if OPT["stamps"] != which: return []
    return [raw(f"{TIMER} s[100:101]", "smem"), raw("s_waitcnt lgkmcnt(0)", "wait"), raw(f"s_mov_b32 s{sStamp + k}, s100")]

sDBG = S(64, 4)
sOUT = S(68, 4)
sPF = S(92, 4)
sPFoff = S(96)
sCW = S(97)
vPFd = V(13)
vPFa = V(9)
def pfload(voff, srd_, soff, off=0):
    o = bload(vPFd, voff, srd_, soff, off=off, tag="pf", flags=["", "nt", "sc1"][OPT["pfflag"]]); o.wr = []
    return o
PFFLAG = ["", "nt", "sc1"][OPT["pfflag"]]
def setup():
    o = []; e = o.append
    e(raw("s_cmp_ge_u32 s2, 256")); e(raw("s_cbranch_scc1 L_done", "branch"))
    e(raw("s_load_dwordx16 s[64:79], s[0:1], 0", "smem"))
    e(raw("s_load_dwordx2 s[4:5], s[0:1], 64", "smem"))
    e(raw("s_load_dwordx2 s[6:7], s[0:1], 88", "smem"))
    if OPT["stamps"]: e(raw(f"{TIMER} s[100:101]", "smem"))
    if OPT["delay"]:
        e(salu("s_mul_i32", sTmp[0], S(2), 37)); e(salu("s_and_b32", sTmp[0], sTmp[0], 15)); e(salu("s_mul_i32", sTmp[0], sTmp[0], OPT["delay"]))
        e(label("L_dly")); e(salu("s_cmp_eq_u32", sTmp[0], 0)); e(raw("s_cbranch_scc1 L_dlyd", "branch")); e(raw("s_sleep 64", "salu"))
        e(salu("s_sub_u32", sTmp[0], sTmp[0], 1)); e(raw("s_branch L_dly", "branch")); e(label("L_dlyd"))
    if OPT["pfcode"]:
        e(raw("s_getpc_b64 s[98:99]\nL_pc:", "salu", wr=["s98", "s99"]))
        e(salu("s_bfe_u32", sTmp[0], S(2), 0x30003))
        e(raw(f"s_mul_i32 {sTmp[0]}, {sTmp[0]}, (L_end-L_pc-16384)/7", "salu", rd=sTmp[0].regs(), wr=sTmp[0].regs()))
        e(salu("s_and_b32", sTmp[0], sTmp[0], 0xffffffc0))
        e(valu("v_and_b32", vP[1], 0xfe if OPT["pf128"] else 0xff, V(0)))
        e(valu("v_lshlrev_b32", vP[1], 6, vP[1])); e(valu("v_add_u32", vP[1], sTmp[0], vP[1]))
        e(Op(f"global_load_dword {vPFd}, {vP[1]}, s[98:99]", "vmem", rd=vP[1].regs() + ["s98", "s99"], tag="pf"))
    e(valu("v_lshrrev_b32", vP[0], 6, V(0)))
    e(valu("v_and_b32", vLane, 63, V(0)))
    e(valu("v_readfirstlane_b32", sWave, vP[0]))
    if OPT["hmap"] == 2:
        e(salu("s_and_b32", sHead, S(2), 7)); e(salu("s_lshl_b32", sHead, sHead, 1))
        e(salu("s_bfe_u32", sTmp[0], S(2), 0x10003)); e(salu("s_add_u32", sHead, sHead, sTmp[0]))
        e(salu("s_lshr_b32", sQblk, S(2), 4))
    else:
        e(salu("s_bfe_u32", sHead, S(2), 0x20001)); e(salu("s_lshl_b32", sHead, sHead, 2))
        e(salu("s_bfe_u32", sTmp[0], S(2), 0x20003)); e(salu("s_add_u32", sHead, sHead, sTmp[0]))
        e(salu("s_lshr_b32", sQblk, S(2), 5)); e(salu("s_lshl_b32", sQblk, sQblk, 1))
        e(salu("s_and_b32", sTmp[0], S(2), 1)); e(salu("s_add_u32", sQblk, sQblk, sTmp[0]))
    g, q16 = vP[1], vP[2]
    e(valu("v_lshrrev_b32", g, 4, vLane)); e(valu("v_and_b32", q16, 15, vLane))
    sHi, sLo = sTmp[1], sTmp[2]
    e(salu("s_lshr_b32", sHi, sWave, 1)); e(salu("s_and_b32", sLo, sWave, 1))
    e(salu("s_lshl_b32", sTmp[0], sQblk, 7)); e(salu("s_lshl_b32", sTmp[3], sWave, 5)); e(salu("s_add_u32", sTmp[0], sTmp[0], sTmp[3]))
    e(salu("s_mul_i32", sTmp[6], sTmp[0], 896))
    e(salu("s_mul_i32", sTmp[5], sTmp[3], XSTR)); e(salu("s_add_u32", sTmp[5], sTmp[5], XB))
    e(valu("v_mul_u32_u24", vP[3], XSTR, q16)); e(valu("v_lshl_add_u32", vP[3], g, 4, vP[3])); e(valu("v_add_u32", vP[3], sTmp[5], vP[3]))
    e(valu("v_and_b32", vP[4], 1, g)); e(valu("v_lshrrev_b32", vP[5], 1, g))
    e(valu("v_lshlrev_b32", vP[6], 2, vP[4])); e(valu("v_lshl_add_u32", vP[6], vP[5], 4, vP[6]))
    e(valu("v_mul_u32_u24", vDmaU, 3584, vP[6])); e(valu("v_lshl_add_u32", vDmaU, q16, 4, vDmaU))
    e(salu("s_mul_i32", sM0, sHi, SLOT)); e(salu("s_mul_i32", sTmp[0], sLo, 8 * BSTR)); e(salu("s_add_u32", sM0, sM0, sTmp[0]))
    e(salu("s_mul_i32", sUoff, sHi, 32 * 3584)); e(salu("s_mul_i32", sTmp[0], sHead, 224)); e(salu("s_add_u32", sUoff, sUoff, sTmp[0]))
    e(salu("s_lshl_b32", sKoff, sHi, 14)); e(salu("s_lshl_b32", sTmp[0], sLo, 12)); e(salu("s_add_u32", sKoff, sKoff, sTmp[0]))
    e(salu("s_mov_b32", sVoff, sKoff))
    e(salu("s_lshl_b32", sPoff, sHi, 18)); e(salu("s_lshl_b32", sTmp[0], sLo, 15)); e(salu("s_add_u32", sPoff, sPoff, sTmp[0]))
    e(salu("s_lshl_b32", sTmp[0], sHead, 9)); e(salu("s_add_u32", sPoff, sPoff, sTmp[0]))
    e(salu("s_mul_i32", sDoff, sHead, 112 * 896)); e(salu("s_mul_i32", sTmp[0], sLo, 8 * 896)); e(salu("s_add_u32", sDoff, sDoff, sTmp[0]))
    e(salu("s_lshl_b32", sTmp[3], sHi, 7)); e(salu("s_add_u32", sDoff, sDoff, sTmp[3]))
    e(salu("s_mul_i32", sWoff, sHead, 256 * 896)); e(salu("s_add_u32", sWoff, sWoff, sTmp[0]))
    e(salu("s_mul_i32", sTmp[3], sHi, 128 * 896)); e(salu("s_add_u32", sWoff, sWoff, sTmp[3]))
    e(salu("s_mul_i32", sKh, sLo, SLOT))
    e(salu("s_lshl_b32", sTmp[0], sQblk, 4)); e(salu("s_add_u32", sTmp[0], sTmp[0], sHead)); e(salu("s_mul_i32", sTmp[0], sTmp[0], PBLK))
    e(salu("s_lshl_b32", sTmp[3], sWave, 14)); e(salu("s_add_u32", sStF[0], sTmp[0], sTmp[3]))
    e(salu("s_mul_i32", sTmp[3], sWave, 12288)); e(salu("s_add_u32", sStF[1], sTmp[0], sTmp[3])); e(salu("s_add_u32", sStF[1], sStF[1], 65536))
    e(salu("s_add_u32", sStS[0], sStF[0], PART)); e(salu("s_add_u32", sStS[1], sStF[1], PART))
    e(valu("v_lshrrev_b32", vP[6], 5, vLane)); e(valu("v_and_b32", vP[7], 31, vLane))
    e(valu("v_lshlrev_b32", vDma, 13, vP[6])); e(valu("v_lshl_add_u32", vDma, vP[7], 4, vDma))
    e(valu("v_lshlrev_b32", vDmaP, 17, vP[6])); e(valu("v_lshl_add_u32", vDmaP, vP[7], 4, vDmaP))
    l8, l7 = vP[8], vP[9]
    e(valu("v_lshrrev_b32", l8, 3, vLane)); e(valu("v_and_b32", l7, 7, vLane))
    e(valu("v_mul_u32_u24", vDmaN, 16 * 896, l8)); e(valu("v_lshl_add_u32", vDmaN, l7, 4, vDmaN))
    e(valu("v_lshlrev_b32", vSt, 4, vLane))
    e(valu("v_bfe_u32", vP[6], vLane, 2, 2)); e(valu("v_lshl_add_u32", vP[6], vP[4], 2, vP[6]))
    e(valu("v_and_b32", vP[7], 3, vLane))
    e(valu("v_mul_u32_u24", vNaddrLo, BSTR, vP[6])); e(valu("v_lshl_add_u32", vNaddrLo, vP[5], 9, vNaddrLo))
    e(valu("v_lshl_add_u32", vNaddrLo, vP[7], 3, vNaddrLo)); e(valu("v_add_u32", vNaddrHi, HALF, vNaddrLo))
    e(valu("v_lshrrev_b32", vP[6], 2, vLane)); e(valu("v_mul_u32_u24", vPaddrLo, BSTR, vP[6]))
    e(valu("v_lshl_add_u32", vPaddrLo, vP[7], 3, vPaddrLo)); e(valu("v_add_u32", vPaddrHi, HALF, vPaddrLo))
    e(valu("v_add_u32", vVaddr, sKh, vPaddrLo))
    e(valu("v_mul_u32_u24", vKaddr, BSTR, q16)); e(valu("v_lshl_add_u32", vKaddr, g, 4, vKaddr))
    e(valu("v_add_u32", vKaddr, sKh, vKaddr)); e(valu("v_add_u32", vKaddr, HALF, vKaddr))
    e(raw("s_waitcnt lgkmcnt(0)", "wait"))
    if OPT["stamps"]: e(raw(f"s_mov_b32 s{sStamp}, s100"))
    o += stamp(1, 2) + stamp(1, 4)
    def srd(d, lo, size):
        e(salu("s_mov_b32", d[0], S(lo))); e(salu("s_mov_b32", d[1], S(lo + 1)))
        e(salu("s_mov_b32", d[2], size)); e(salu("s_mov_b32", d[3], 0x20000))
    srd(sX, 64, 2048 * 896)
    e(salu("s_mov_b32", "m0", sTmp[5]))
    xg = []
    for r in range(32):
        g_ = [dma(vSt, sX, sTmp[6], off=(r % 4) * 896, tag="x%d" % (r // 16))]
        if r % 4 < 3: g_.append(salu("s_add_u32", "m0", "m0", XSTR - 896))
        else: g_ += [salu("s_add_u32", "m0", "m0", XSTR + 3 * 896), salu("s_add_u32", sTmp[6], sTmp[6], 4 * 896)]
        xg.append(g_)
    EXM, EXF = raw("s_mov_b32 exec_hi, 0x00ffffff", "salu"), raw("s_mov_b32 exec_hi, -1", "salu")
    e(EXM)
    for g_ in xg[:OPT["xearly"]]: o += g_
    e(EXF)
    e(salu("s_cmp_eq_u32", sLo, 0))
    e(salu("s_cselect_b32", sU[0], S(76), S(78))); e(salu("s_cselect_b32", sU[1], S(77), S(79)))
    e(salu("s_cselect_b32", sPF[0], S(66), S(68))); e(salu("s_cselect_b32", sPF[1], S(67), S(69)))
    e(salu("s_mov_b32", sU[2], 448 * 3584)); e(salu("s_mov_b32", sU[3], 0x20000))
    def pf(voff, srd_, soff, off=0): e(pfload(voff, srd_, soff, off))
    if OPT["sweep"]:
        srd(sWQ, 70, 448 * 8192)
        e(valu("v_lshrrev_b32", vP[10], 1, vLane)); e(valu("v_lshlrev_b32", vP[10], 7, vP[10]))
        if OPT["sweep"] & 1:
            e(salu("s_lshl_b32", sTmp[0], S(2), 1)); e(salu("s_add_u32", sTmp[0], sTmp[0], sHi)); e(salu("s_mul_i32", sTmp[0], sTmp[0], 3136))
            e(salu("s_and_b32", sTmp[0], sTmp[0], 0xffffff80))
            pf(vP[10], sU, sTmp[0])
        if OPT["sweep"] & 2:
            e(salu("s_lshl_b32", sTmp[0], S(2), 2)); e(salu("s_add_u32", sTmp[0], sTmp[0], sWave)); e(salu("s_mul_i32", sTmp[0], sTmp[0], 3584))
            pf(vP[10], sWQ, sTmp[0])
    if OPT["pf"]:
      if OPT['pf128']:
        e(valu("v_and_b32", vP[10], 3, vLane)); e(valu("v_min_u32", vP[10], 2, vP[10])); e(valu("v_lshrrev_b32", vP[11], 2, vLane))
        e(valu("v_mul_u32_u24", vP[11], 3584, vP[11])); e(valu("v_lshl_add_u32", vP[10], vP[10], 7, vP[11]))
        e(salu("s_mul_i32", sTmp[0], sQblk, 28)); e(salu("s_mul_i32", sTmp[3], sHi, 14)); e(salu("s_add_u32", sTmp[0], sTmp[0], sTmp[3]))
        e(salu("s_mul_i32", sTmp[0], sTmp[0], 3584)); e(salu("s_mul_i32", sTmp[3], sHead, 224)); e(salu("s_add_u32", sTmp[0], sTmp[0], sTmp[3]))
        e(salu("s_and_b32", sTmp[0], sTmp[0], 0xffffff80))
        pf(vP[10], sU, sTmp[0])
      else:
        e(valu("v_min_u32", vP[10], 4, l7)); e(valu("v_mul_u32_u24", vP[11], 3584, l8)); e(valu("v_lshl_add_u32", vP[10], vP[10], 6, vP[11]))
        e(salu("s_mul_i32", sTmp[0], sQblk, 28)); e(salu("s_mul_i32", sTmp[3], sHi, 14)); e(salu("s_add_u32", sTmp[0], sTmp[0], sTmp[3]))
        e(salu("s_mul_i32", sTmp[0], sTmp[0], 3584)); e(salu("s_mul_i32", sTmp[3], sHead, 224)); e(salu("s_add_u32", sTmp[0], sTmp[0], sTmp[3]))
        e(salu("s_and_b32", sTmp[0], sTmp[0], 0xffffffc0)); e(salu("s_add_u32", sTmp[3], sTmp[0], 8 * 3584))
        pf(vP[10], sU, sTmp[0]); pf(vP[10], sU, sTmp[3])
    e(salu("s_lshl_b32", sTmp[0], sHead, 20))
    for d, lo in ((sK, 66), (sV, 68)):
        e(salu("s_add_u32", d[0], S(lo), sTmp[0])); e(salu("s_addc_u32", d[1], S(lo + 1), 0))
        e(salu("s_mov_b32", d[2], 1 << 20)); e(salu("s_mov_b32", d[3], 0x20000))
    e(salu("s_add_u32", sPF[0], sPF[0], sTmp[0])); e(salu("s_addc_u32", sPF[1], sPF[1], 0))
    e(salu("s_mov_b32", sPF[2], 1 << 20)); e(salu("s_mov_b32", sPF[3], 0x20000))
    srd(sWQ, 70, 448 * 8192); srd(sWO, 72, 4096 * 896); srd(sW2, 4, 1792 * 896); srd(sWS, 6, 2 * PART + (2 << 20))
    if OPT["pf"] and OPT["wqearly"]:
        e(valu("v_lshrrev_b32", vP[10], 3, vLane)); e(valu("v_and_b32", vP[11], 6 if OPT["pf128"] else 7, vLane))
        e(valu("v_lshlrev_b32", vP[10], 13, vP[10])); e(valu("v_lshl_add_u32", vP[10], vP[11], 6, vP[10]))
        e(salu("s_mul_i32", sTmp[0], sQblk, 28)); e(salu("s_mul_i32", sTmp[3], sWave, 7)); e(salu("s_add_u32", sTmp[0], sTmp[0], sTmp[3]))
        e(salu("s_lshl_b32", sTmp[0], sTmp[0], 13)); e(salu("s_lshl_b32", sTmp[3], sHead, 9)); e(salu("s_add_u32", sTmp[0], sTmp[0], sTmp[3]))
        pf(vP[10], sWQ, sTmp[0])
    e(salu("s_lshl_b32", sCW, sQblk, 4)); e(salu("s_add_u32", sCW, sCW, sHead)); e(salu("s_lshl_b32", sCW, sCW, 8)); e(salu("s_add_u32", sCW, sCW, CNT))
    e(valu("v_mov_b32", V(16), 0)); e(valu("v_mov_b32", V(17), 0))
    e(raw("s_mov_b64 exec, 1", "salu")); e(bstore(V(16, 2), V(16), sWS, sCW, tag="stF", flags="sc1")); e(raw("s_mov_b64 exec, -1", "salu"))
    if OPT["touch"]:
        e(valu("v_mov_b32", vP[10], 0))
        for srd_, so in ((sWQ, sPoff), (sK, 0), (sV, 0), (sW2, sDoff), (sWO, sWoff), (sWS, sStF[0]), (sWS, sStS[0])): pf(vP[10], srd_, so)
    o += stamp(2, 4)
    e(valu("v_mov_b32", vP[11], vP[3]))
    e(EXM)
    for g_ in xg[OPT["xearly"]:OPT["xfirst"]]: o += g_
    e(EXF)
    mid0 = [[EXM] + g_ + [EXF] for g_ in xg[OPT["xfirst"]:]]
    mid0[-1] += m0_init(0)
    mid1 = dma_ops(0)
    o += stamp(2, 2) + stamp(6, 4)
    late = []
    for st in (1,):
        for grp in dma_ops(st): late += grp
    e(raw("s_load_dwordx4 s[72:75], s[0:1], 72", "smem")); e(raw("s_waitcnt lgkmcnt(0)", "wait"))
    srd(sOUT, 72, 2048 * 896); srd(sDBG, 74, 256)
    if OPT["touch"]:
        pf(vP[10], sDBG, 0); pf(vP[10], sOUT, sTmp[6])
    pfl = []
    e = pfl.append
    t0, t1 = sTmp[5], sTmp[6]
    va, vb = V(14), V(15)
    if OPT["pf"]:
        R = 448 // OPT["wqp"]; L = R // 16; sh = {28: 1, 14: 2, 7: 3}[L]
        e(salu("s_lshl_b32", t0, sQblk, 2)); e(salu("s_add_u32", t0, t0, sWave)); e(salu("s_mul_i32", t0, t0, L))
        e(valu("v_lshrrev_b32", va, sh, vLane)); e(valu("v_min_u32", va, L - 1, va)); e(valu("v_add_u32", va, t0, va))
        e(valu("v_and_b32", vb, 3, va)); e(valu("v_lshrrev_b32", va, 2, va)); e(valu("v_lshlrev_b32", va, 13, va))
        e(valu("v_lshl_add_u32", va, vb, 7, va)); e(salu("s_lshl_b32", t0, sHead, 9))
        for k in range(OPT["wqp"]):
            pf(va, sWQ, t0)
            if k + 1 < OPT["wqp"]: e(salu("s_add_u32", t0, t0, R * 8192))
        if OPT["pf128"]: e(valu("v_lshrrev_b32", va, 2, vLane)); e(valu("v_lshlrev_b32", va, 7, va))
        else: e(valu("v_lshlrev_b32", va, 5, vLane))
        e(salu("s_lshl_b32", t0, sQblk, 2)); e(salu("s_add_u32", t0, t0, sWave)); e(salu("s_mul_i32", t0, t0, 25 * 64))
        e(salu("s_mul_i32", t1, sHead, 112 * 896)); e(salu("s_add_u32", t0, t0, t1))
        pf(va, sW2, t0)
        e(salu("s_lshr_b32", t0, sWave, 1))
        e(salu("s_lshl_b32", sPFoff, sQblk, 1)); e(salu("s_add_u32", sPFoff, sPFoff, t0)); e(salu("s_lshl_b32", sPFoff, sPFoff, 11))
        for k in range(OPT["pfdist"]):
            pf(va, sPF, sPFoff); e(salu("s_add_u32", sPFoff, sPFoff, 65536))
    return o, (late, mid0, mid1), pfl

vR = [vP[12], vP[13]]; vNB = [vP[14], vP[15]]
def sprinkle(ops, groups):
    out = []; n = len(groups); step = len(ops) // (n + 1) if n else 0
    k = 0
    for i, o_ in enumerate(ops):
        if k < n and i == step * k: out += groups[k]; k += 1
        out.append(o_)
    for g_ in groups[k:]: out += g_
    return out

def ln_stats(x):
    late, mid0, mid1 = x
    o = []
    ones = sTmp[4]
    o.append(salu("s_mov_b32", ones, 0x3f803f80))
    for i in range(8): o.append(valu("v_mov_b32", vP[i], 0))
    for u in range(2):
        o.append(wait_vm_tag(["x%d" % u]))
        if u == 1: o += stamp(7, 4)
        for ks in range(14): o.append(dsr("ds_read_b128", XN[u][ks], vP[11], u * 16 * XSTR + ks * 64))
        w = []; e = w.append
        a = [vP[4 * u + i] for i in range(4)]
        for ks in range(14):
            for i in range(4):
                x = XN[u][ks][i]
                e(valu("v_dot2c_f32_bf16", a[i & 1], ones, x)); e(valu("v_dot2c_f32_bf16", a[2 + (i & 1)], x, x))
        if u == 1:
            o += sprinkle(w, mid1) + [wait_lgkm0(), barrier()] + late
            w = []; e = w.append
        t = vP[8 + u]
        e(valu("v_add_f32", a[0], a[0], a[1])); e(valu("v_add_f32", a[2], a[2], a[3]))
        w += xreduce("v_add_f32", a[0], t) + xreduce("v_add_f32", a[2], t)
        mean, var = a[0], a[2]
        e(valu("v_mul_f32", mean, 1.0 / 448, mean)); e(valu("v_mul_f32", var, 1.0 / 448, var))
        e(valu("v_fma_f32", var, f"-{mean}", mean, var)); e(valu("v_max_f32", var, 0, var))
        w += round_bf16(var)
        e(valu("v_add_f32", var, 1e-5, var)); w += round_bf16(var)
        e(valu("v_sqrt_f32", var, var)); w += round_bf16(var)
        e(valu("v_rcp_f32", vR[u], var))
        w += round_bf16(mean)
        e(valu("v_mul_f32", vNB[u], mean, vR[u])); e(valu("v_sub_f32", vNB[u], 0, vNB[u]))
        for ks in range(14 if u == 0 else 2): w += ln_apply(ks, u, True)
        o += sprinkle(w, mid0) if u == 0 else w
    return o

def ln_apply(ks, u, burst=False):
    o = []; e = o.append
    if burst:
        t = V(16 + 8 * (ks & 1), 8)
        sel = "op_sel:[0,%d,%d] op_sel_hi:[1,%d,%d]" % (u, u, u, u)
        for i in range(4):
            e(valu("v_lshlrev_b32", t[2 * i], 16, XN[u][ks][i])); e(valu("v_and_b32", t[2 * i + 1], 0xffff0000, XN[u][ks][i]))
        for i in range(4): e(valu("v_pk_fma_f32", t[2 * i:2 * i + 2], t[2 * i:2 * i + 2], V(252, 2), V(254, 2), mods=sel))
        for i in range(4): e(valu("v_cvt_pk_bf16_f32", XN[u][ks][i], t[2 * i], t[2 * i + 1]))
        return o
    for i in range(4):
        x = XN[u][ks][i]
        lo, hi = vP[2 * i], vP[2 * i + 1]
        e(valu("v_lshlrev_b32", lo, 16, x)); e(valu("v_and_b32", hi, 0xffff0000, x))
        e(valu("v_fma_f32", lo, lo, vR[u], vNB[u])); e(valu("v_fma_f32", hi, hi, vR[u], vNB[u]))
        e(valu("v_cvt_pk_bf16_f32", x, lo, hi))
    return o

def silu_ops():
    o = []; burst = []
    n = 0
    for u in range(2):
        for p in range(2): o.append(valu("v_accvgpr_write_b32", HB[u][3][2 + p], 0))
    for ft in range(7):
        for u in range(2):
            pk = n >= 14 - OPT["silupk"]; n += 1
            e = (burst if pk else o).append
            g, up = GU[0][ft][u], GU[1][ft][u]
            t = V(240 + 4 * (u & 1), 4)
            if pk:
                c = V(248, 2)
                for h in range(2): e(valu("v_pk_mul_f32", t[2 * h:2 * h + 2], g[2 * h:2 * h + 2], c, mods="op_sel:[0,0] op_sel_hi:[1,0]"))
                for r in range(4): e(valu("v_exp_f32", t[r], t[r]))
                for h in range(2): e(valu("v_pk_mul_f32", g[2 * h:2 * h + 2], g[2 * h:2 * h + 2], up[2 * h:2 * h + 2]))
                for h in range(2): e(valu("v_pk_add_f32", t[2 * h:2 * h + 2], t[2 * h:2 * h + 2], c, mods="op_sel:[0,1] op_sel_hi:[1,1]"))
                for r in range(4): e(valu("v_rcp_f32", t[r], t[r]))
                for h in range(2): e(valu("v_pk_mul_f32", g[2 * h:2 * h + 2], g[2 * h:2 * h + 2], t[2 * h:2 * h + 2]))
            else:
                for r in range(4): e(valu("v_mul_f32", t[r], -LOG2E, g[r]))
                for r in range(4): e(valu("v_exp_f32", t[r], t[r]))
                for r in range(4): e(valu("v_mul_f32", g[r], g[r], up[r]))
                for r in range(4): e(valu("v_add_f32", t[r], 1.0, t[r]))
                for r in range(4): e(valu("v_rcp_f32", t[r], t[r]))
                for r in range(4): e(valu("v_mul_f32", g[r], g[r], t[r]))
            for p in range(2):
                e(valu("v_cvt_pk_bf16_f32", up[p], g[2 * p], g[2 * p + 1]))
            for p in range(2):
                e(valu("v_accvgpr_write_b32", HB[u][ft >> 1][2 * (ft & 1) + p], up[p]))
    if burst: burst = [valu("v_mov_b32", V(248), -LOG2E), valu("v_mov_b32", V(249), 1.0)] + burst
    return o, burst

vXaddr = vT[3]
def qconv_ops(xbase_own):
    o = []; e = o.append
    for u in range(2):
        for ks in range(8):
            q = Q[u][ks]
            t = [vP[8 * (ks & 1) + i] for i in range(8)]
            for h in range(2):
                for r in range(4): e(valu("v_accvgpr_read_b32", t[4 * h + r], QT[2 * ks + h][u][r]))
            for i in range(8): e(valu("v_mul_f32", t[i], QSCALE, t[i]))
            for p in range(4): e(valu("v_cvt_pk_bf16_f32", q[p], t[2 * p], t[2 * p + 1]))
            e(perm32(q[0], q[2])); e(perm32(q[1], q[3])); e(perm16(q[0], q[2])); e(perm16(q[1], q[3]))
            e(dsw("ds_write_b128", vXaddr, q, (u * 8 + ks) * 1024))
    return o

def piece(acc, grp, u, half, pk, sbase, st):
    cv = []
    for t in range(2):
        a = acc[2 * half + t][u]
        cv += [valu("v_cvt_pk_bf16_f32", pk[2 * t], a[0], a[1]), valu("v_cvt_pk_bf16_f32", pk[2 * t + 1], a[2], a[3])]
    rem = grp * 2 + half
    so = [salu("s_add_u32", st, sbase[0], (u * 8 + rem) * 1024) if rem < 8 else salu("s_add_u32", st, sbase[1], (u * 6 + rem - 8) * 1024),
          bstore(pk, vSt, sWS, st, tag="stF" if sbase is sStF else ("stA" if rem < 8 else "stB"), flags="sc1")]
    return cv, so

def paced_out(avail, reuse, n, sbase, quads, pace):
    cvi, sti, left = [], [], []
    tS = []
    nq = len(quads)
    t = -10**9
    for p in range(28):
        g, u, half = p // 4, (p >> 1) & 1, p & 1
        cv, so = piece(ACCD[g & 1], g, u, half, quads[p % nq], sbase, sTmp[p % 4])
        c0 = min(avail[g], n - 1)
        if p >= nq:
            assert tS[p - nq] is not None, "staging overflow"
            c0 = max(c0, tS[p - nq] + 3)
        c1 = max(c0, min(reuse[g], c0 + 12, n - 1))
        assert c0 <= max(reuse[g], avail[g]), (p, c0, reuse[g])
        cvi += [Item(o, rel=c0, dl=c1) for o in cv]
        t = max(t + pace, c1 + 1)
        if t + 2 < n:
            sti += [Item(so[0], rel=t - 1, dl=t + 1), Item(so[1], rel=t, dl=t + 2)]; tS.append(t + 2)
        else:
            left.append(so); tS.append(None)
    return cvi, sti, left

def items(ops, rel, dl): return [Item(o, rel=rel, dl=dl) for o in ops]

def exp_groups(Sc):
    groups = []
    for u in range(4):
        for hp in range(2):
            r = 4 * hp; x = Sc[u]
            groups.append([valu("v_exp_f32", x[r], x[r]), valu("v_exp_f32", x[r + 1], x[r + 1]), valu("v_exp_f32", x[r + 2], x[r + 2]),
                           valu("v_add_f32", vL[u], vL[u], x[r]), valu("v_add_f32", vL[u], vL[u], x[r + 1]),
                           valu("v_exp_f32", x[r + 3], x[r + 3]),
                           valu("v_cvt_pk_bf16_f32", x[2 * hp], x[r], x[r + 1]),
                           valu("v_add_f32", vL[u], vL[u], x[r + 2]), valu("v_add_f32", vL[u], vL[u], x[r + 3]),
                           valu("v_cvt_pk_bf16_f32", x[2 * hp + 1], x[r + 2], x[r + 3])])
    return groups
NG1 = OPT["split"] // 4
def sm_part(Sc, part, rel, dl):
    g = exp_groups(Sc)
    g = g[:NG1] if part == 0 else g[NG1:]
    return [Item(o, rel=rel, dl=dl) for grp in g for o in grp]

def max_items(Sn, rel0, rel1, dl):
    r0 = [Sn[u][r] for u in range(4) for r in range(4)]
    r1 = [Sn[u][4 + r] for u in range(4) for r in range(4)]
    seq = [(valu("v_max3_f32", vTmax, r0[0], r0[1], r0[2]), rel0)]
    for i in range(3, 15, 2): seq.append((valu("v_max3_f32", vTmax, vTmax, r0[i], r0[i + 1]), rel0))
    seq.append((valu("v_max3_f32", vTmax, vTmax, r0[15], r1[0]), rel1))
    for i in range(1, 15, 2): seq.append((valu("v_max3_f32", vTmax, vTmax, r1[i], r1[i + 1]), rel1))
    seq.append((valu("v_max_f32", vTmax, vTmax, r1[15]), rel1))
    seq.append((valu("v_cmp_lt_f32", "vcc", THR, vTmax), rel1))
    return [Item(o, rel=r, dl=dl) for o, r in seq]

stubs = []
def branch(kind, site, par):
    nm = f"{kind}_{site}"
    if nm not in [s[0] for s in stubs]: stubs.append((nm, f"L_r1_{par}" if kind == "r1" else "L_r2"))
    return [raw(f"s_cbranch_vccnz L_stub_{nm}", "branch", rd=["vcc"]), label(f"L_ret_{nm}")]

def rowmax(x, tm, t2):
    return [valu("v_max3_f32", tm, x[0], x[1], x[2]), valu("v_max3_f32", tm, tm, x[3], x[4]), valu("v_max3_f32", tm, tm, x[5], x[6]),
            valu("v_max_f32", tm, tm, x[7])] + xreduce("v_max_f32", tm, t2)

def rare1(par):
    Sx = SBUF[par]
    ops = [label(f"L_r1_{par}"), nop(7)]
    for u in range(4):
        tm, t2 = vX[0], vX[1]
        ops += rowmax(Sx[u], tm, t2)
        ops.append(valu("v_max_f32", tm, 0, tm))
        for r in range(8): ops.append(valu("v_sub_f32", Sx[u][r], Sx[u][r], tm))
        for r in range(4): ops.append(valu("v_sub_f32", NEGM[u][r], NEGM[u][r], tm))
        ops.append(valu("v_exp_f32", vF[u], f"-{tm}"))
        ops.append(valu("v_mul_f32", vL[u], vL[u], vF[u]))
    return ops + [nop(3), raw(f"s_setpc_b64 {sRet}", "branch", rd=sRet.regs())]

def rare2():
    ops = [label("L_r2"), nop(15)]
    for dt in range(16):
        for u in range(4):
            for i in range(4): ops.append(valu("v_accvgpr_read_b32", vX[i], O[dt][u][i]))
            for i in range(4): ops.append(valu("v_mul_f32", vX[i], vX[i], vF[u]))
            for i in range(4): ops.append(valu("v_accvgpr_write_b32", O[dt][u][i], vX[i]))
    return ops + [nop(3), raw(f"s_setpc_b64 {sRet}", "branch", rd=sRet.regs())]

vV31 = vT[6]
UNR = OPT['unroll']
LOOP_LO = 2
LOOP_HI = 2 + (26 // UNR) * UNR
def iteration(j, carry):
    Sc, Sn = SBUF[j & 1], SBUF[(j + 1) & 1]
    ops = [marker(("iter", j))]
    site = f"{(j - LOOP_LO) % UNR}" if LOOP_LO <= j < LOOP_HI else f"p{j}"
    if j > 0: ops += branch("r2", site, 0)
    brk = OPT["brk"]
    fr = frags_K(j + 1, Sn, NEGM) + frags_V(j, Sc, zero=(j == 0))
    nxt = frags_K(j + 2, Sc, NEGM)[:NPRE] if j < 30 else frags_V(31, Sn, vaddr=vV31, f0=0)[:NPRE]
    def extra(info):
        pfi = []
        if OPT["pf"] and j % 2 == 0 and j < 28:
            pfi = [Item(pfload(vPFa, sPF, sPFoff), rel=56, dl=66), Item(salu("s_add_u32", sPFoff, sPFoff, 65536), rel=57, dl=70)]
        if j == 1:
            pfi = [Item(signal(offF, V(10), V(11)), rel=1, dl=2)]
        if j == 30:
            pfi = [Item(salu("s_lshl_b32", sTmp[0], sQblk, 4), rel=10, dl=40), Item(valu("v_and_b32", V(10), 3 if OPT["fbyte"] else 0, vLane), rel=12, dl=50),
                   Item(valu("v_lshlrev_b32", V(10), 2, V(10)), rel=12, dl=50),
                   Item(bload(V(11), V(10), sDBG, sTmp[0], flags="sc1", tag="pollF"), rel=56, dl=66)]
        if OPT["pf"] and j == 28:
            pfi = [Item(salu("s_lshl_b32", sTmp[0], sQblk, 2), rel=10, dl=40), Item(salu("s_add_u32", sTmp[0], sTmp[0], sWave), rel=10, dl=40),
                   Item(salu("s_mul_i32", sTmp[0], sTmp[0], 3584), rel=10, dl=40), Item(salu("s_mul_i32", sTmp[1], sHead, 256 * 896), rel=10, dl=40),
                   Item(salu("s_add_u32", sTmp[0], sTmp[0], sTmp[1]), rel=10, dl=40),
                   Item(valu("v_and_b32", vPFa, 62 if OPT["pf128"] else 63, vLane), rel=10, dl=50),
                   Item(valu("v_lshlrev_b32", vPFa, 6, vPFa), rel=10, dl=50), Item(pfload(vPFa, sWO, sTmp[0]), rel=56, dl=66)]
        return dict(sm=sm_part(Sc, 1, -1, 61) + sm_part(Sn, 0, brk, 127), mx=max_items(Sn, 36, 67, brk - 1), pf=pfi)
    def pe(info): return {brk: branch("r1", site, (j + 1) & 1)}
    body, carry = section(fr, NPRE, nxt, extra=extra, post_extra=pe, dma_first=carry if carry is not None and carry <= V31 else None,
                          verbose=OPT["verbose"] and j == 2, no_dma_after=V31)
    return ops + body, carry

XA = lambda w: 0
def last_iteration():
    Sc = SBUF[1]
    ops = [marker(("iter", 31))] + branch("r2", "p31", 0)
    fr = frags_V(31, Sc, vaddr=vV31, f0=0)
    vOa, vOb = V(12), V(14)
    pre = [valu("v_lshlrev_b32", vOa, 4, vLane), salu("s_mul_i32", sTmp[0], sWave, 24576), salu("s_lshl_b32", sTmp[1], sWave, 13),
           salu("s_add_u32", sTmp[1], sTmp[1], 3 * STG),
           valu("v_add_u32", vOb, sTmp[1], vOa), valu("v_add_u32", vOa, sTmp[0], vOa)]
    def extra(info):
        wr = []
        for dt in range(12):
            for u in (2, 3):
                wr.append(Item(dsw("ds_write_b128", vOa, O[dt][u], (dt * 2 + u - 2) * 1024), rel=min(63, info.last[dt] + 6), dl=63))
        return dict(sm=sm_part(Sc, 1, -1, -1), wr=wr)
    body, _ = section(fr, NPRE, [], extra=extra)
    ops += pre + body
    ops += [wait_lgkm0(), barrier()]
    for dt in range(12, 16):
        for u in (2, 3): ops.append(dsw("ds_write_b128", vOb, O[dt][u], ((dt - 12) * 2 + u - 2) * 1024))
    return ops

def fcheck(vd, sd):
    if not OPT["fbyte"]: return [valu("v_readfirstlane_b32", sd, vd), raw("s_nop 3", "salu")]
    return [valu("v_cmp_ne_u32", "vcc", 0x01010101, vd), raw("s_nop 3", "salu"), raw("s_cmp_eq_u64 vcc, 0", "salu", rd=["vcc"], wr=["scc"]),
            salu("s_cselect_b32", sd, 16, 0)]

FLG = []
def combine():
    o = [marker(("iter", 90))]; e = o.append
    o += fcheck(V(11), S(76))
    t = vX[0]
    for u in range(4): o += xreduce("v_add_f32", vL[u], t)
    st = V(32 + 4, 4)
    e(valu("v_mov_b32", st[0], NEGM[2][0])); e(valu("v_mov_b32", st[1], vL[2])); e(valu("v_mov_b32", st[2], NEGM[3][0])); e(valu("v_mov_b32", st[3], vL[3]))
    a = vX[1]
    e(salu("s_lshl_b32", sTmp[0], sWave, 10)); e(salu("s_add_u32", sTmp[0], sTmp[0], SPARE))
    e(valu("v_lshlrev_b32", vSt, 4, vLane))
    e(valu("v_add_u32", a, sTmp[0], vSt))
    e(dsw("ds_write_b128", a, st, 0))
    e(salu("s_xor_b32", sTmp[2], sWave, 1))
    e(salu("s_lshl_b32", sTmp[0], sTmp[2], 10)); e(salu("s_add_u32", sTmp[0], sTmp[0], SPARE)); e(valu("v_add_u32", a, sTmp[0], vSt))
    pa, pb = vX[2], vX[3]
    e(salu("s_mul_i32", sTmp[0], sTmp[2], 24576)); e(valu("v_add_u32", pa, sTmp[0], vSt))
    e(salu("s_lshl_b32", sTmp[1], sTmp[2], 13)); e(salu("s_add_u32", sTmp[1], sTmp[1], 3 * STG)); e(valu("v_add_u32", pb, sTmp[1], vSt))
    e(salu("s_cmp_ge_u32", S(76), 16)); e(raw("s_cbranch_scc1 L_pdone_F", "branch"))
    o += poll("F", offF, V(64), V(65))
    o += [wait_lgkm0(), barrier()]
    o += red_addr()
    cur = []
    for x_ in red_loads(0, LDA, [0, 1]):
        cur.append(x_)
        if x_.kind == "vmem": FLG.append(cur); cur = []
    g1 = FLG[:OPT["fl1"]]
    if g1: o += g1.pop(0)
    e(dsr("ds_read_b128", st, a, 0))
    RX = [[V(128 + (dt * 2 + u) * 4, 4) for u in range(2)] for dt in range(16)]
    for dt in range(16):
        for u in range(2):
            if dt < 12: e(dsr("ds_read_b128", RX[dt][u], pa, (dt * 2 + u) * 1024))
            else: e(dsr("ds_read_b128", RX[dt][u], pb, ((dt - 12) * 2 + u) * 1024))
            if (dt * 2 + u) % 6 == 5 and g1: o += g1.pop(0)
    wk = [vF[0], vF[1]]; wp = [vF[2], vF[3]]
    for u in range(2):
        nm_o, l_o, nm_p, l_p = NEGM[u][0], vL[u], st[2 * u], st[2 * u + 1]
        mn, fa, fb = vT[0], vT[1], vT[2]
        e(valu("v_min_f32", mn, nm_o, nm_p))
        e(valu("v_sub_f32", fa, mn, nm_o)); e(valu("v_sub_f32", fb, mn, nm_p))
        e(valu("v_exp_f32", fa, fa)); e(valu("v_exp_f32", fb, fb))
        e(valu("v_mul_f32", mn, fa, l_o)); e(valu("v_fma_f32", mn, fb, l_p, mn))
        e(valu("v_rcp_f32", mn, mn))
        e(valu("v_mul_f32", wk[u], fa, mn)); e(valu("v_mul_f32", wp[u], fb, mn))
    for x_ in g1: o += x_
    o += [wait_lgkm0(), barrier()]
    e(valu("v_lshrrev_b32", vX[0], 3, vLane)); e(valu("v_and_b32", vX[1], 7, vLane))
    e(valu("v_mul_u32_u24", vDmaN, 16 * 896, vX[0])); e(valu("v_lshl_add_u32", vDmaN, vX[1], 4, vDmaN))
    o += m0_init(W0)
    for s_ in range(W0, W0 + 3):
        for grp in dma_ops(s_): o += grp
    e(valu("v_sub_u32", vPaddrLo, vVaddr, sKh)); e(valu("v_add_u32", vPaddrHi, HALF, vPaddrLo))
    e(valu("v_lshlrev_b32", vSt, 4, vLane))
    TMPB = [[A((4 * dt + 2) * 4 + 0, 2) for dt in range(16)], [A((4 * dt + 3) * 4, 2) for dt in range(16)]]
    tt = [V(64 + i) for i in range(16)]
    n = 0
    g2 = FLG[OPT["fl1"]:OPT["fl1"] + OPT["fl2"]]
    for dt in range(16):
        for u in range(2):
            if g2 and (n * OPT["fl2"]) // 32 != ((n + 1) * OPT["fl2"]) // 32: o += g2.pop(0)
            x = [tt[(4 * n + i) % 16] for i in range(4)]; n += 1
            for r in range(4): e(valu("v_accvgpr_read_b32", x[r], O[dt][u][r]))
            xx = Reg("v", x[0].lo, 4)
            sel = "op_sel:[0,%d] op_sel_hi:[1,%d]" % (u, u)
            sel3 = "op_sel:[0,%d,0] op_sel_hi:[1,%d,1]" % (u, u)
            for h in range(2): e(valu("v_pk_mul_f32", xx[2 * h:2 * h + 2], xx[2 * h:2 * h + 2], V(40, 2), mods=sel))
            for h in range(2): e(valu("v_pk_fma_f32", xx[2 * h:2 * h + 2], RX[dt][u][2 * h:2 * h + 2], V(42, 2), xx[2 * h:2 * h + 2], mods=sel3))
            ob = RX[dt & ~1][u]
            e(valu("v_cvt_pk_bf16_f32", ob[2 * (dt & 1)], x[0], x[1])); e(valu("v_cvt_pk_bf16_f32", ob[2 * (dt & 1) + 1], x[2], x[3]))
    return o, RX

offA2 = [salu("s_lshl_b32", sTmp[6], sQblk, 2), salu("s_add_u32", sTmp[6], sTmp[6], 64)]
def signal(off_sgpr_ops, va, vd):
    o = list(off_sgpr_ops)
    t = Reg("s", int(o[-1].wr[0][1:]))
    o += [salu("s_cmp_eq_u32", sWave, 0), salu("s_cselect_b32", t, t, 0x10000),
          valu("v_mov_b32", va, t), valu("v_mov_b32", vd, 1), raw("s_mov_b64 exec, 1", "salu"),
          Op(f"buffer_store_byte {vd}, {va}, {sDBG}, {sHead} offen sc1" if OPT["fbyte"] else f"buffer_atomic_add {vd}, {va}, {sDBG}, 0 offen",
             "vmem", rd=va.regs() + vd.regs() + sDBG.regs(), tag="sig"),
          raw("s_mov_b64 exec, -1", "salu")]
    return o
def signal16(which, va, vd, t):
    return [salu("s_lshl_b32", t, sQblk, 12), salu("s_add_u32", t, t, CNT + 4 * which),
            salu("s_cmp_eq_u32", sWave, 0), salu("s_cselect_b32", t, t, 0x7ff00000),
            valu("v_lshlrev_b32", va, 8, vLane), valu("v_add_u32", va, t, va), valu("v_mov_b32", vd, 1),
            salu("s_lshl_b32", t, 1, sHead), salu("s_xor_b32", t, t, 0xffff),
            raw(f"s_mov_b32 exec_lo, {t}", "salu", rd=t.regs()), raw("s_mov_b32 exec_hi, 0", "salu"),
            Op(f"buffer_atomic_add {vd}, {va}, {sWS}, 0 offen", "vmem", rd=va.regs() + vd.regs() + sWS.regs(), tag="sig"),
            raw("s_mov_b64 exec, -1", "salu")]
def poll2(name, which, va, vd2):
    return [valu("v_mov_b32", va, 0), salu("s_mov_b32", sTmp[1], 0), label(f"L_poll_{name}"),
            raw(f"buffer_load_dwordx2 {vd2}, {va}, {sWS}, {sCW} offen sc1", "salu"), raw("s_waitcnt vmcnt(0)", "wait"),
            raw(f"v_readfirstlane_b32 {sTmp[2]}, {vd2[0]}", "salu"), raw(f"v_readfirstlane_b32 {sTmp[3]}, {vd2[1]}", "salu"),
            salu("s_add_u32", sTmp[1], sTmp[1], 1), raw("s_nop 3", "salu"),
            salu("s_cmp_ge_u32", sTmp[2 + which], 15), raw(f"s_cbranch_scc1 L_pdone_{name}", "branch"),
            raw("s_sleep 2", "salu"), salu("s_cmp_lt_u32", sTmp[1], 0x40000), raw(f"s_cbranch_scc1 L_poll_{name}", "branch"),
            label(f"L_pdone_{name}")]
offF = [salu("s_lshl_b32", sTmp[0], sQblk, 4)]
offA = [salu("s_lshl_b32", sTmp[0], sQblk, 2), salu("s_add_u32", sTmp[0], sTmp[0], 64)]
offB = [salu("s_lshl_b32", sTmp[0], sQblk, 3), salu("s_add_u32", sTmp[0], sTmp[0], 128)]

def poll(name, off_ops, va, vd):
    o = list(off_ops) + [valu("v_and_b32", va, 3 if OPT["fbyte"] else 0, vLane), valu("v_lshlrev_b32", va, 2, va),
         salu("s_mov_b32", sTmp[1], 0), label(f"L_poll_{name}"),
         raw(f"buffer_load_dword {vd}, {va}, {sDBG}, {sTmp[0]} offen sc1", "salu"), raw("s_waitcnt vmcnt(0)", "wait")]
    o += fcheck(vd, sTmp[2])
    o += [salu("s_add_u32", sTmp[1], sTmp[1], 1),
         salu("s_cmp_ge_u32", sTmp[2], 16), raw(f"s_cbranch_scc1 L_pdone_{name}", "branch"),
         raw("s_sleep 2", "salu"), salu("s_cmp_lt_u32", sTmp[1], 0x40000), raw(f"s_cbranch_scc1 L_poll_{name}", "branch"),
         label(f"L_pdone_{name}")]
    return o
def poll0(name, off_ops, va, vd):
    return [salu("s_cmp_lg_u32", sWave, 0), raw(f"s_cbranch_scc1 L_pdone_{name}", "branch")] + poll(name, off_ops, va, vd)

LDV = [[V(128 + (k * 16 + h) * 4, 4) for h in range(16)] for k in range(2)]
LDA = [[O[h][2 + k] for h in range(16)] for k in range(2)]
vRa = [V(12), V(14)]
def red_addr():
    return [salu("s_lshl_b32", sTmp[0], sHead, 2), salu("s_add_u32", sTmp[0], sTmp[0], sWave),
            salu("s_lshl_b32", sTmp[1], sTmp[0], 10), salu("s_mul_i32", sTmp[2], sTmp[0], 768), salu("s_add_u32", sTmp[2], sTmp[2], 65536),
            valu("v_lshlrev_b32", vRa[1], 4, vLane), valu("v_add_u32", vRa[0], sTmp[1], vRa[1]), valu("v_add_u32", vRa[1], sTmp[2], vRa[1]),
            valu("v_cmp_gt_u32", "vcc", 48, vLane), valu("v_mov_b32", V(64), 0x7f000000), valu("v_cndmask_b32", vRa[1], V(64), vRa[1])]
def red_loads(region, LD, parts):
    o = []
    t = [sTmp[4], sTmp[5]]
    o += [salu("s_mul_i32", t[0], sQblk, 16 * PBLK), salu("s_add_u32", t[0], t[0], region)]
    for h in range(16):
        for k in parts: o.append(bload(LD[k][h], vRa[k], sWS, t[h & 1], flags="sc1", tag="red"))
        if h < 15: o.append(salu("s_add_u32", t[(h + 1) & 1], t[h & 1], PBLK))
    return o
sSelLo, sSelHi = S(72), S(73)
def red_sum(ACC, LD, k, tmp):
    o = []; e = o.append
    for h in range(16):
        src = []
        for p in range(4):
            x = LD[k][h][p]
            if x.k == "a":
                y = tmp[(4 * h + p) % 8]; e(valu("v_accvgpr_read_b32", y, x)); x = y
            src.append(x)
        for p in range(4):
            for hi in range(2):
                acc = ACC[k][2 * p + hi]
                e(valu("v_dot2_f32_bf16", acc, src[p], sSelHi if hi else sSelLo, 0 if h == 0 else acc))
    return o

def tail():
    o = [marker(("iter", 95))]; e = o.append
    G = [[V(16 + k * 8 + i) for i in range(8)] for k in range(2)]
    SA = [[V(32 + k * 8 + i) for i in range(8)] for k in range(2)]
    tmp = [V(96 + i) for i in range(8)]
    T_ = [V(54 + i) for i in range(8)]
    XV = [[V(62 + (k * 2 + t) * 2, 2) for t in range(2)] for k in range(2)]
    vo = [V(70), V(71)]
    c, un, q = V(72), V(73), V(74)
    def silu(k):
        F = G[k]
        for i in range(8): o.extend(round_bf16(F[i]))
        for i in range(8): e(valu("v_mul_f32", T_[i], -LOG2E, F[i]))
        for i in range(8): e(valu("v_exp_f32", T_[i], T_[i]))
        for i in range(8): e(valu("v_add_f32", T_[i], 1.0, T_[i]))
        for i in range(8): e(valu("v_rcp_f32", T_[i], T_[i]))
        for i in range(8): e(valu("v_mul_f32", F[i], F[i], T_[i]))
        for i in range(8): o.extend(round_bf16(F[i]))
    def final(k):
        for i in range(8): o.extend(round_bf16(SA[k][i]))
        for i in range(8): e(valu("v_mul_f32", SA[k][i], SA[k][i], G[k][i]))
        for i in range(8): o.extend(round_bf16(SA[k][i]))
        for t in range(2):
            for p in range(2):
                x = XV[k][t][p]
                e(valu("v_lshlrev_b32", tmp[0], 16, x)); e(valu("v_and_b32", tmp[1], 0xffff0000, x))
                e(valu("v_add_f32", tmp[0], tmp[0], SA[k][4 * t + 2 * p])); e(valu("v_add_f32", tmp[1], tmp[1], SA[k][4 * t + 2 * p + 1]))
                e(valu("v_cvt_pk_bf16_f32", x, tmp[0], tmp[1]))
            e(bstore(XV[k][t], vo[k], sOUT, 0, off=32 * t, flags=["", "nt", "sc1", "sc0 sc1"][OPT["oflag"]]))
    e(salu("s_mov_b32", sSelLo, 0x00003f80)); e(salu("s_mov_b32", sSelHi, 0x3f800000))
    sA, sB = S(74), S(75)
    def rawloads(k):
        for x_ in red_loads(PART, LDV, [k]): e(raw(x_.text, "salu"))
    e(valu("v_readfirstlane_b32", sA, FREEQ[15][0])); e(valu("v_readfirstlane_b32", sB, FREEQ[15][1]))
    e(salu("s_lshl_b32", sTmp[0], sHead, 2)); e(salu("s_add_u32", sTmp[0], sTmp[0], sWave))
    e(salu("s_mul_i32", sTmp[1], sQblk, PBLK))
    e(salu("s_lshr_b32", sTmp[2], sTmp[0], 3)); e(salu("s_mul_i32", sTmp[2], sTmp[2], 16 * 896)); e(salu("s_add_u32", sTmp[2], sTmp[2], sTmp[1]))
    e(salu("s_and_b32", sTmp[3], sTmp[0], 7)); e(salu("s_lshl_b32", sTmp[3], sTmp[3], 6)); e(salu("s_add_u32", sTmp[2], sTmp[2], sTmp[3]))
    e(valu("v_and_b32", vo[0], 15, vLane)); e(valu("v_mul_u32_u24", vo[0], 896, vo[0]))
    e(valu("v_lshrrev_b32", un, 4, vLane)); e(valu("v_lshl_add_u32", vo[0], un, 3, vo[0])); e(valu("v_add_u32", vo[0], sTmp[2], vo[0]))
    e(salu("s_mul_i32", sTmp[0], sTmp[0], 48)); e(salu("s_add_u32", sTmp[1], sTmp[1], 512))
    e(valu("v_add_u32", c, sTmp[0], vLane)); e(valu("v_lshrrev_b32", un, 6, c))
    e(valu("v_mul_u32_u24", q, 43, un)); e(valu("v_lshrrev_b32", q, 8, q))
    e(valu("v_mul_u32_u24", vo[1], 6, q)); e(valu("v_sub_u32", un, un, vo[1]))
    e(valu("v_and_b32", vo[1], 15, c)); e(valu("v_lshl_add_u32", vo[1], q, 4, vo[1]))
    e(valu("v_mul_u32_u24", vo[1], 896, vo[1])); e(valu("v_lshl_add_u32", vo[1], un, 6, vo[1]))
    e(valu("v_bfe_u32", un, c, 4, 2)); e(valu("v_lshl_add_u32", vo[1], un, 3, vo[1]))
    e(valu("v_add_u32", vo[1], sTmp[1], vo[1]))
    e(valu("v_cmp_gt_u32", "vcc", 48, vLane)); e(valu("v_mov_b32", un, 0x7fffff00))
    e(valu("v_cndmask_b32", vo[1], un, vo[1]))
    for k in range(2):
        for t in range(2): e(raw(bload(XV[k][t], vo[k], sX, 0, off=32 * t).text, "salu", rd=vo[k].regs()))
    if OPT["tailv"] == 1:
        e(salu("s_cmp_ge_u32", sA, 15)); e(raw("s_cbranch_scc0 L_noA", "branch"))
        rawloads(0)
        e(raw("s_waitcnt vmcnt(20)", "wait")); e(raw("s_branch L_drained", "branch"))
        e(label("L_noA"))
        e(raw("s_waitcnt vmcnt(4)", "wait"))
        e(label("L_drained"))
        o += stamp(2, 7)
        e(barrier())
        o += signal16(1, V(75), V(76), sTmp[0])
        o += stamp(3, 7)
        e(salu("s_cmp_ge_u32", sA, 15)); e(raw("s_cbranch_scc1 L_haveA", "branch"))
        o += red_sum(G, LDA, 0, tmp)
        o += poll2("A", 0, V(75), V(76, 2))
        e(salu("s_mov_b32", sB, sTmp[3]))
        rawloads(0)
        e(raw("s_branch L_joinA", "branch"))
        e(label("L_haveA"))
        e(salu("s_cmp_ge_u32", sB, 15)); e(raw("s_cbranch_scc0 L_noB1", "branch"))
        rawloads(1)
        e(salu("s_mov_b32", sA, 99))
        e(label("L_noB1"))
        o += red_sum(G, LDA, 0, tmp)
        e(label("L_joinA"))
    else:
        e(raw("s_waitcnt vmcnt(4)", "wait"))
        o += stamp(2, 7)
        e(barrier())
        o += signal16(1, V(75), V(76), sTmp[0])
        o += stamp(3, 7)
        e(salu("s_cmp_ge_u32", sA, 15)); e(raw("s_cbranch_scc1 L_haveA", "branch"))
        o += red_sum(G, LDA, 0, tmp)
        o += poll2("A", 0, V(75), V(76, 2))
        e(salu("s_mov_b32", sB, sTmp[3]))
        rawloads(0)
        e(raw("s_branch L_joinA", "branch"))
        e(label("L_haveA"))
        rawloads(0)
        e(salu("s_cmp_ge_u32", sB, 15)); e(raw("s_cbranch_scc0 L_noB1", "branch"))
        rawloads(1)
        e(salu("s_mov_b32", sA, 99))
        e(label("L_noB1"))
        o += red_sum(G, LDA, 0, tmp)
        e(label("L_joinA"))
    o += stamp(4, 7)
    silu(0)
    o += red_sum(G, LDA, 1, tmp)
    silu(1)
    o += stamp(5, 7)
    e(salu("s_cmp_eq_u32", sA, 99)); e(raw("s_cbranch_scc1 L_haveB", "branch"))
    e(salu("s_cmp_ge_u32", sB, 15)); e(raw("s_cbranch_scc1 L_pdone_B", "branch"))
    o += poll2("B", 1, V(75), V(76, 2))
    rawloads(1)
    e(label("L_haveB"))
    o += stamp(6, 7)
    e(raw("s_waitcnt vmcnt(16)", "wait"))
    o += red_sum(SA, LDV, 0, tmp)
    e(raw("s_waitcnt vmcnt(0)", "wait"))
    o += red_sum(SA, LDV, 1, tmp)
    final(0)
    final(1)
    return o
assert all((u * 43) >> 8 == u // 6 for u in range(50))

def pfpat(d, t):
    if OPT["pfpat"] == 0: return [valu("v_lshlrev_b32", d, 5, vLane)]
    sh = OPT["pfpat"]
    return [valu("v_lshrrev_b32", d, sh, vLane), valu("v_lshlrev_b32", d, 5 + sh, d),
            valu("v_and_b32", t, (1 << sh) - 1, vLane), valu("v_lshl_add_u32", d, t, 2, d)]

def build_main():
    prog, late, pfl = setup()
    if OPT["pfearly"]: prog += pfl; pfl = []
    prog += stamp(1) + stamp(4, 2)
    prog += ln_stats(late) + stamp(5, 2)
    prog += stamp(2) + stamp(6, 2)
    f1 = [f for st in range(18) for f in frags_stage(st)]
    Sn = SBUF[0]
    vK0 = vT[5]
    fK0 = frags_K(0, Sn, [0] * 4, kaddr=vK0, f0=16)
    prog += bar_ops(0) + stamp(7, 2)
    for f in f1[:len(FRA)]: prog += f.reads
    LEFT = []
    def extra(info):
        def first_of(key): return min(info.first[i] for i, f in enumerate(f1) if f.key == key)
        def last_of(key): return max(info.last[i] for i, f in enumerate(f1) if f.key == key)
        ln = []
        for ks in range(2, 14): ln += items(ln_apply(ks, 1), -1, first_of(("U", ks)) - 3)
        endU, endP = last_of(("U", 13)), last_of(("P", 13))
        so_, sb_ = silu_ops()
        dsl = first_of(("D", 0)) - 3
        sil = items(so_, endU + 5, dsl) + ([Item(sb_, rel=dsl, dl=dsl)] if sb_ else [])
        xa = [salu("s_lshr_b32", sTmp[5], sWave, 1), salu("s_mul_i32", sTmp[5], sTmp[5], (RB[20 % 4] - RB[19 % 4]) & 0xffffffff),
              salu("s_add_u32", sTmp[5], sTmp[5], sKh), salu("s_add_u32", sTmp[5], sTmp[5], RB[19 % 4]),
              valu("v_add_u32", vXaddr, sTmp[5], vSt)]
        qc = qconv_ops(None)
        relq = endP + 5
        qi = items(xa, relq, info.n - 1)
        qv = [o for o in qc if o.kind != "dsw"]
        qend = info.bar[17] + 4 if OPT["qspread"] else info.n - 1
        for k, o in enumerate(qv):
            qi.append(Item(o, rel=relq, dl=(relq + (qend - relq) * (k + 1) // len(qv)) if OPT["qspread"] else info.n - 1))
        qi += [Item(o, rel=max(relq, info.bar[17] + 1), dl=info.n - 1) for o in qc if o.kind == "dsw"]
        Q12 = [V(96 + 4 * i, 4) for i in range(4)] + [V(80 + 4 * i, 4) for i in range(4)] + [V(112 + 4 * i, 4) for i in range(4)]
        oc, os_, left = paced_out([last_of(("D", g)) + 5 for g in range(7)],
                                  [first_of(("D", g + 2)) - 3 if g + 2 <= 6 else info.n - 1 for g in range(7)], info.n, sStF, Q12, OPT["dpace"])
        LEFT.extend(left)
        pfi = []
        when = [OPT["pfwq"] + OPT["pfwqs"] * k for k in range(OPT["wqp"])] + [OPT["pfw2"]] + [OPT["pfkv0"] + OPT["pfkvs"] * k for k in range(OPT["pfdist"] + 1)]
        k = 0
        for o in pfl:
            pfi.append(Item(o, rel=when[k], dl=when[k] + 40))
            if o.kind == "vmem": k += 1
        return dict(ln=ln, sil=sil, qc=qi, oc=oc, os=os_, pf=pfi)
    body, carry = section(f1, len(FRA), [], extra=extra, dma_first=[2, 3], verbose=OPT["verbose"])
    prog += body
    prog += stamp(3) + stamp(7, 5)
    if OPT["stamps"] == 8:
        prog += [raw("s_memtime s[100:101]", "smem"), raw("s_waitcnt lgkmcnt(0)", "wait"),
                 salu("s_lshl_b32", sTmp[0], S(2), 2), salu("s_add_u32", sTmp[0], sTmp[0], sWave), salu("s_lshl_b32", sTmp[0], sTmp[0], 7),
                 salu("s_add_u32", sTmp[0], sTmp[0], 2 * PART + 65536), valu("v_mov_b32", V(100), 0)]
        for k, sr in enumerate(S8 + [100]):
            prog += [salu("s_sub_u32", sTmp[1], S(sr), S(sStamp)), valu("v_mov_b32", V(101 + k), sTmp[1]), bstore(V(101 + k), V(100), sWS, sTmp[0], off=4 * k)]
    assert carry == 20, carry
    print("deferred f stores:", len(LEFT))
    early = [so for so in LEFT if 80 <= int(so[1].extra[1][0][1:]) < 96]
    later = [so for so in LEFT if so not in early]
    for so in early[:2]: prog += so
    prog += [wait_lgkm0(), barrier()]
    prog += [salu("s_sub_u32", sTmp[0], SLOT, sKh), salu("s_sub_u32", sTmp[0], sTmp[0], sKh),
             valu("v_add_u32", vXaddr, sTmp[0], vXaddr)]
    for u in range(2):
        for ks in range(8): prog.append(dsr("ds_read_b128", Q[2 + u][ks], vXaddr, (u * 8 + ks) * 1024))
    for grp in dma_ops(21): prog += grp
    prog += [valu("v_subrev_u32", vK0, HALF, vKaddr), valu("v_add_u32", vV31, HALF, vVaddr), ] + pfpat(vPFa, V(10))
    for u in range(4): prog.append(valu("v_mov_b32", vL[u], 0))
    prog.append(salu("s_mov_b32", sCnt, (LOOP_HI - LOOP_LO) // UNR))
    for so in early[2:]: prog += so
    prog += bar_ops(K0)
    for f in fK0[:NPRE]: prog += f.reads
    nin = min(len(later), 4)
    def extraK0(info):
        it = []
        for k, so in enumerate(later[:nin]): it += [Item(so[0], rel=3 + 16 * k, dl=6 + 16 * k), Item(so[1], rel=4 + 16 * k, dl=7 + 16 * k)]
        return dict(os=it)
    body, carry = section(fK0, NPRE, frags_K(1, SBUF[1], NEGM)[:NPRE], dma_first=23, extra=extraK0)
    prog += body
    for grp in dma_ops(22): prog += grp
    later = later[nin:]
    for u in range(4):
        tm, t2 = vX[0], vX[1]
        prog += rowmax(Sn[u], tm, t2)
        for r in range(8): prog.append(valu("v_sub_f32", Sn[u][r], Sn[u][r], tm))
        for r in range(4): prog.append(valu("v_sub_f32", NEGM[u][r], 0, tm))
        if u % 2 == 1 and later: prog += later.pop(0)
    prog += sprinkle([o_ for it in sm_part(Sn, 0, 0, 0) for o_ in it.ops], later)
    prog += stamp(4) + stamp(1, 10)
    if OPT["stamps"] == 3:
        prog += [salu("s_lshl_b32", S(90), S(2), 2), salu("s_add_u32", S(90), S(90), sWave), salu("s_lshl_b32", S(90), S(90), 7),
                 salu("s_add_u32", S(90), S(90), 2 * PART + 65536)]
    for j in range(31):
        it, carry = iteration(j, carry)
        if j in (0, 1, 28, 29, 30): it += stamp({0: 2, 1: 3, 28: 5, 29: 6, 30: 7}[j], 10)
        if j == 28: it = it[:1] + stamp(4, 10) + it[1:]
        if LOOP_LO <= j < LOOP_HI and (j - LOOP_LO) % UNR == UNR - 1:
            it += [salu("s_sub_u32", sCnt, sCnt, 1), salu("s_cmp_lg_u32", sCnt, 0), raw("s_cbranch_scc1 L_loop", "branch", rd=["scc"])]
        if OPT["stamps"] == 3:
            st3 = [raw("s_memtime s[100:101]", "smem"), wait_lgkm0(), raw("s_waitcnt lgkmcnt(0)", "wait"), salu("s_sub_u32", S(100), S(100), S(sStamp)),
                   valu("v_mov_b32", V(12), S(100)), valu("v_mov_b32", V(14), 0), bstore(V(12), V(14), sWS, S(90)), salu("s_add_u32", S(90), S(90), 4)]
            k = len(it) - 3 if it[-1].kind == "branch" else len(it)
            it = it[:k] + st3 + it[k:]
        prog += it
    prog += last_iteration()
    prog += stamp(5)
    cmb, RX = combine()
    prog += cmb
    prog += stamp(6)
    fW = frags_W()
    prog += bar_ops(W0)
    for f in fW[:len(FRW)]: prog += f.reads
    LEFTW = []
    def extraW(info):
        QW = [V(80 + 4 * i, 4) for i in range(4)] + FREEQ[8:14]
        oc, os_, left = paced_out([info.last[32 * g + 31] + 5 for g in range(7)],
                                  [info.first[32 * (g + 2)] - 3 if g + 2 <= 6 else info.n - 1 for g in range(7)], info.n, sStS, QW, OPT["wpace"])
        LEFTW.extend(left)
        sg = [Item(signal16(0, FREEQ[14][0], FREEQ[14][1], sTmp[6]), rel=info.bar[W0 + 6] + 1, dl=info.bar[W0 + 6] + 1)]
        sg += [Item(valu("v_mov_b32", FREEQ[14][2], 0), rel=info.n - 40, dl=info.n - 36),
               Item(bload(FREEQ[15][0:2], FREEQ[14][2], sWS, sCW, flags="sc1", tag="cnt"), rel=info.n - 34, dl=info.n - 30)]
        fl = []
        for k, g_ in enumerate(FLG[OPT["fl1"] + OPT["fl2"]:]):
            for x_ in g_: fl.append(Item(x_, rel=2 + OPT["flpace"] * k, dl=8 + OPT["flpace"] * k))
        return dict(oc=oc, os=os_, sg=sg, fl=fl)
    body, _ = section(fW, len(FRW), [], extra=extraW, dma_first=W0 + 3, verbose=OPT["verbose"])
    prog += body
    print("deferred s stores:", len(LEFTW))
    for so in LEFTW: prog += so
    prog += stamp(5, 6) + stamp(1, 7) + stamp(7, 9)
    prog += tail()
    prog += stamp(7) + stamp(7, 7)
    if OPT["stamps"] in (1, 2, 4, 5, 6, 7, 9, 10):
        prog += [salu("s_lshl_b32", sTmp[0], S(2), 2), salu("s_add_u32", sTmp[0], sTmp[0], sWave), salu("s_lshl_b32", sTmp[0], sTmp[0], 6),
                 salu("s_add_u32", sTmp[0], sTmp[0], 2 * PART), valu("v_mov_b32", V(20), 0)]
        for k in range(1, 8):
            prog += [salu("s_sub_u32", sTmp[1], S(sStamp + k), S(sStamp)), valu("v_mov_b32", V(21), sTmp[1]),
                     bstore(V(21), V(20), sWS, sTmp[0], off=4 * k)]
    if OPT["dbgout"]:
        prog += [raw("s_mov_b64 exec, 1", "salu")]
        for k, wd in zip(range(1, 8), (1, 2, 3, 5, 6, 7, 9)):
            prog += [salu("s_sub_u32", sTmp[1], S(sStamp + k), S(sStamp)), valu("v_mov_b32", V(21), sTmp[1]), valu("v_mov_b32", V(20), 4 * wd),
                     raw(f"buffer_atomic_umax v21, v20, {sDBG}, 0 offen", "salu")]
    prog += [label("L_done"), raw("s_endpgm", "branch")]
    return prog

def finish(prog):
    for tag in ("stA", "stF"):
        w = [i for i, o in enumerate(prog) if o.kind == "pseudo" and o.tag and o.tag[0] == "waitvm" and tag in o.tag[1]]
        st = [i for i, o in enumerate(prog) if o.tag == tag]
        assert len(w) == 1 and max(st) < w[0], (tag, w, max(st))
    prog = insert_waits(prog)
    rep = []
    prog = pad_hazards(prog, report=rep)
    segs = []; cur = ("pro", [])
    segs.append(cur)
    for op in prog:
        if op.kind == "pseudo" and op.tag and op.tag[0] == "mark":
            cur = (op.tag[1][1], []); segs.append(cur)
        cur[1].append(op)
    d = dict(segs)
    for j in range(LOOP_LO + UNR, LOOP_HI):
        a, b = text_of(d[j]), text_of(d[j - UNR])
        if a != b:
            import difflib
            print("MISMATCH iter", j); print("\n".join(list(difflib.unified_diff(b.split("\n"), a.split("\n"), lineterm=""))[:40])); sys.exit(1)
    body = ""
    for k, ops in segs:
        if isinstance(k, int) and LOOP_LO + UNR <= k < LOOP_HI: continue
        if k == LOOP_LO: body += ".p2align 6\nL_loop:\n"
        body += text_of(ops) + "\n"
    tail = []
    for nm, tgt in stubs:
        tail += [label(f"L_stub_{nm}"), raw(f"s_call_b64 {sRet}, {tgt}", "branch"), raw(f"s_branch L_ret_{nm}", "branch")]
    tail += pad_hazards(rare1(0)) + pad_hazards(rare1(1)) + pad_hazards(rare2())
    body += text_of(tail) + "\nL_end:\n"
    print("nops inserted:", len(rep), "in loop:", [o.text for o in d[LOOP_LO] if o.kind == "nop"], "total instrs", body.count("\n"))
    return body

def build_reduce():
    o = []; e = o.append
    e(raw("s_cmp_ge_u32 s2, 448")); e(raw("s_cbranch_scc1 L_rdone", "branch"))
    e(raw("s_load_dwordx2 s[4:5], s[0:1], 0", "smem")); e(raw("s_load_dwordx2 s[6:7], s[0:1], 72", "smem")); e(raw("s_load_dwordx2 s[20:21], s[0:1], 88", "smem"))
    rX, rO, rW = S(8, 4), S(12, 4), S(16, 4)
    e(valu("v_lshrrev_b32", V(1), 6, V(0))); e(valu("v_and_b32", V(0), 63, V(0)))
    e(valu("v_readfirstlane_b32", S(22), V(1)))
    e(salu("s_lshl_b32", S(23), S(2), 2)); e(salu("s_add_u32", S(23), S(23), S(22)))
    e(valu("v_lshlrev_b32", V(2), 4, V(0)))
    e(salu("s_lshl_b32", S(24), S(23), 14))
    e(salu("s_add_u32", S(25), S(24), PART))
    e(raw("s_waitcnt lgkmcnt(0)", "wait"))
    for d, lo, sz in ((rX, 4, 2048 * 896), (rO, 6, 2048 * 896), (rW, 20, 2 * PART)):
        e(salu("s_mov_b32", d[0], S(lo))); e(salu("s_mov_b32", d[1], S(lo + 1))); e(salu("s_mov_b32", d[2], sz)); e(salu("s_mov_b32", d[3], 0x20000))
    LD = [[V(32 + (m * 16 + h) * 4, 4) for h in range(16)] for m in range(2)]
    for h4 in range(4):
        for m in range(2):
            for hh in range(4): e(bload(LD[m][4 * h4 + hh], V(2), rW, S(24 + (1 if OPT["rednof"] else m)), off=hh * 1024))
        if h4 < 3:
            e(salu("s_add_u32", S(24), S(24), 4096)); e(salu("s_add_u32", S(25), S(25), 4096))
    e(salu("s_mul_i32", S(26), S(23), 4682)); e(salu("s_lshr_b32", S(26), S(26), 16))
    e(salu("s_mul_i32", S(27), S(26), 14)); e(salu("s_sub_u32", S(27), S(23), S(27)))
    e(salu("s_mul_i32", S(26), S(26), 16 * 896)); e(salu("s_lshl_b32", S(27), S(27), 6)); e(salu("s_add_u32", S(26), S(26), S(27)))
    e(valu("v_and_b32", V(3), 15, V(0))); e(valu("v_mul_u32_u24", V(3), 896, V(3)))
    e(valu("v_lshrrev_b32", V(4), 4, V(0))); e(valu("v_lshl_add_u32", V(3), V(4), 3, V(3)))
    XV = [V(6, 2), V(8, 2)]
    for t in range(2): e(bload(XV[t], V(3), rX, S(26), off=32 * t))
    ACC = [[V(10 + m * 8 + i) for i in range(8)] for m in range(2)]
    tmp = [V(26 + i) for i in range(4)]
    for h in range(16):
        for m in range(2):
            for p in range(4):
                x = LD[m][h][p]
                if h == 0:
                    e(valu("v_lshlrev_b32", ACC[m][2 * p], 16, x)); e(valu("v_and_b32", ACC[m][2 * p + 1], 0xffff0000, x))
                else:
                    a, b = tmp[2 * (p & 1)], tmp[2 * (p & 1) + 1]
                    e(valu("v_lshlrev_b32", a, 16, x)); e(valu("v_and_b32", b, 0xffff0000, x))
                    e(valu("v_add_f32", ACC[m][2 * p], ACC[m][2 * p], a)); e(valu("v_add_f32", ACC[m][2 * p + 1], ACC[m][2 * p + 1], b))
    F, Sx = ACC[0], ACC[1]
    T_ = [V(32 + i) for i in range(8)]
    for i in range(8): o += round_bf16(F[i]) + round_bf16(Sx[i])
    for i in range(8): e(valu("v_mul_f32", T_[i], -LOG2E, F[i]))
    for i in range(8): e(valu("v_exp_f32", T_[i], T_[i]))
    for i in range(8): e(valu("v_add_f32", T_[i], 1.0, T_[i]))
    for i in range(8): e(valu("v_rcp_f32", T_[i], T_[i]))
    for i in range(8): e(valu("v_mul_f32", F[i], F[i], T_[i]))
    for i in range(8): o += round_bf16(F[i])
    for i in range(8): e(valu("v_mul_f32", F[i], F[i], Sx[i]))
    for i in range(8): o += round_bf16(F[i])
    for t in range(2):
        for p in range(2):
            x = XV[t][p]
            e(valu("v_lshlrev_b32", tmp[0], 16, x)); e(valu("v_and_b32", tmp[1], 0xffff0000, x))
            e(valu("v_add_f32", tmp[0], tmp[0], F[4 * t + 2 * p])); e(valu("v_add_f32", tmp[1], tmp[1], F[4 * t + 2 * p + 1]))
            e(valu("v_cvt_pk_bf16_f32", x, tmp[0], tmp[1]))
        e(bstore(XV[t], V(3), rO, S(26), off=32 * t))
    e(label("L_rdone")); e(raw("s_endpgm", "branch"))
    return text_of(pad_hazards(insert_waits(o))) + "\n"
assert all((w * 4682) >> 16 == w // 14 for w in range(1792))

HDR = open("recurrent_scan__mha_block_cached__glu_gated_swiglu__prompt.s.ref").read().split("; Override")[0]
def kd(name, vg, acc, sg):
    return f""".amdhsa_kernel {name}
  .amdhsa_next_free_vgpr {vg}
  .amdhsa_next_free_sgpr {sg}
  .amdhsa_accum_offset {acc}
  .amdhsa_group_segment_fixed_size 0
  .amdhsa_kernarg_size 96
  .amdhsa_user_sgpr_count 2
  .amdhsa_user_sgpr_kernarg_segment_ptr 1
  .amdhsa_system_sgpr_workgroup_id_x 1
.end_amdhsa_kernel
"""
main = finish(build_main())
NAME = "recurrent_scan__mha_block_cached__glu_gated_swiglu__prompt_kernel"
txt = HDR + f"""; @launch {'kernel=' + NAME + ' ' if OPT['aslist'] else ''}grid=(256,1,1) block=(256,1,1) lds=163840
.amdgcn_target "amdgcn-amd-amdhsa--gfx950"
.text
.globl {NAME}
.p2align 8
.type {NAME},@function
{NAME}:
""" + main + """.section .rodata,"a"
.p2align 6
""" + kd(NAME, 512, 256, 102)
open(sys.argv[1], "w").write(txt)
```

```python
import sys
from asmlib import *

OPT = dict(cap=8, bardelay=4, verbose=0, brk=78, split=16, stamps=0, dbg=0, stflag=0, nofst=0, kvflag=0, rt=0, wflag=0, pf=1, pfflag=0, pfdist=4, pfcode=1, xpre=12, rednof=0, aslist=1, pfearly=0, pfw2=330, pfkv0=450, pfkvs=100, pfwq=30, xfirst=22, touch=1, mix=0, qspread=1, dpace=11, wpace=15, chain=1, chaind=2, nba=8, nbv=6, bous=1, pfpat=2, unroll=2, fbyte=0, hmap=2, fl1=6, fl2=12, flpace=12, delay=0, pf128=1, wqearly=0, sweep=0, wqp=4, pfwqs=70, tailv=2, dbgout=0, oflag=0, xearly=16, silupk=7, lastsw=0)
for a in sys.argv[2:]:
    k, v = a.split("="); OPT[k] = int(v)

TIMER = 's_memrealtime' if OPT['rt'] else 's_memtime'
BSTR = 1056
SLOT = 16 * BSTR
STG = 2 * SLOT
RB = [0, 2 * STG, STG, 3 * STG]
HALF = 2 * STG
SPARE = 4 * STG
THR = 16.0
XSTR = 928
PBLK = 128 * 448 * 2
CNT = 2 * PART + (1 << 20)
XB = 163840 - 128 * XSTR
assert XB >= STG
QSCALE = 1.4426950408889634 / 16.0
LOG2E = 1.4426950408889634
PART = 2048 * 448 * 2 * 16

vLane = V(0)
vKaddr, vVaddr, vDma = V(1), V(2), V(3)
vL = [V(4 + i) for i in range(4)]
vTmax = V(8)
vT = [V(9 + i) for i in range(7)]
FRV = [V(16 + 4 * i, 4) for i in range(6)]
if OPT["nbv"] == 6: BSEQ = [b for n_ in (6, 5, 5, 6, 5, 5) for b in range(n_)]
else: BSEQ = [f % 4 for f in range(32)]
NPRE = 5 if OPT["nbv"] == 6 else 4
vF = [V(40 + i) for i in range(4)]
vX = [V(44 + i) for i in range(4)]
NEGM = [V(48 + 4 * u, 4) for u in range(4)]
SBUF = [[V(64 + 32 * p + 8 * u, 8) for u in range(4)] for p in range(2)]
Q = [[V(128 + 32 * u + 4 * ks, 4) for ks in range(8)] for u in range(4)]
O = [[A((4 * dt + u) * 4, 4) for u in range(4)] for dt in range(16)]
XN = [[V(128 + 56 * u + 4 * ks, 4) for ks in range(14)] for u in range(2)]
GU = [[[V(16 + ((m * 7 + ft) * 2 + u) * 4, 4) for u in range(2)] for ft in range(7)] for m in range(2)]
QT = [[A((2 * dt + u) * 4, 4) for u in range(2)] for dt in range(16)]
FRA = ([A(128 + 4 * i, 4) for i in range(8)] + [A(192 + 4 * i, 4) for i in range(8)])[:OPT["nba"]]
HB = [[A(160 + (u * 4 + kf) * 4, 4) for kf in range(4)] for u in range(2)]
vP = [V(240 + i) for i in range(16)]
vNaddrLo, vNaddrHi = V(4), V(5)
vPaddrLo, vPaddrHi = V(6), V(7)
vDmaU, vDmaP, vDmaN = V(8), V(9), V(10)
vSt = V(11)
ACCD = [[[V(16 + ((b * 4 + nt) * 2 + u) * 4, 4) for u in range(2)] for nt in range(4)] for b in range(2)]
vPk = [V(80 + 4 * i, 4) for i in range(4)]

sX, sK, sV, sWQ, sWO, sU, sW2, sWS = [S(8 + 4 * i, 4) for i in range(8)]
sRet = S(40, 2)
sWave, sHead, sQblk, sM0, sCnt = S(42), S(43), S(44), S(45), S(46)
sKoff, sVoff, sUoff, sPoff, sDoff, sWoff = S(47), S(48), S(49), S(50), S(51), S(52)
sStF, sStS = [S(53), S(54)], [S(55), S(56)]
sTmp = [S(57 + i) for i in range(7)]
sKh = S(80)
sStamp = 82

if OPT["mix"] == 1: MID = [("P", 0), ("P", 1), ("P", 2), ("P", 3), ("P", 4), ("D", 0), ("P", 5), ("D", 1), ("P", 6), ("D", 2), ("D", 3)]
elif OPT["mix"] == 2: MID = [("P", 0), ("P", 1), ("P", 2), ("P", 3), ("D", 0), ("P", 4), ("D", 1), ("P", 5), ("D", 2), ("P", 6), ("D", 3)]
else: MID = [("P", i) for i in range(7)] + [("D", i) for i in range(4)]
STAGES = [("U", i) for i in range(7)] + MID + [("K", 0), ("X", 0), ("X", 1)]
K0 = 18
for j in range(31): STAGES += [("K", j + 1), ("V", j)]
STAGES += [("V", 31)]
V31 = len(STAGES) - 1
W0 = len(STAGES)
STAGES += [("W", i) for i in range(7)]
NST = len(STAGES)
def stK(j): return K0 if j == 0 else 19 + 2 * j
def stV(j): return V31 if j == 31 else 22 + 2 * j
assert STAGES[stK(5)] == ("K", 5) and STAGES[stV(5)] == ("V", 5) and stK(1) % 4 == 1 and V31 % 4 == 3
NEXT_OVERRIDE = {21: 23, 23: 22, 22: 24}

def has_dma(st): return st < NST and STAGES[st][0] != "X"
def next_dma_stage(st):
    if st in NEXT_OVERRIDE: return NEXT_OVERRIDE[st]
    st += 1
    while st < NST and not has_dma(st): st += 1
    return st
def m0_init(st):
    return [salu("s_add_u32", "m0", sM0, RB[st % 4])] if st < NST else []

def dma_ops(st):
    ty, i = STAGES[st]
    groups = []
    nxt = m0_init(next_dma_stage(st))
    for ii in range(8):
        if ty in "KV":
            srd, soff = (sK, sKoff) if ty == "K" else (sV, sVoff)
            g = [dma(vDma, srd, soff, off=ii * 512, tag=st, flags=["", "nt", "sc1"][OPT["kvflag"]])]
            g += [salu("s_add_u32", "m0", "m0", BSTR - 512)] if ii < 7 else nxt + [salu("s_add_u32", soff, soff, 32768)]
        else:
            if ty == "U":   srd, soff, vo, rowb = sU, sUoff, vDmaU, 3584
            elif ty == "P": srd, soff, vo, rowb = sWQ, sPoff, vDmaP, 8192
            elif ty == "D": srd, soff, vo, rowb = sW2, sDoff, vDmaN, 896
            else:           srd, soff, vo, rowb = sWO, sWoff, vDmaN, 896
            g = [dma(vo, srd, soff, tag=st, flags=["", "nt", "sc1"][OPT["wflag"]])]
            if ty in "UP":
                step = [1, 1, 1, 5, 1, 1, 1, 64 - 11][ii] * rowb
            elif ty == "D":
                step = rowb if ii < 7 else 256 - 7 * rowb
            else:
                step = rowb if ii < 7 else 128 - 7 * rowb
            g += [salu("s_add_u32", "m0", "m0", BSTR)] if ii < 7 else nxt
            g.append(salu("s_add_u32", soff, soff, step & 0xffffffff))
        groups.append(g)
    return groups

def dma_items(st, lo, hi):
    if not has_dma(st): return []
    items = []
    for ii, g in enumerate(dma_ops(st)):
        r = lo + (hi - lo) * ii // 8
        items.append(Item(g[0], rel=r, dl=min(r + 3, hi - 1)))
        for o in g[1:]: items.append(Item(o, rel=min(r + 1, hi - 1), dl=min(r + 5, hi - 1)))
    return items

S8 = [83, 84, 85, 86, 87, 88, 89, 90, 91, 72, 73, 74, 75, 76, 77, 78, 79, 81]
BARSTAMP = {0: 1, 3: 2, 7: 3, 10: 4, 14: 5, 16: 6}
def bar_ops(st):
    r = [wait_vm_tag([st] + {W0 + 6: ["stA"], stK(2): ["stF"]}.get(st, []), lgkm0=True), barrier()]
    if st in BARSTAMP: r += stamp(BARSTAMP[st], 5)
    if st >= W0: r += stamp(st - W0 + 1, 9) if st < W0 + 6 else []
    if OPT["stamps"] == 8 and st < 18:
        r += [raw("s_memtime s[100:101]", "smem"), raw("s_waitcnt lgkmcnt(0)", "wait"), raw(f"s_mov_b32 s{S8[st]}, s100")]
    return r

class Frag:
    def __init__(self, st, buf, reads, mfmas, first=False):
        self.st, self.buf, self.reads, self.mfmas, self.first = st, buf, reads, mfmas, first
        self.chain = None

def tr2(buf, lo, hi, addr, o0, o1):
    a, base = (lo, 0) if addr < HALF else (hi, HALF)
    return [dsr("ds_read_b64_tr_b16", buf[0:2], a, addr - base + o0), dsr("ds_read_b64_tr_b16", buf[2:4], a, addr - base + o1)]

_fa = [0]
def nextA():
    b = FRA[_fa[0] % len(FRA)]; _fa[0] += 1; return b

def frags_stage(st):
    ty, i = STAGES[st]
    out = []
    ch = OPT["chain"]
    if ty in "UP":
        tiles = [(ft, m) for ft in range(7) for m in range(2)] if ty == "U" else list(range(16))
        order = [(t, sl) for t in tiles for sl in range(2)] if ch else [(t, sl) for sl in range(2) for t in tiles]
        for t, sl in order:
            ks = 2 * i + sl
            b = nextA()
            if ty == "U":
                ft, m = t
                rd = tr2(b, vNaddrLo, vNaddrHi, RB[st % 4] + sl * SLOT + m * 8 * BSTR + ft * 32, 0, 256); acc = GU[m][ft]
            else:
                rd = tr2(b, vNaddrLo, vNaddrHi, RB[st % 4] + sl * SLOT + t * 32, 0, 8 * BSTR); acc = QT[t]
            out.append(Frag(st, b, rd, [mfma(acc[u], b, XN[u][ks], 0 if ks == 0 else acc[u]) for u in range(2)]))
            out[-1].key = (ty, ks)
            if ch: out[-1].chain = (st, t)
    else:
        cd = OPT["chaind"] if ch else 1
        for sl in range(2):
            grp = 2 * i + sl
            if grp > 6: continue
            acc = ACCD[grp & 1]
            for k0 in range(0, 4, cd):
                for nt in range(4):
                    for kf in range(k0, k0 + cd):
                        b = nextA()
                        base = RB[st % 4] + sl * SLOT + 2 * kf * 128 + nt * 32
                        out.append(Frag(st, b, tr2(b, vPaddrLo, vPaddrHi, base, 0, 128),
                                        [mfma(acc[nt][u], b, HB[u][kf], 0 if kf == 0 else acc[nt][u]) for u in range(2)]))
                        out[-1].key = ("D", grp); out[-1].chain = (grp, k0, nt)
    out[0].first = True
    return out

def frags_K(j, Sn, cinit, kaddr=None, f0=0):
    st = stK(j)
    out = []
    for f in range(16):
        kt, ks = f >> 3, f & 7
        b = FRV[BSEQ[f0 + f]]
        rb = RB[st % 4]
        a, base = (vKaddr, HALF) if kaddr is None else (kaddr, 0)
        rd = [dsr("ds_read_b128", b, a, rb - base + kt * 512 + ks * 64)]
        mf = []
        for u in range(4):
            d = Sn[u][4 * kt:4 * kt + 4]
            mf.append(mfma(d, b, Q[u][ks], cinit[u] if ks == 0 else d))
        if OPT["chain"] and OPT["bous"] and (f >> 1) & 1: mf.reverse()
        out.append(Frag(st, b, rd, mf, first=(f == 0)))
        if OPT["chain"]: out[-1].chain = ("K", f >> 1)
    return out

def frags_V(j, Sc, zero=False, vaddr=None, f0=16):
    st = stV(j)
    out = []
    for f in range(16):
        b = FRV[BSEQ[f0 + f]]
        rb = RB[st % 4]
        a, base = (vVaddr, 0) if vaddr is None else (vaddr, HALF)
        rd = [dsr("ds_read_b64_tr_b16", b[2 * jj:2 * jj + 2], a, rb - base + jj * 512 + f * 32) for jj in range(2)]
        out.append(Frag(st, b, rd, [mfma(O[f][u], b, Sc[u][0:4], 0 if zero else O[f][u]) for u in range(4)], first=(f == 0)))
    return out

FREEQ = [V(128 + (dt * 2 + u) * 4, 4) for dt in range(1, 16, 2) for u in range(2)]
OB = [[V(128 + (2 * ks * 2 + u) * 4, 4) for ks in range(8)] for u in range(2)]
FRW = ([V(96 + 4 * i, 4) for i in range(8)] + FREEQ[:8])[:OPT["nba"]]
def frags_W():
    out = []
    n = 0
    cd = OPT["chaind"] if OPT["chain"] else 1
    for grp in range(7):
        st = W0 + grp
        acc = ACCD[grp & 1]
        for k0 in range(0, 8, cd):
            for nt in range(4):
                for ks in range(k0, k0 + cd):
                    sl, kq = ks >> 2, ks & 3
                    b = FRW[n % len(FRW)]; n += 1
                    base = RB[st % 4] + sl * SLOT + 2 * kq * 128 + nt * 32
                    out.append(Frag(st, b, tr2(b, vPaddrLo, vPaddrHi, base, 0, 128),
                                    [mfma(acc[nt][u], b, OB[u][ks], 0 if ks == 0 else acc[nt][u]) for u in range(2)],
                                    first=(ks == 0 and nt == 0)))
                    out[-1].chain = (grp, k0, nt)
    return out

def section(frags, npre, nxt, extra=None, post_extra=None, dma_first=None, verbose=False, no_dma_after=None):
    bb = []; first = [None] * len(frags); last = [None] * len(frags)
    i = 0
    while i < len(frags):
        k = i + 1
        while k < len(frags) and frags[i].chain is not None and frags[k].chain == frags[i].chain: k += 1
        for u in range(len(frags[i].mfmas)):
            for g_ in range(i, k):
                if first[g_] is None: first[g_] = len(bb)
                last[g_] = len(bb); bb.append(frags[g_].mfmas[u])
        i = k
    n = len(bb)
    lastuse = {}
    rel_of = {}
    seq = list(frags) + list(nxt)
    for i, f in enumerate(seq):
        key = str(f.buf)
        rel_of[i] = lastuse.get(key, -1)
        if i < len(frags): lastuse[key] = last[i]
        else: lastuse[key] = n - 1
    rd = []; bar = {}
    prev = -1
    for i in range(npre, len(seq)):
        f = seq[i]
        rel = max(rel_of[i], prev)
        if f.first:
            rel = min(n - 1, max(rel, prev + OPT["bardelay"]))
            rd.append(Item(bar_ops(f.st), rel=rel, dl=rel)); bar[f.st] = rel
        for o in f.reads: rd.append(Item(o, rel=min(rel, n - 1), dl=min(n - 1, rel + 2)))
        prev = rel
    post = {}
    for i in range(1, len(frags)): post[first[i] - 1] = [wait_regs(frags[i].buf.regs())]
    if nxt: post[n - 1] = [wait_regs(nxt[0].buf.regs())]
    dm = []
    bars = sorted(bar.items(), key=lambda x: x[1])
    if dma_first is not None:
        hi = max((bars[0][1] if bars else n) - 1, 8)
        lst = dma_first if isinstance(dma_first, list) else [dma_first]
        for k, s_ in enumerate(lst): dm += dma_items(s_, hi * k // len(lst), hi * (k + 1) // len(lst))
    carry = None
    for k, (s_, g) in enumerate(bars):
        if k + 1 < len(bars):
            if no_dma_after is None or s_ + 3 <= no_dma_after: dm += dma_items(s_ + 3, g + 1, bars[k + 1][1] - 1)
        else: carry = s_ + 3
    class Info: pass
    info = Info(); info.first, info.last, info.bar, info.n = first, last, bar, n
    streams = dict(rd=rd, dma=dm)
    if extra: streams.update(extra(info))
    if post_extra:
        for g, ops in post_extra(info).items():
            post[g] = post.get(g, []) + ops
    return schedule2(bb, streams, OPT["cap"], post=post, verbose=verbose), carry

def xreduce(op, x, t):
    return [valu("v_mov_b32", t, x), perm16(x, t), valu(op, x, x, t), valu("v_mov_b32", t, x), perm32(x, t), valu(op, x, x, t)]

def round_bf16(x):
    return [valu("v_cvt_pk_bf16_f32", x, x, x), valu("v_and_b32", x, 0xffff0000, x)]

def stamp(k, which=1):
    if OPT["stamps"] != which: return []
    return [raw(f"{TIMER} s[100:101]", "smem"), raw("s_waitcnt lgkmcnt(0)", "wait"), raw(f"s_mov_b32 s{sStamp + k}, s100")]

sDBG = S(64, 4)
sOUT = S(68, 4)
sPF = S(92, 4)
sPFoff = S(96)
sCW = S(97)
vPFd = V(13)
vPFa = V(9)
def pfload(voff, srd_, soff, off=0):
    o = bload(vPFd, voff, srd_, soff, off=off, tag="pf", flags=["", "nt", "sc1"][OPT["pfflag"]]); o.wr = []
    return o
PFFLAG = ["", "nt", "sc1"][OPT["pfflag"]]
def setup():
    o = []; e = o.append
    e(raw("s_cmp_ge_u32 s2, 256")); e(raw("s_cbranch_scc1 L_done", "branch"))
    e(raw("s_load_dwordx16 s[64:79], s[0:1], 0", "smem"))
    e(raw("s_load_dwordx2 s[4:5], s[0:1], 64", "smem"))
    e(raw("s_load_dwordx2 s[6:7], s[0:1], 88", "smem"))
    if OPT["stamps"]: e(raw(f"{TIMER} s[100:101]", "smem"))
    if OPT["delay"]:
        e(salu("s_mul_i32", sTmp[0], S(2), 37)); e(salu("s_and_b32", sTmp[0], sTmp[0], 15)); e(salu("s_mul_i32", sTmp[0], sTmp[0], OPT["delay"]))
        e(label("L_dly")); e(salu("s_cmp_eq_u32", sTmp[0], 0)); e(raw("s_cbranch_scc1 L_dlyd", "branch")); e(raw("s_sleep 64", "salu"))
        e(salu("s_sub_u32", sTmp[0], sTmp[0], 1)); e(raw("s_branch L_dly", "branch")); e(label("L_dlyd"))
    if OPT["pfcode"]:
        e(raw("s_getpc_b64 s[98:99]\nL_pc:", "salu", wr=["s98", "s99"]))
        e(salu("s_bfe_u32", sTmp[0], S(2), 0x30003))
        e(raw(f"s_mul_i32 {sTmp[0]}, {sTmp[0]}, (L_end-L_pc-16384)/7", "salu", rd=sTmp[0].regs(), wr=sTmp[0].regs()))
        e(salu("s_and_b32", sTmp[0], sTmp[0], 0xffffffc0))
        e(valu("v_and_b32", vP[1], 0xfe if OPT["pf128"] else 0xff, V(0)))
        e(valu("v_lshlrev_b32", vP[1], 6, vP[1])); e(valu("v_add_u32", vP[1], sTmp[0], vP[1]))
        e(Op(f"global_load_dword {vPFd}, {vP[1]}, s[98:99]", "vmem", rd=vP[1].regs() + ["s98", "s99"], tag="pf"))
    e(valu("v_lshrrev_b32", vP[0], 6, V(0)))
    e(valu("v_and_b32", vLane, 63, V(0)))
    e(valu("v_readfirstlane_b32", sWave, vP[0]))
    if OPT["hmap"] == 2:
        e(salu("s_and_b32", sHead, S(2), 7)); e(salu("s_lshl_b32", sHead, sHead, 1))
        e(salu("s_bfe_u32", sTmp[0], S(2), 0x10003)); e(salu("s_add_u32", sHead, sHead, sTmp[0]))
        e(salu("s_lshr_b32", sQblk, S(2), 4))
    else:
        e(salu("s_bfe_u32", sHead, S(2), 0x20001)); e(salu("s_lshl_b32", sHead, sHead, 2))
        e(salu("s_bfe_u32", sTmp[0], S(2), 0x20003)); e(salu("s_add_u32", sHead, sHead, sTmp[0]))
        e(salu("s_lshr_b32", sQblk, S(2), 5)); e(salu("s_lshl_b32", sQblk, sQblk, 1))
        e(salu("s_and_b32", sTmp[0], S(2), 1)); e(salu("s_add_u32", sQblk, sQblk, sTmp[0]))
    g, q16 = vP[1], vP[2]
    e(valu("v_lshrrev_b32", g, 4, vLane)); e(valu("v_and_b32", q16, 15, vLane))
    sHi, sLo = sTmp[1], sTmp[2]
    e(salu("s_lshr_b32", sHi, sWave, 1)); e(salu("s_and_b32", sLo, sWave, 1))
    e(salu("s_lshl_b32", sTmp[0], sQblk, 7)); e(salu("s_lshl_b32", sTmp[3], sWave, 5)); e(salu("s_add_u32", sTmp[0], sTmp[0], sTmp[3]))
    e(salu("s_mul_i32", sTmp[6], sTmp[0], 896))
    e(salu("s_mul_i32", sTmp[5], sTmp[3], XSTR)); e(salu("s_add_u32", sTmp[5], sTmp[5], XB))
    e(valu("v_mul_u32_u24", vP[3], XSTR, q16)); e(valu("v_lshl_add_u32", vP[3], g, 4, vP[3])); e(valu("v_add_u32", vP[3], sTmp[5], vP[3]))
    e(valu("v_and_b32", vP[4], 1, g)); e(valu("v_lshrrev_b32", vP[5], 1, g))
    e(valu("v_lshlrev_b32", vP[6], 2, vP[4])); e(valu("v_lshl_add_u32", vP[6], vP[5], 4, vP[6]))
    e(valu("v_mul_u32_u24", vDmaU, 3584, vP[6])); e(valu("v_lshl_add_u32", vDmaU, q16, 4, vDmaU))
    e(salu("s_mul_i32", sM0, sHi, SLOT)); e(salu("s_mul_i32", sTmp[0], sLo, 8 * BSTR)); e(salu("s_add_u32", sM0, sM0, sTmp[0]))
    e(salu("s_mul_i32", sUoff, sHi, 32 * 3584)); e(salu("s_mul_i32", sTmp[0], sHead, 224)); e(salu("s_add_u32", sUoff, sUoff, sTmp[0]))
    e(salu("s_lshl_b32", sKoff, sHi, 14)); e(salu("s_lshl_b32", sTmp[0], sLo, 12)); e(salu("s_add_u32", sKoff, sKoff, sTmp[0]))
    e(salu("s_mov_b32", sVoff, sKoff))
    e(salu("s_lshl_b32", sPoff, sHi, 18)); e(salu("s_lshl_b32", sTmp[0], sLo, 15)); e(salu("s_add_u32", sPoff, sPoff, sTmp[0]))
    e(salu("s_lshl_b32", sTmp[0], sHead, 9)); e(salu("s_add_u32", sPoff, sPoff, sTmp[0]))
    e(salu("s_mul_i32", sDoff, sHead, 112 * 896)); e(salu("s_mul_i32", sTmp[0], sLo, 8 * 896)); e(salu("s_add_u32", sDoff, sDoff, sTmp[0]))
    e(salu("s_lshl_b32", sTmp[3], sHi, 7)); e(salu("s_add_u32", sDoff, sDoff, sTmp[3]))
    e(salu("s_mul_i32", sWoff, sHead, 256 * 896)); e(salu("s_add_u32", sWoff, sWoff, sTmp[0]))
    e(salu("s_mul_i32", sTmp[3], sHi, 128 * 896)); e(salu("s_add_u32", sWoff, sWoff, sTmp[3]))
    e(salu("s_mul_i32", sKh, sLo, SLOT))
    e(salu("s_lshl_b32", sTmp[0], sQblk, 4)); e(salu("s_add_u32", sTmp[0], sTmp[0], sHead)); e(salu("s_mul_i32", sTmp[0], sTmp[0], PBLK))
    e(salu("s_lshl_b32", sTmp[3], sWave, 14)); e(salu("s_add_u32", sStF[0], sTmp[0], sTmp[3]))
    e(salu("s_mul_i32", sTmp[3], sWave, 12288)); e(salu("s_add_u32", sStF[1], sTmp[0], sTmp[3])); e(salu("s_add_u32", sStF[1], sStF[1], 65536))
    e(salu("s_add_u32", sStS[0], sStF[0], PART)); e(salu("s_add_u32", sStS[1], sStF[1], PART))
    e(valu("v_lshrrev_b32", vP[6], 5, vLane)); e(valu("v_and_b32", vP[7], 31, vLane))
    e(valu("v_lshlrev_b32", vDma, 13, vP[6])); e(valu("v_lshl_add_u32", vDma, vP[7], 4, vDma))
    e(valu("v_lshlrev_b32", vDmaP, 17, vP[6])); e(valu("v_lshl_add_u32", vDmaP, vP[7], 4, vDmaP))
    l8, l7 = vP[8], vP[9]
    e(valu("v_lshrrev_b32", l8, 3, vLane)); e(valu("v_and_b32", l7, 7, vLane))
    e(valu("v_mul_u32_u24", vDmaN, 16 * 896, l8)); e(valu("v_lshl_add_u32", vDmaN, l7, 4, vDmaN))
    e(valu("v_lshlrev_b32", vSt, 4, vLane))
    e(valu("v_bfe_u32", vP[6], vLane, 2, 2)); e(valu("v_lshl_add_u32", vP[6], vP[4], 2, vP[6]))
    e(valu("v_and_b32", vP[7], 3, vLane))
    e(valu("v_mul_u32_u24", vNaddrLo, BSTR, vP[6])); e(valu("v_lshl_add_u32", vNaddrLo, vP[5], 9, vNaddrLo))
    e(valu("v_lshl_add_u32", vNaddrLo, vP[7], 3, vNaddrLo)); e(valu("v_add_u32", vNaddrHi, HALF, vNaddrLo))
    e(valu("v_lshrrev_b32", vP[6], 2, vLane)); e(valu("v_mul_u32_u24", vPaddrLo, BSTR, vP[6]))
    e(valu("v_lshl_add_u32", vPaddrLo, vP[7], 3, vPaddrLo)); e(valu("v_add_u32", vPaddrHi, HALF, vPaddrLo))
    e(valu("v_add_u32", vVaddr, sKh, vPaddrLo))
    e(valu("v_mul_u32_u24", vKaddr, BSTR, q16)); e(valu("v_lshl_add_u32", vKaddr, g, 4, vKaddr))
    e(valu("v_add_u32", vKaddr, sKh, vKaddr)); e(valu("v_add_u32", vKaddr, HALF, vKaddr))
    e(raw("s_waitcnt lgkmcnt(0)", "wait"))
    if OPT["stamps"]: e(raw(f"s_mov_b32 s{sStamp}, s100"))
    o += stamp(1, 2) + stamp(1, 4)
    def srd(d, lo, size):
        e(salu("s_mov_b32", d[0], S(lo))); e(salu("s_mov_b32", d[1], S(lo + 1)))
        e(salu("s_mov_b32", d[2], size)); e(salu("s_mov_b32", d[3], 0x20000))
    srd(sX, 64, 2048 * 896)
    e(salu("s_mov_b32", "m0", sTmp[5]))
    xg = []
    for r in range(32):
        g_ = [dma(vSt, sX, sTmp[6], off=(r % 4) * 896, tag="x%d" % (r // 16))]
        if r % 4 < 3: g_.append(salu("s_add_u32", "m0", "m0", XSTR - 896))
        else: g_ += [salu("s_add_u32", "m0", "m0", XSTR + 3 * 896), salu("s_add_u32", sTmp[6], sTmp[6], 4 * 896)]
        xg.append(g_)
    EXM, EXF = raw("s_mov_b32 exec_hi, 0x00ffffff", "salu"), raw("s_mov_b32 exec_hi, -1", "salu")
    e(EXM)
    for g_ in xg[:OPT["xearly"]]: o += g_
    e(EXF)
    e(salu("s_cmp_eq_u32", sLo, 0))
    e(salu("s_cselect_b32", sU[0], S(76), S(78))); e(salu("s_cselect_b32", sU[1], S(77), S(79)))
    e(salu("s_cselect_b32", sPF[0], S(66), S(68))); e(salu("s_cselect_b32", sPF[1], S(67), S(69)))
    e(salu("s_mov_b32", sU[2], 448 * 3584)); e(salu("s_mov_b32", sU[3], 0x20000))
    def pf(voff, srd_, soff, off=0): e(pfload(voff, srd_, soff, off))
    if OPT["sweep"]:
        srd(sWQ, 70, 448 * 8192)
        e(valu("v_lshrrev_b32", vP[10], 1, vLane)); e(valu("v_lshlrev_b32", vP[10], 7, vP[10]))
        if OPT["sweep"] & 1:
            e(salu("s_lshl_b32", sTmp[0], S(2), 1)); e(salu("s_add_u32", sTmp[0], sTmp[0], sHi)); e(salu("s_mul_i32", sTmp[0], sTmp[0], 3136))
            e(salu("s_and_b32", sTmp[0], sTmp[0], 0xffffff80))
            pf(vP[10], sU, sTmp[0])
        if OPT["sweep"] & 2:
            e(salu("s_lshl_b32", sTmp[0], S(2), 2)); e(salu("s_add_u32", sTmp[0], sTmp[0], sWave)); e(salu("s_mul_i32", sTmp[0], sTmp[0], 3584))
            pf(vP[10], sWQ, sTmp[0])
    if OPT["pf"]:
      if OPT['pf128']:
        e(valu("v_and_b32", vP[10], 3, vLane)); e(valu("v_min_u32", vP[10], 2, vP[10])); e(valu("v_lshrrev_b32", vP[11], 2, vLane))
        e(valu("v_mul_u32_u24", vP[11], 3584, vP[11])); e(valu("v_lshl_add_u32", vP[10], vP[10], 7, vP[11]))
        e(salu("s_mul_i32", sTmp[0], sQblk, 28)); e(salu("s_mul_i32", sTmp[3], sHi, 14)); e(salu("s_add_u32", sTmp[0], sTmp[0], sTmp[3]))
        e(salu("s_mul_i32", sTmp[0], sTmp[0], 3584)); e(salu("s_mul_i32", sTmp[3], sHead, 224)); e(salu("s_add_u32", sTmp[0], sTmp[0], sTmp[3]))
        e(salu("s_and_b32", sTmp[0], sTmp[0], 0xffffff80))
        pf(vP[10], sU, sTmp[0])
      else:
        e(valu("v_min_u32", vP[10], 4, l7)); e(valu("v_mul_u32_u24", vP[11], 3584, l8)); e(valu("v_lshl_add_u32", vP[10], vP[10], 6, vP[11]))
        e(salu("s_mul_i32", sTmp[0], sQblk, 28)); e(salu("s_mul_i32", sTmp[3], sHi, 14)); e(salu("s_add_u32", sTmp[0], sTmp[0], sTmp[3]))
        e(salu("s_mul_i32", sTmp[0], sTmp[0], 3584)); e(salu("s_mul_i32", sTmp[3], sHead, 224)); e(salu("s_add_u32", sTmp[0], sTmp[0], sTmp[3]))
        e(salu("s_and_b32", sTmp[0], sTmp[0], 0xffffffc0)); e(salu("s_add_u32", sTmp[3], sTmp[0], 8 * 3584))
        pf(vP[10], sU, sTmp[0]); pf(vP[10], sU, sTmp[3])
    e(salu("s_lshl_b32", sTmp[0], sHead, 20))
    for d, lo in ((sK, 66), (sV, 68)):
        e(salu("s_add_u32", d[0], S(lo), sTmp[0])); e(salu("s_addc_u32", d[1], S(lo + 1), 0))
        e(salu("s_mov_b32", d[2], 1 << 20)); e(salu("s_mov_b32", d[3], 0x20000))
    e(salu("s_add_u32", sPF[0], sPF[0], sTmp[0])); e(salu("s_addc_u32", sPF[1], sPF[1], 0))
    e(salu("s_mov_b32", sPF[2], 1 << 20)); e(salu("s_mov_b32", sPF[3], 0x20000))
    srd(sWQ, 70, 448 * 8192); srd(sWO, 72, 4096 * 896); srd(sW2, 4, 1792 * 896); srd(sWS, 6, 2 * PART + (2 << 20))
    if OPT["pf"] and OPT["wqearly"]:
        e(valu("v_lshrrev_b32", vP[10], 3, vLane)); e(valu("v_and_b32", vP[11], 6 if OPT["pf128"] else 7, vLane))
        e(valu("v_lshlrev_b32", vP[10], 13, vP[10])); e(valu("v_lshl_add_u32", vP[10], vP[11], 6, vP[10]))
        e(salu("s_mul_i32", sTmp[0], sQblk, 28)); e(salu("s_mul_i32", sTmp[3], sWave, 7)); e(salu("s_add_u32", sTmp[0], sTmp[0], sTmp[3]))
        e(salu("s_lshl_b32", sTmp[0], sTmp[0], 13)); e(salu("s_lshl_b32", sTmp[3], sHead, 9)); e(salu("s_add_u32", sTmp[0], sTmp[0], sTmp[3]))
        pf(vP[10], sWQ, sTmp[0])
    e(salu("s_lshl_b32", sCW, sQblk, 4)); e(salu("s_add_u32", sCW, sCW, sHead)); e(salu("s_lshl_b32", sCW, sCW, 8)); e(salu("s_add_u32", sCW, sCW, CNT))
    e(valu("v_mov_b32", V(16), 0)); e(valu("v_mov_b32", V(17), 0))
    e(raw("s_mov_b64 exec, 1", "salu")); e(bstore(V(16, 2), V(16), sWS, sCW, tag="stF", flags="sc1")); e(raw("s_mov_b64 exec, -1", "salu"))
    if OPT["touch"]:
        e(valu("v_mov_b32", vP[10], 0))
        for srd_, so in ((sWQ, sPoff), (sK, 0), (sV, 0), (sW2, sDoff), (sWO, sWoff)) + (((sWS, sStF[0]), (sWS, sStS[0])) if OPT['touch'] > 1 else ()): pf(vP[10], srd_, so)
    o += stamp(2, 4)
    e(valu("v_mov_b32", vP[11], vP[3]))
    e(EXM)
    for g_ in xg[OPT["xearly"]:OPT["xfirst"]]: o += g_
    e(EXF)
    mid0 = [[EXM] + g_ + [EXF] for g_ in xg[OPT["xfirst"]:]]
    mid0[-1] += m0_init(0)
    mid1 = dma_ops(0)
    o += stamp(2, 2) + stamp(6, 4)
    late = []
    for st in (1,):
        for grp in dma_ops(st): late += grp
    e(raw("s_load_dwordx4 s[72:75], s[0:1], 72", "smem")); e(raw("s_waitcnt lgkmcnt(0)", "wait"))
    srd(sOUT, 72, 2048 * 896); srd(sDBG, 74, 256)
    if OPT["touch"]:
        pf(vP[10], sDBG, 0)
        if OPT['touch'] > 1: pf(vP[10], sOUT, sTmp[6])
    pfl = []
    e = pfl.append
    t0, t1 = sTmp[5], sTmp[6]
    va, vb = V(14), V(15)
    if OPT["pf"]:
        R = 448 // OPT["wqp"]; L = R // 16; sh = {28: 1, 14: 2, 7: 3}[L]
        e(salu("s_lshl_b32", t0, sQblk, 2)); e(salu("s_add_u32", t0, t0, sWave)); e(salu("s_mul_i32", t0, t0, L))
        e(valu("v_lshrrev_b32", va, sh, vLane)); e(valu("v_min_u32", va, L - 1, va)); e(valu("v_add_u32", va, t0, va))
        e(valu("v_and_b32", vb, 3, va)); e(valu("v_lshrrev_b32", va, 2, va)); e(valu("v_lshlrev_b32", va, 13, va))
        e(valu("v_lshl_add_u32", va, vb, 7, va)); e(salu("s_lshl_b32", t0, sHead, 9))
        for k in range(OPT["wqp"]):
            pf(va, sWQ, t0)
            if k + 1 < OPT["wqp"]: e(salu("s_add_u32", t0, t0, R * 8192))
        if OPT["pf128"]: e(valu("v_lshrrev_b32", va, 2, vLane)); e(valu("v_lshlrev_b32", va, 7, va))
        else: e(valu("v_lshlrev_b32", va, 5, vLane))
        e(salu("s_lshl_b32", t0, sQblk, 2)); e(salu("s_add_u32", t0, t0, sWave)); e(salu("s_mul_i32", t0, t0, 25 * 64))
        e(salu("s_mul_i32", t1, sHead, 112 * 896)); e(salu("s_add_u32", t0, t0, t1))
        pf(va, sW2, t0)
        e(salu("s_lshr_b32", t0, sWave, 1))
        e(salu("s_lshl_b32", sPFoff, sQblk, 1)); e(salu("s_add_u32", sPFoff, sPFoff, t0)); e(salu("s_lshl_b32", sPFoff, sPFoff, 11))
        for k in range(OPT["pfdist"]):
            pf(va, sPF, sPFoff); e(salu("s_add_u32", sPFoff, sPFoff, 65536))
    return o, (late, mid0, mid1), pfl

vR = [vP[12], vP[13]]; vNB = [vP[14], vP[15]]
def sprinkle(ops, groups):
    out = []; n = len(groups); step = len(ops) // (n + 1) if n else 0
    k = 0
    for i, o_ in enumerate(ops):
        if k < n and i == step * k: out += groups[k]; k += 1
        out.append(o_)
    for g_ in groups[k:]: out += g_
    return out

def ln_stats(x):
    late, mid0, mid1 = x
    o = []
    ones = sTmp[4]
    o.append(salu("s_mov_b32", ones, 0x3f803f80))
    for i in range(8): o.append(valu("v_mov_b32", vP[i], 0))
    for u in range(2):
        o.append(wait_vm_tag(["x%d" % u]))
        if u == 1: o += stamp(7, 4)
        for ks in range(14): o.append(dsr("ds_read_b128", XN[u][ks], vP[11], u * 16 * XSTR + ks * 64))
        w = []; e = w.append
        a = [vP[4 * u + i] for i in range(4)]
        for ks in range(14):
            for i in range(4):
                x = XN[u][ks][i]
                e(valu("v_dot2c_f32_bf16", a[i & 1], ones, x)); e(valu("v_dot2c_f32_bf16", a[2 + (i & 1)], x, x))
        if u == 1:
            o += sprinkle(w, mid1) + [wait_lgkm0(), barrier()] + late
            w = []; e = w.append
        t = vP[8 + u]
        e(valu("v_add_f32", a[0], a[0], a[1])); e(valu("v_add_f32", a[2], a[2], a[3]))
        w += xreduce("v_add_f32", a[0], t) + xreduce("v_add_f32", a[2], t)
        mean, var = a[0], a[2]
        e(valu("v_mul_f32", mean, 1.0 / 448, mean)); e(valu("v_mul_f32", var, 1.0 / 448, var))
        e(valu("v_fma_f32", var, f"-{mean}", mean, var)); e(valu("v_max_f32", var, 0, var))
        w += round_bf16(var)
        e(valu("v_add_f32", var, 1e-5, var)); w += round_bf16(var)
        e(valu("v_sqrt_f32", var, var)); w += round_bf16(var)
        e(valu("v_rcp_f32", vR[u], var))
        w += round_bf16(mean)
        e(valu("v_mul_f32", vNB[u], mean, vR[u])); e(valu("v_sub_f32", vNB[u], 0, vNB[u]))
        for ks in range(14 if u == 0 else 2): w += ln_apply(ks, u, True)
        o += sprinkle(w, mid0) if u == 0 else w
    return o

def ln_apply(ks, u, burst=False):
    o = []; e = o.append
    if burst:
        t = V(16 + 8 * (ks & 1), 8)
        sel = "op_sel:[0,%d,%d] op_sel_hi:[1,%d,%d]" % (u, u, u, u)
        for i in range(4):
            e(valu("v_lshlrev_b32", t[2 * i], 16, XN[u][ks][i])); e(valu("v_and_b32", t[2 * i + 1], 0xffff0000, XN[u][ks][i]))
        for i in range(4): e(valu("v_pk_fma_f32", t[2 * i:2 * i + 2], t[2 * i:2 * i + 2], V(252, 2), V(254, 2), mods=sel))
        for i in range(4): e(valu("v_cvt_pk_bf16_f32", XN[u][ks][i], t[2 * i], t[2 * i + 1]))
        return o
    for i in range(4):
        x = XN[u][ks][i]
        lo, hi = vP[2 * i], vP[2 * i + 1]
        e(valu("v_lshlrev_b32", lo, 16, x)); e(valu("v_and_b32", hi, 0xffff0000, x))
        e(valu("v_fma_f32", lo, lo, vR[u], vNB[u])); e(valu("v_fma_f32", hi, hi, vR[u], vNB[u]))
        e(valu("v_cvt_pk_bf16_f32", x, lo, hi))
    return o

def silu_ops():
    o = []; burst = []
    n = 0
    for u in range(2):
        for p in range(2): o.append(valu("v_accvgpr_write_b32", HB[u][3][2 + p], 0))
    for ft in range(7):
        for u in range(2):
            pk = n >= 14 - OPT["silupk"]; n += 1
            e = (burst if pk else o).append
            g, up = GU[0][ft][u], GU[1][ft][u]
            t = V(240 + 4 * (u & 1), 4)
            if pk:
                c = V(248, 2)
                for h in range(2): e(valu("v_pk_mul_f32", t[2 * h:2 * h + 2], g[2 * h:2 * h + 2], c, mods="op_sel:[0,0] op_sel_hi:[1,0]"))
                for r in range(4): e(valu("v_exp_f32", t[r], t[r]))
                for h in range(2): e(valu("v_pk_mul_f32", g[2 * h:2 * h + 2], g[2 * h:2 * h + 2], up[2 * h:2 * h + 2]))
                for h in range(2): e(valu("v_pk_add_f32", t[2 * h:2 * h + 2], t[2 * h:2 * h + 2], c, mods="op_sel:[0,1] op_sel_hi:[1,1]"))
                for r in range(4): e(valu("v_rcp_f32", t[r], t[r]))
                for h in range(2): e(valu("v_pk_mul_f32", g[2 * h:2 * h + 2], g[2 * h:2 * h + 2], t[2 * h:2 * h + 2]))
            else:
                for r in range(4): e(valu("v_mul_f32", t[r], -LOG2E, g[r]))
                for r in range(4): e(valu("v_exp_f32", t[r], t[r]))
                for r in range(4): e(valu("v_mul_f32", g[r], g[r], up[r]))
                for r in range(4): e(valu("v_add_f32", t[r], 1.0, t[r]))
                for r in range(4): e(valu("v_rcp_f32", t[r], t[r]))
                for r in range(4): e(valu("v_mul_f32", g[r], g[r], t[r]))
            for p in range(2):
                e(valu("v_cvt_pk_bf16_f32", up[p], g[2 * p], g[2 * p + 1]))
            for p in range(2):
                e(valu("v_accvgpr_write_b32", HB[u][ft >> 1][2 * (ft & 1) + p], up[p]))
    if burst: burst = [valu("v_mov_b32", V(248), -LOG2E), valu("v_mov_b32", V(249), 1.0)] + burst
    return o, burst

vXaddr = vT[3]
def qconv_ops(xbase_own):
    o = []; e = o.append
    for u in range(2):
        for ks in range(8):
            q = Q[u][ks]
            t = [vP[8 * (ks & 1) + i] for i in range(8)]
            for h in range(2):
                for r in range(4): e(valu("v_accvgpr_read_b32", t[4 * h + r], QT[2 * ks + h][u][r]))
            for i in range(8): e(valu("v_mul_f32", t[i], QSCALE, t[i]))
            for p in range(4): e(valu("v_cvt_pk_bf16_f32", q[p], t[2 * p], t[2 * p + 1]))
            e(perm32(q[0], q[2])); e(perm32(q[1], q[3])); e(perm16(q[0], q[2])); e(perm16(q[1], q[3]))
            e(dsw("ds_write_b128", vXaddr, q, (u * 8 + ks) * 1024))
    return o

def piece(acc, grp, u, half, pk, sbase, st):
    cv = []
    for t in range(2):
        a = acc[2 * half + t][u]
        cv += [valu("v_cvt_pk_bf16_f32", pk[2 * t], a[0], a[1]), valu("v_cvt_pk_bf16_f32", pk[2 * t + 1], a[2], a[3])]
    rem = grp * 2 + half
    so = [salu("s_add_u32", st, sbase[0], (u * 8 + rem) * 1024) if rem < 8 else salu("s_add_u32", st, sbase[1], (u * 6 + rem - 8) * 1024),
          bstore(pk, vSt, sWS, st, tag="stF" if sbase is sStF else ("stA" if rem < 8 else "stB"), flags="sc1")]
    return cv, so

def paced_out(avail, reuse, n, sbase, quads, pace):
    cvi, sti, left = [], [], []
    tS = []
    nq = len(quads)
    t = -10**9
    for p in range(28):
        g, u, half = p // 4, (p >> 1) & 1, p & 1
        cv, so = piece(ACCD[g & 1], g, u, half, quads[p % nq], sbase, sTmp[p % 4])
        c0 = min(avail[g], n - 1)
        if p >= nq:
            assert tS[p - nq] is not None, "staging overflow"
            c0 = max(c0, tS[p - nq] + 3)
        c1 = max(c0, min(reuse[g], c0 + 12, n - 1))
        assert c0 <= max(reuse[g], avail[g]), (p, c0, reuse[g])
        cvi += [Item(o, rel=c0, dl=c1) for o in cv]
        t = max(t + pace, c1 + 1)
        if t + 2 < n:
            sti += [Item(so[0], rel=t - 1, dl=t + 1), Item(so[1], rel=t, dl=t + 2)]; tS.append(t + 2)
        else:
            left.append(so); tS.append(None)
    return cvi, sti, left

def items(ops, rel, dl): return [Item(o, rel=rel, dl=dl) for o in ops]

def exp_groups(Sc):
    groups = []
    for u in range(4):
        for hp in range(2):
            r = 4 * hp; x = Sc[u]
            groups.append([valu("v_exp_f32", x[r], x[r]), valu("v_exp_f32", x[r + 1], x[r + 1]), valu("v_exp_f32", x[r + 2], x[r + 2]),
                           valu("v_add_f32", vL[u], vL[u], x[r]), valu("v_add_f32", vL[u], vL[u], x[r + 1]),
                           valu("v_exp_f32", x[r + 3], x[r + 3]),
                           valu("v_cvt_pk_bf16_f32", x[2 * hp], x[r], x[r + 1]),
                           valu("v_add_f32", vL[u], vL[u], x[r + 2]), valu("v_add_f32", vL[u], vL[u], x[r + 3]),
                           valu("v_cvt_pk_bf16_f32", x[2 * hp + 1], x[r + 2], x[r + 3])])
    return groups
NG1 = OPT["split"] // 4
def sm_part(Sc, part, rel, dl, swap=False):
    g = exp_groups(Sc)
    if swap: g = g[4:] + g[:4]
    g = g[:NG1] if part == 0 else g[NG1:]
    return [Item(o, rel=rel, dl=dl) for grp in g for o in grp]

def max_items(Sn, rel0, rel1, dl):
    r0 = [Sn[u][r] for u in range(4) for r in range(4)]
    r1 = [Sn[u][4 + r] for u in range(4) for r in range(4)]
    seq = [(valu("v_max3_f32", vTmax, r0[0], r0[1], r0[2]), rel0)]
    for i in range(3, 15, 2): seq.append((valu("v_max3_f32", vTmax, vTmax, r0[i], r0[i + 1]), rel0))
    seq.append((valu("v_max3_f32", vTmax, vTmax, r0[15], r1[0]), rel1))
    for i in range(1, 15, 2): seq.append((valu("v_max3_f32", vTmax, vTmax, r1[i], r1[i + 1]), rel1))
    seq.append((valu("v_max_f32", vTmax, vTmax, r1[15]), rel1))
    seq.append((valu("v_cmp_lt_f32", "vcc", THR, vTmax), rel1))
    return [Item(o, rel=r, dl=dl) for o, r in seq]

stubs = []
def branch(kind, site, par):
    nm = f"{kind}_{site}"
    if nm not in [s[0] for s in stubs]: stubs.append((nm, f"L_r1_{par}" if kind == "r1" else "L_r2"))
    return [raw(f"s_cbranch_vccnz L_stub_{nm}", "branch", rd=["vcc"]), label(f"L_ret_{nm}")]

def rowmax(x, tm, t2):
    return [valu("v_max3_f32", tm, x[0], x[1], x[2]), valu("v_max3_f32", tm, tm, x[3], x[4]), valu("v_max3_f32", tm, tm, x[5], x[6]),
            valu("v_max_f32", tm, tm, x[7])] + xreduce("v_max_f32", tm, t2)

def rare1(par):
    Sx = SBUF[par]
    ops = [label(f"L_r1_{par}"), nop(7)]
    for u in range(4):
        tm, t2 = vX[0], vX[1]
        ops += rowmax(Sx[u], tm, t2)
        ops.append(valu("v_max_f32", tm, 0, tm))
        for r in range(8): ops.append(valu("v_sub_f32", Sx[u][r], Sx[u][r], tm))
        for r in range(4): ops.append(valu("v_sub_f32", NEGM[u][r], NEGM[u][r], tm))
        ops.append(valu("v_exp_f32", vF[u], f"-{tm}"))
        ops.append(valu("v_mul_f32", vL[u], vL[u], vF[u]))
    return ops + [nop(3), raw(f"s_setpc_b64 {sRet}", "branch", rd=sRet.regs())]

def rare2():
    ops = [label("L_r2"), nop(15)]
    for dt in range(16):
        for u in range(4):
            for i in range(4): ops.append(valu("v_accvgpr_read_b32", vX[i], O[dt][u][i]))
            for i in range(4): ops.append(valu("v_mul_f32", vX[i], vX[i], vF[u]))
            for i in range(4): ops.append(valu("v_accvgpr_write_b32", O[dt][u][i], vX[i]))
    return ops + [nop(3), raw(f"s_setpc_b64 {sRet}", "branch", rd=sRet.regs())]

vV31 = vT[6]
UNR = OPT['unroll']
LOOP_LO = 2
LOOP_HI = 2 + (26 // UNR) * UNR
def iteration(j, carry):
    Sc, Sn = SBUF[j & 1], SBUF[(j + 1) & 1]
    ops = [marker(("iter", j))]
    site = f"{(j - LOOP_LO) % UNR}" if LOOP_LO <= j < LOOP_HI else f"p{j}"
    if j > 0: ops += branch("r2", site, 0)
    brk = OPT["brk"]
    fr = frags_K(j + 1, Sn, NEGM) + frags_V(j, Sc, zero=(j == 0))
    nxt = frags_K(j + 2, Sc, NEGM)[:NPRE] if j < 30 else frags_V(31, Sn, vaddr=vV31, f0=0)[:NPRE]
    def extra(info):
        pfi = []
        if OPT["pf"] and j % 2 == 0 and j < 28:
            pfi = [Item(pfload(vPFa, sPF, sPFoff), rel=56, dl=66), Item(salu("s_add_u32", sPFoff, sPFoff, 65536), rel=57, dl=70)]
        if j == 1:
            pfi = [Item(signal(offF, V(10), V(11)), rel=1, dl=2)]
        if j == 30:
            pfi = [Item(salu("s_lshl_b32", sTmp[0], sQblk, 4), rel=10, dl=40), Item(valu("v_and_b32", V(10), 3 if OPT["fbyte"] else 0, vLane), rel=12, dl=50),
                   Item(valu("v_lshlrev_b32", V(10), 2, V(10)), rel=12, dl=50),
                   Item(bload(V(11), V(10), sDBG, sTmp[0], flags="sc1", tag="pollF"), rel=56, dl=66)]
        if OPT["pf"] and j == 28:
            pfi = [Item(salu("s_lshl_b32", sTmp[0], sQblk, 2), rel=10, dl=40), Item(salu("s_add_u32", sTmp[0], sTmp[0], sWave), rel=10, dl=40),
                   Item(salu("s_mul_i32", sTmp[0], sTmp[0], 3584), rel=10, dl=40), Item(salu("s_mul_i32", sTmp[1], sHead, 256 * 896), rel=10, dl=40),
                   Item(salu("s_add_u32", sTmp[0], sTmp[0], sTmp[1]), rel=10, dl=40),
                   Item(valu("v_and_b32", vPFa, 62 if OPT["pf128"] else 63, vLane), rel=10, dl=50),
                   Item(valu("v_lshlrev_b32", vPFa, 6, vPFa), rel=10, dl=50), Item(pfload(vPFa, sWO, sTmp[0]), rel=56, dl=66)]
        return dict(sm=sm_part(Sc, 1, -1, 61) + sm_part(Sn, 0, brk, 127, swap=(j == 30 and OPT['lastsw'])), mx=max_items(Sn, 36, 67, brk - 1), pf=pfi)
    def pe(info): return {brk: branch("r1", site, (j + 1) & 1)}
    body, carry = section(fr, NPRE, nxt, extra=extra, post_extra=pe, dma_first=carry if carry is not None and carry <= V31 else None,
                          verbose=OPT["verbose"] and j == 2, no_dma_after=V31)
    return ops + body, carry

XA = lambda w: 0
def last_iteration():
    Sc = SBUF[1]
    ops = [marker(("iter", 31))] + branch("r2", "p31", 0)
    fr = frags_V(31, Sc, vaddr=vV31, f0=0)
    if OPT["lastsw"]:
        f2 = frags_V(31, Sc, vaddr=vV31, f0=16)
        for f in fr: f.mfmas = f.mfmas[2:4]
        for f in f2: f.mfmas = f.mfmas[0:2]; f.first = False
        fr = fr + f2
    vOa, vOb = V(12), V(14)
    pre = [valu("v_lshlrev_b32", vOa, 4, vLane), salu("s_mul_i32", sTmp[0], sWave, 24576), salu("s_lshl_b32", sTmp[1], sWave, 13),
           salu("s_add_u32", sTmp[1], sTmp[1], 3 * STG),
           valu("v_add_u32", vOb, sTmp[1], vOa), valu("v_add_u32", vOa, sTmp[0], vOa)]
    def extra(info):
        wr = []
        k = 0
        for dt in range(12):
            for u in (2, 3):
                r = min(63, info.last[dt] + 6)
                if OPT["lastsw"]: r = min(63, max(r, 7 + (5 * k) // 2)); k += 1
                wr.append(Item(dsw("ds_write_b128", vOa, O[dt][u], (dt * 2 + u - 2) * 1024), rel=r, dl=(r + 1 if OPT["lastsw"] else 63)))
        if OPT["lastsw"]: return dict(sm=sm_part(Sc, 1, -1, 29, swap=True), wr=wr)
        return dict(sm=sm_part(Sc, 1, -1, -1), wr=wr)
    body, _ = section(fr, NPRE, [], extra=extra, verbose=OPT["verbose"])
    ops += pre + body
    ops += [wait_lgkm0(), barrier()]
    for dt in range(12, 16):
        for u in (2, 3): ops.append(dsw("ds_write_b128", vOb, O[dt][u], ((dt - 12) * 2 + u - 2) * 1024))
    return ops

def fcheck(vd, sd):
    if not OPT["fbyte"]: return [valu("v_readfirstlane_b32", sd, vd), raw("s_nop 3", "salu")]
    return [valu("v_cmp_ne_u32", "vcc", 0x01010101, vd), raw("s_nop 3", "salu"), raw("s_cmp_eq_u64 vcc, 0", "salu", rd=["vcc"], wr=["scc"]),
            salu("s_cselect_b32", sd, 16, 0)]

FLG = []
def combine():
    o = [marker(("iter", 90))]; e = o.append
    o += fcheck(V(11), S(76))
    t = vX[0]
    for u in range(4): o += xreduce("v_add_f32", vL[u], t)
    st = V(32 + 4, 4)
    e(valu("v_mov_b32", st[0], NEGM[2][0])); e(valu("v_mov_b32", st[1], vL[2])); e(valu("v_mov_b32", st[2], NEGM[3][0])); e(valu("v_mov_b32", st[3], vL[3]))
    a = vX[1]
    e(salu("s_lshl_b32", sTmp[0], sWave, 10)); e(salu("s_add_u32", sTmp[0], sTmp[0], SPARE))
    e(valu("v_lshlrev_b32", vSt, 4, vLane))
    e(valu("v_add_u32", a, sTmp[0], vSt))
    e(dsw("ds_write_b128", a, st, 0))
    e(salu("s_xor_b32", sTmp[2], sWave, 1))
    e(salu("s_lshl_b32", sTmp[0], sTmp[2], 10)); e(salu("s_add_u32", sTmp[0], sTmp[0], SPARE)); e(valu("v_add_u32", a, sTmp[0], vSt))
    pa, pb = vX[2], vX[3]
    e(salu("s_mul_i32", sTmp[0], sTmp[2], 24576)); e(valu("v_add_u32", pa, sTmp[0], vSt))
    e(salu("s_lshl_b32", sTmp[1], sTmp[2], 13)); e(salu("s_add_u32", sTmp[1], sTmp[1], 3 * STG)); e(valu("v_add_u32", pb, sTmp[1], vSt))
    e(salu("s_cmp_ge_u32", S(76), 16)); e(raw("s_cbranch_scc1 L_pdone_F", "branch"))
    o += poll("F", offF, V(64), V(65))
    o += [wait_lgkm0(), barrier()]
    o += red_addr()
    cur = []
    for x_ in red_loads(0, LDA, [0, 1]):
        cur.append(x_)
        if x_.kind == "vmem": FLG.append(cur); cur = []
    g1 = FLG[:OPT["fl1"]]
    if g1: o += g1.pop(0)
    e(dsr("ds_read_b128", st, a, 0))
    RX = [[V(128 + (dt * 2 + u) * 4, 4) for u in range(2)] for dt in range(16)]
    for dt in range(16):
        for u in range(2):
            if dt < 12: e(dsr("ds_read_b128", RX[dt][u], pa, (dt * 2 + u) * 1024))
            else: e(dsr("ds_read_b128", RX[dt][u], pb, ((dt - 12) * 2 + u) * 1024))
            if (dt * 2 + u) % 6 == 5 and g1: o += g1.pop(0)
    wk = [vF[0], vF[1]]; wp = [vF[2], vF[3]]
    for u in range(2):
        nm_o, l_o, nm_p, l_p = NEGM[u][0], vL[u], st[2 * u], st[2 * u + 1]
        mn, fa, fb = vT[0], vT[1], vT[2]
        e(valu("v_min_f32", mn, nm_o, nm_p))
        e(valu("v_sub_f32", fa, mn, nm_o)); e(valu("v_sub_f32", fb, mn, nm_p))
        e(valu("v_exp_f32", fa, fa)); e(valu("v_exp_f32", fb, fb))
        e(valu("v_mul_f32", mn, fa, l_o)); e(valu("v_fma_f32", mn, fb, l_p, mn))
        e(valu("v_rcp_f32", mn, mn))
        e(valu("v_mul_f32", wk[u], fa, mn)); e(valu("v_mul_f32", wp[u], fb, mn))
    for x_ in g1: o += x_
    o += [wait_lgkm0(), barrier()]
    e(valu("v_lshrrev_b32", vX[0], 3, vLane)); e(valu("v_and_b32", vX[1], 7, vLane))
    e(valu("v_mul_u32_u24", vDmaN, 16 * 896, vX[0])); e(valu("v_lshl_add_u32", vDmaN, vX[1], 4, vDmaN))
    o += m0_init(W0)
    for s_ in range(W0, W0 + 3):
        for grp in dma_ops(s_): o += grp
    e(valu("v_sub_u32", vPaddrLo, vVaddr, sKh)); e(valu("v_add_u32", vPaddrHi, HALF, vPaddrLo))
    e(valu("v_lshlrev_b32", vSt, 4, vLane))
    TMPB = [[A((4 * dt + 2) * 4 + 0, 2) for dt in range(16)], [A((4 * dt + 3) * 4, 2) for dt in range(16)]]
    tt = [V(64 + i) for i in range(16)]
    n = 0
    g2 = FLG[OPT["fl1"]:OPT["fl1"] + OPT["fl2"]]
    for dt in range(16):
        for u in range(2):
            if g2 and (n * OPT["fl2"]) // 32 != ((n + 1) * OPT["fl2"]) // 32: o += g2.pop(0)
            x = [tt[(4 * n + i) % 16] for i in range(4)]; n += 1
            for r in range(4): e(valu("v_accvgpr_read_b32", x[r], O[dt][u][r]))
            xx = Reg("v", x[0].lo, 4)
            sel = "op_sel:[0,%d] op_sel_hi:[1,%d]" % (u, u)
            sel3 = "op_sel:[0,%d,0] op_sel_hi:[1,%d,1]" % (u, u)
            for h in range(2): e(valu("v_pk_mul_f32", xx[2 * h:2 * h + 2], xx[2 * h:2 * h + 2], V(40, 2), mods=sel))
            for h in range(2): e(valu("v_pk_fma_f32", xx[2 * h:2 * h + 2], RX[dt][u][2 * h:2 * h + 2], V(42, 2), xx[2 * h:2 * h + 2], mods=sel3))
            ob = RX[dt & ~1][u]
            e(valu("v_cvt_pk_bf16_f32", ob[2 * (dt & 1)], x[0], x[1])); e(valu("v_cvt_pk_bf16_f32", ob[2 * (dt & 1) + 1], x[2], x[3]))
    return o, RX

offA2 = [salu("s_lshl_b32", sTmp[6], sQblk, 2), salu("s_add_u32", sTmp[6], sTmp[6], 64)]
def signal(off_sgpr_ops, va, vd):
    o = list(off_sgpr_ops)
    t = Reg("s", int(o[-1].wr[0][1:]))
    o += [salu("s_cmp_eq_u32", sWave, 0), salu("s_cselect_b32", t, t, 0x10000),
          valu("v_mov_b32", va, t), valu("v_mov_b32", vd, 1), raw("s_mov_b64 exec, 1", "salu"),
          Op(f"buffer_store_byte {vd}, {va}, {sDBG}, {sHead} offen sc1" if OPT["fbyte"] else f"buffer_atomic_add {vd}, {va}, {sDBG}, 0 offen",
             "vmem", rd=va.regs() + vd.regs() + sDBG.regs(), tag="sig"),
          raw("s_mov_b64 exec, -1", "salu")]
    return o
def signal16(which, va, vd, t):
    if OPT["tailv"] == 3:
        return [salu("s_lshl_b32", t, sQblk, 12), salu("s_add_u32", t, t, CNT),
                salu("s_cmp_eq_u32", sWave, 0), salu("s_cselect_b32", t, t, 0x7ff00000),
                valu("v_lshlrev_b32", va, 8, vLane), valu("v_add_u32", va, t, va),
                salu("s_lshl_b32", t, 1 << (16 * which), sHead), valu("v_mov_b32", vd, t),
                salu("s_lshl_b32", t, 1, sHead), salu("s_xor_b32", t, t, 0xffff),
                raw(f"s_mov_b32 exec_lo, {t}", "salu", rd=t.regs()), raw("s_mov_b32 exec_hi, 0", "salu"),
                Op(f"buffer_atomic_add {vd}, {va}, {sWS}, 0 offen", "vmem", rd=va.regs() + vd.regs() + sWS.regs(), tag="sig"),
                raw("s_mov_b64 exec, -1", "salu")]
    return [salu("s_lshl_b32", t, sQblk, 12), salu("s_add_u32", t, t, CNT + 4 * which),
            salu("s_cmp_eq_u32", sWave, 0), salu("s_cselect_b32", t, t, 0x7ff00000),
            valu("v_lshlrev_b32", va, 8, vLane), valu("v_add_u32", va, t, va), valu("v_mov_b32", vd, 1),
            salu("s_lshl_b32", t, 1, sHead), salu("s_xor_b32", t, t, 0xffff),
            raw(f"s_mov_b32 exec_lo, {t}", "salu", rd=t.regs()), raw("s_mov_b32 exec_hi, 0", "salu"),
            Op(f"buffer_atomic_add {vd}, {va}, {sWS}, 0 offen", "vmem", rd=va.regs() + vd.regs() + sWS.regs(), tag="sig"),
            raw("s_mov_b64 exec, -1", "salu")]
def poll2(name, which, va, vd2):
    return [valu("v_mov_b32", va, 0), salu("s_mov_b32", sTmp[1], 0), label(f"L_poll_{name}"),
            raw(f"buffer_load_dwordx2 {vd2}, {va}, {sWS}, {sCW} offen sc1", "salu"), raw("s_waitcnt vmcnt(0)", "wait"),
            raw(f"v_readfirstlane_b32 {sTmp[2]}, {vd2[0]}", "salu"), raw(f"v_readfirstlane_b32 {sTmp[3]}, {vd2[1]}", "salu"),
            salu("s_add_u32", sTmp[1], sTmp[1], 1), raw("s_nop 3", "salu"),
            salu("s_cmp_ge_u32", sTmp[2 + which], 15), raw(f"s_cbranch_scc1 L_pdone_{name}", "branch"),
            raw("s_sleep 2", "salu"), salu("s_cmp_lt_u32", sTmp[1], 0x40000), raw(f"s_cbranch_scc1 L_poll_{name}", "branch"),
            label(f"L_pdone_{name}")]
offF = [salu("s_lshl_b32", sTmp[0], sQblk, 4)]
offA = [salu("s_lshl_b32", sTmp[0], sQblk, 2), salu("s_add_u32", sTmp[0], sTmp[0], 64)]
offB = [salu("s_lshl_b32", sTmp[0], sQblk, 3), salu("s_add_u32", sTmp[0], sTmp[0], 128)]

def poll(name, off_ops, va, vd):
    o = list(off_ops) + [valu("v_and_b32", va, 3 if OPT["fbyte"] else 0, vLane), valu("v_lshlrev_b32", va, 2, va),
         salu("s_mov_b32", sTmp[1], 0), label(f"L_poll_{name}"),
         raw(f"buffer_load_dword {vd}, {va}, {sDBG}, {sTmp[0]} offen sc1", "salu"), raw("s_waitcnt vmcnt(0)", "wait")]
    o += fcheck(vd, sTmp[2])
    o += [salu("s_add_u32", sTmp[1], sTmp[1], 1),
         salu("s_cmp_ge_u32", sTmp[2], 16), raw(f"s_cbranch_scc1 L_pdone_{name}", "branch"),
         raw("s_sleep 2", "salu"), salu("s_cmp_lt_u32", sTmp[1], 0x40000), raw(f"s_cbranch_scc1 L_poll_{name}", "branch"),
         label(f"L_pdone_{name}")]
    return o
def poll0(name, off_ops, va, vd):
    return [salu("s_cmp_lg_u32", sWave, 0), raw(f"s_cbranch_scc1 L_pdone_{name}", "branch")] + poll(name, off_ops, va, vd)

LDV = [[V(128 + (k * 16 + h) * 4, 4) for h in range(16)] for k in range(2)]
LDA = [[O[h][2 + k] for h in range(16)] for k in range(2)]
vRa = [V(12), V(14)]
def red_addr():
    return [salu("s_lshl_b32", sTmp[0], sHead, 2), salu("s_add_u32", sTmp[0], sTmp[0], sWave),
            salu("s_lshl_b32", sTmp[1], sTmp[0], 10), salu("s_mul_i32", sTmp[2], sTmp[0], 768), salu("s_add_u32", sTmp[2], sTmp[2], 65536),
            valu("v_lshlrev_b32", vRa[1], 4, vLane), valu("v_add_u32", vRa[0], sTmp[1], vRa[1]), valu("v_add_u32", vRa[1], sTmp[2], vRa[1]),
            valu("v_cmp_gt_u32", "vcc", 48, vLane), valu("v_mov_b32", V(64), 0x7f000000), valu("v_cndmask_b32", vRa[1], V(64), vRa[1])]
def red_loads(region, LD, parts):
    o = []
    t = [sTmp[4], sTmp[5]]
    o += [salu("s_mul_i32", t[0], sQblk, 16 * PBLK), salu("s_add_u32", t[0], t[0], region)]
    for h in range(16):
        for k in parts: o.append(bload(LD[k][h], vRa[k], sWS, t[h & 1], flags="sc1", tag="red"))
        if h < 15: o.append(salu("s_add_u32", t[(h + 1) & 1], t[h & 1], PBLK))
    return o
sSelLo, sSelHi = S(72), S(73)
def red_sum(ACC, LD, k, tmp):
    o = []; e = o.append
    for h in range(16):
        src = []
        for p in range(4):
            x = LD[k][h][p]
            if x.k == "a":
                y = tmp[(4 * h + p) % 8]; e(valu("v_accvgpr_read_b32", y, x)); x = y
            src.append(x)
        for p in range(4):
            for hi in range(2):
                acc = ACC[k][2 * p + hi]
                e(valu("v_dot2_f32_bf16", acc, src[p], sSelHi if hi else sSelLo, 0 if h == 0 else acc))
    return o

SUBS = []
def tail():
    o = [marker(("iter", 95))]; e = o.append
    G = [[V(16 + k * 8 + i) for i in range(8)] for k in range(2)]
    SA = [[V(32 + k * 8 + i) for i in range(8)] for k in range(2)]
    tmp = [V(96 + i) for i in range(8)]
    T_ = [V(54 + i) for i in range(8)]
    XV = [[V(62 + (k * 2 + t) * 2, 2) for t in range(2)] for k in range(2)]
    vo = [V(70), V(71)]
    c, un, q = V(72), V(73), V(74)
    def silu(k):
        F = G[k]
        for i in range(8): o.extend(round_bf16(F[i]))
        for i in range(8): e(valu("v_mul_f32", T_[i], -LOG2E, F[i]))
        for i in range(8): e(valu("v_exp_f32", T_[i], T_[i]))
        for i in range(8): e(valu("v_add_f32", T_[i], 1.0, T_[i]))
        for i in range(8): e(valu("v_rcp_f32", T_[i], T_[i]))
        for i in range(8): e(valu("v_mul_f32", F[i], F[i], T_[i]))
        for i in range(8): o.extend(round_bf16(F[i]))
    def final(k):
        for i in range(8): o.extend(round_bf16(SA[k][i]))
        for i in range(8): e(valu("v_mul_f32", SA[k][i], SA[k][i], G[k][i]))
        for i in range(8): o.extend(round_bf16(SA[k][i]))
        for t in range(2):
            for p in range(2):
                x = XV[k][t][p]
                e(valu("v_lshlrev_b32", tmp[0], 16, x)); e(valu("v_and_b32", tmp[1], 0xffff0000, x))
                e(valu("v_add_f32", tmp[0], tmp[0], SA[k][4 * t + 2 * p])); e(valu("v_add_f32", tmp[1], tmp[1], SA[k][4 * t + 2 * p + 1]))
                e(valu("v_cvt_pk_bf16_f32", x, tmp[0], tmp[1]))
            e(bstore(XV[k][t], vo[k], sOUT, 0, off=32 * t, flags=["", "nt", "sc1", "sc0 sc1"][OPT["oflag"]]))
    e(salu("s_mov_b32", sSelLo, 0x00003f80)); e(salu("s_mov_b32", sSelHi, 0x3f800000))
    sA, sB = S(74), S(75)
    def rawloads(k):
        for x_ in red_loads(PART, LDV, [k]): e(raw(x_.text, "salu"))
    e(valu("v_readfirstlane_b32", sA, FREEQ[15][0])); e(valu("v_readfirstlane_b32", sB, FREEQ[15][1]))
    e(salu("s_lshl_b32", sTmp[0], sHead, 2)); e(salu("s_add_u32", sTmp[0], sTmp[0], sWave))
    e(salu("s_mul_i32", sTmp[1], sQblk, PBLK))
    e(salu("s_lshr_b32", sTmp[2], sTmp[0], 3)); e(salu("s_mul_i32", sTmp[2], sTmp[2], 16 * 896)); e(salu("s_add_u32", sTmp[2], sTmp[2], sTmp[1]))
    e(salu("s_and_b32", sTmp[3], sTmp[0], 7)); e(salu("s_lshl_b32", sTmp[3], sTmp[3], 6)); e(salu("s_add_u32", sTmp[2], sTmp[2], sTmp[3]))
    e(valu("v_and_b32", vo[0], 15, vLane)); e(valu("v_mul_u32_u24", vo[0], 896, vo[0]))
    e(valu("v_lshrrev_b32", un, 4, vLane)); e(valu("v_lshl_add_u32", vo[0], un, 3, vo[0])); e(valu("v_add_u32", vo[0], sTmp[2], vo[0]))
    e(salu("s_mul_i32", sTmp[0], sTmp[0], 48)); e(salu("s_add_u32", sTmp[1], sTmp[1], 512))
    e(valu("v_add_u32", c, sTmp[0], vLane)); e(valu("v_lshrrev_b32", un, 6, c))
    e(valu("v_mul_u32_u24", q, 43, un)); e(valu("v_lshrrev_b32", q, 8, q))
    e(valu("v_mul_u32_u24", vo[1], 6, q)); e(valu("v_sub_u32", un, un, vo[1]))
    e(valu("v_and_b32", vo[1], 15, c)); e(valu("v_lshl_add_u32", vo[1], q, 4, vo[1]))
    e(valu("v_mul_u32_u24", vo[1], 896, vo[1])); e(valu("v_lshl_add_u32", vo[1], un, 6, vo[1]))
    e(valu("v_bfe_u32", un, c, 4, 2)); e(valu("v_lshl_add_u32", vo[1], un, 3, vo[1]))
    e(valu("v_add_u32", vo[1], sTmp[1], vo[1]))
    e(valu("v_cmp_gt_u32", "vcc", 48, vLane)); e(valu("v_mov_b32", un, 0x7fffff00))
    e(valu("v_cndmask_b32", vo[1], un, vo[1]))
    for k in range(2):
        for t in range(2): e(raw(bload(XV[k][t], vo[k], sX, 0, off=32 * t).text, "salu", rd=vo[k].regs()))
    if OPT["tailv"] == 3:
        sDone, sOwn, sNew, sBase, sIt = S(75), S(76), S(77), S(78), S(79)
        e(salu("s_lshl_b32", sOwn, 0x10001, sHead)); e(salu("s_mov_b32", sDone, 0)); e(salu("s_mov_b32", sIt, 0))
        e(salu("s_mul_i32", sBase, sQblk, 16 * PBLK)); e(salu("s_add_u32", sBase, sBase, PART))
        e(raw("s_waitcnt vmcnt(4)", "wait"))
        o += stamp(2, 7)
        e(barrier())
        o += signal16(1, V(75), V(76), sTmp[0])
        o += stamp(3, 7)
        e(raw(f"s_call_b64 {sRet}, L_pass", "branch"))
        o += red_sum(G, LDA, 0, tmp)
        silu(0)
        o += stamp(4, 7)
        def ploop(name, mask):
            e(valu("v_mov_b32", V(75), 0))
            e(label(f"L_pl_{name}"))
            e(salu("s_and_b32", sTmp[0], sDone, mask)); e(salu("s_cmp_eq_u32", sTmp[0], mask)); e(raw(f"s_cbranch_scc1 L_pld_{name}", "branch"))
            e(raw(f"buffer_load_dword v76, v75, {sWS}, {sCW} offen sc1", "salu")); e(raw("s_waitcnt vmcnt(0)", "wait"))
            e(raw(f"v_readfirstlane_b32 {sA}, v76", "salu")); e(salu("s_add_u32", sIt, sIt, 1)); e(raw("s_nop 3", "salu"))
            e(raw(f"s_call_b64 {sRet}, L_pass", "branch"))
            e(salu("s_cmp_lt_u32", sIt, 0x40000)); e(raw(f"s_cbranch_scc1 L_pl_{name}", "branch"))
            e(label(f"L_pld_{name}"))
        ploop("A", 0xffff)
        o += red_sum(G, LDA, 1, tmp)
        silu(1)
        o += stamp(5, 7)
        e(raw("s_waitcnt vmcnt(0)", "wait"))
        o += red_sum(SA, LDV, 0, tmp)
        final(0)
        ploop("B", 0xffffffff)
        o += stamp(6, 7)
        e(raw("s_waitcnt vmcnt(0)", "wait"))
        o += red_sum(SA, LDV, 1, tmp)
        final(1)
        p = [label("L_pass"), salu("s_or_b32", sNew, sA, sOwn), salu("s_andn2_b32", sNew, sNew, sDone), salu("s_or_b32", sDone, sDone, sNew),
             salu("s_cmp_eq_u32", sNew, 0), raw("s_cbranch_scc1 L_pass_idle", "branch")]
        for g4 in range(8):
            p += [salu("s_and_b32", sTmp[0], sNew, (0xf << (4 * g4)) & 0xffffffff), raw(f"s_cbranch_scc0 L_pg{g4}", "branch")]
            for b_ in range(4 * g4, 4 * g4 + 4):
                k, h = b_ >> 4, b_ & 15
                p += [salu("s_add_u32", sTmp[1], sBase, h * PBLK), raw(f"s_bitcmp1_b32 {sNew}, {b_}", "salu"), raw("s_cselect_b64 exec, -1, 0", "salu"),
                      raw(bload(LDV[k][h], vRa[k], sWS, sTmp[1], flags="sc1").text, "salu")]
            p += [raw("s_mov_b64 exec, -1", "salu"), label(f"L_pg{g4}")]
        p += [raw(f"s_setpc_b64 {sRet}", "branch"), label("L_pass_idle"), raw("s_sleep 2", "salu"), raw(f"s_setpc_b64 {sRet}", "branch")]
        SUBS.extend(p)
        return o
    if OPT["tailv"] == 1:
        e(salu("s_cmp_ge_u32", sA, 15)); e(raw("s_cbranch_scc0 L_noA", "branch"))
        rawloads(0)
        e(raw("s_waitcnt vmcnt(20)", "wait")); e(raw("s_branch L_drained", "branch"))
        e(label("L_noA"))
        e(raw("s_waitcnt vmcnt(4)", "wait"))
        e(label("L_drained"))
        o += stamp(2, 7)
        e(barrier())
        o += signal16(1, V(75), V(76), sTmp[0])
        o += stamp(3, 7)
        e(salu("s_cmp_ge_u32", sA, 15)); e(raw("s_cbranch_scc1 L_haveA", "branch"))
        o += red_sum(G, LDA, 0, tmp)
        o += poll2("A", 0, V(75), V(76, 2))
        e(salu("s_mov_b32", sB, sTmp[3]))
        rawloads(0)
        e(raw("s_branch L_joinA", "branch"))
        e(label("L_haveA"))
        e(salu("s_cmp_ge_u32", sB, 15)); e(raw("s_cbranch_scc0 L_noB1", "branch"))
        rawloads(1)
        e(salu("s_mov_b32", sA, 99))
        e(label("L_noB1"))
        o += red_sum(G, LDA, 0, tmp)
        e(label("L_joinA"))
    else:
        e(raw("s_waitcnt vmcnt(4)", "wait"))
        o += stamp(2, 7)
        e(barrier())
        o += signal16(1, V(75), V(76), sTmp[0])
        o += stamp(3, 7)
        e(salu("s_cmp_ge_u32", sA, 15)); e(raw("s_cbranch_scc1 L_haveA", "branch"))
        o += red_sum(G, LDA, 0, tmp)
        o += poll2("A", 0, V(75), V(76, 2))
        e(salu("s_mov_b32", sB, sTmp[3]))
        rawloads(0)
        e(raw("s_branch L_joinA", "branch"))
        e(label("L_haveA"))
        rawloads(0)
        e(salu("s_cmp_ge_u32", sB, 15)); e(raw("s_cbranch_scc0 L_noB1", "branch"))
        rawloads(1)
        e(salu("s_mov_b32", sA, 99))
        e(label("L_noB1"))
        o += red_sum(G, LDA, 0, tmp)
        e(label("L_joinA"))
    o += stamp(4, 7)
    silu(0)
    o += red_sum(G, LDA, 1, tmp)
    silu(1)
    o += stamp(5, 7)
    e(salu("s_cmp_eq_u32", sA, 99)); e(raw("s_cbranch_scc1 L_haveB", "branch"))
    e(salu("s_cmp_ge_u32", sB, 15)); e(raw("s_cbranch_scc1 L_pdone_B", "branch"))
    o += poll2("B", 1, V(75), V(76, 2))
    rawloads(1)
    e(label("L_haveB"))
    o += stamp(6, 7)
    e(raw("s_waitcnt vmcnt(16)", "wait"))
    o += red_sum(SA, LDV, 0, tmp)
    e(raw("s_waitcnt vmcnt(0)", "wait"))
    o += red_sum(SA, LDV, 1, tmp)
    final(0)
    final(1)
    return o
assert all((u * 43) >> 8 == u // 6 for u in range(50))

def pfpat(d, t):
    if OPT["pfpat"] == 0: return [valu("v_lshlrev_b32", d, 5, vLane)]
    sh = OPT["pfpat"]
    return [valu("v_lshrrev_b32", d, sh, vLane), valu("v_lshlrev_b32", d, 5 + sh, d),
            valu("v_and_b32", t, (1 << sh) - 1, vLane), valu("v_lshl_add_u32", d, t, 2, d)]

def build_main():
    prog, late, pfl = setup()
    if OPT["pfearly"]: prog += pfl; pfl = []
    prog += stamp(1) + stamp(4, 2)
    prog += ln_stats(late) + stamp(5, 2)
    prog += stamp(2) + stamp(6, 2)
    f1 = [f for st in range(18) for f in frags_stage(st)]
    Sn = SBUF[0]
    vK0 = vT[5]
    fK0 = frags_K(0, Sn, [0] * 4, kaddr=vK0, f0=16)
    prog += bar_ops(0) + stamp(7, 2)
    for f in f1[:len(FRA)]: prog += f.reads
    LEFT = []
    def extra(info):
        def first_of(key): return min(info.first[i] for i, f in enumerate(f1) if f.key == key)
        def last_of(key): return max(info.last[i] for i, f in enumerate(f1) if f.key == key)
        ln = []
        for ks in range(2, 14): ln += items(ln_apply(ks, 1), -1, first_of(("U", ks)) - 3)
        endU, endP = last_of(("U", 13)), last_of(("P", 13))
        so_, sb_ = silu_ops()
        dsl = first_of(("D", 0)) - 3
        sil = items(so_, endU + 5, dsl) + ([Item(sb_, rel=dsl, dl=dsl)] if sb_ else [])
        xa = [salu("s_lshr_b32", sTmp[5], sWave, 1), salu("s_mul_i32", sTmp[5], sTmp[5], (RB[20 % 4] - RB[19 % 4]) & 0xffffffff),
              salu("s_add_u32", sTmp[5], sTmp[5], sKh), salu("s_add_u32", sTmp[5], sTmp[5], RB[19 % 4]),
              valu("v_add_u32", vXaddr, sTmp[5], vSt)]
        qc = qconv_ops(None)
        relq = endP + 5
        qi = items(xa, relq, info.n - 1)
        qv = [o for o in qc if o.kind != "dsw"]
        qend = info.bar[17] + 4 if OPT["qspread"] else info.n - 1
        for k, o in enumerate(qv):
            qi.append(Item(o, rel=relq, dl=(relq + (qend - relq) * (k + 1) // len(qv)) if OPT["qspread"] else info.n - 1))
        qi += [Item(o, rel=max(relq, info.bar[17] + 1), dl=info.n - 1) for o in qc if o.kind == "dsw"]
        Q12 = [V(96 + 4 * i, 4) for i in range(4)] + [V(80 + 4 * i, 4) for i in range(4)] + [V(112 + 4 * i, 4) for i in range(4)]
        oc, os_, left = paced_out([last_of(("D", g)) + 5 for g in range(7)],
                                  [first_of(("D", g + 2)) - 3 if g + 2 <= 6 else info.n - 1 for g in range(7)], info.n, sStF, Q12, OPT["dpace"])
        LEFT.extend(left)
        pfi = []
        when = [OPT["pfwq"] + OPT["pfwqs"] * k for k in range(OPT["wqp"])] + [OPT["pfw2"]] + [OPT["pfkv0"] + OPT["pfkvs"] * k for k in range(OPT["pfdist"] + 1)]
        k = 0
        for o in pfl:
            pfi.append(Item(o, rel=when[k], dl=when[k] + 40))
            if o.kind == "vmem": k += 1
        return dict(ln=ln, sil=sil, qc=qi, oc=oc, os=os_, pf=pfi)
    body, carry = section(f1, len(FRA), [], extra=extra, dma_first=[2, 3], verbose=OPT["verbose"])
    prog += body
    prog += stamp(3) + stamp(7, 5)
    if OPT["stamps"] == 8:
        prog += [raw("s_memtime s[100:101]", "smem"), raw("s_waitcnt lgkmcnt(0)", "wait"),
                 salu("s_lshl_b32", sTmp[0], S(2), 2), salu("s_add_u32", sTmp[0], sTmp[0], sWave), salu("s_lshl_b32", sTmp[0], sTmp[0], 7),
                 salu("s_add_u32", sTmp[0], sTmp[0], 2 * PART + 65536), valu("v_mov_b32", V(100), 0)]
        for k, sr in enumerate(S8 + [100]):
            prog += [salu("s_sub_u32", sTmp[1], S(sr), S(sStamp)), valu("v_mov_b32", V(101 + k), sTmp[1]), bstore(V(101 + k), V(100), sWS, sTmp[0], off=4 * k)]
    assert carry == 20, carry
    print("deferred f stores:", len(LEFT))
    early = [so for so in LEFT if 80 <= int(so[1].extra[1][0][1:]) < 96]
    later = [so for so in LEFT if so not in early]
    for so in early[:2]: prog += so
    prog += [wait_lgkm0(), barrier()]
    prog += [salu("s_sub_u32", sTmp[0], SLOT, sKh), salu("s_sub_u32", sTmp[0], sTmp[0], sKh),
             valu("v_add_u32", vXaddr, sTmp[0], vXaddr)]
    for u in range(2):
        for ks in range(8): prog.append(dsr("ds_read_b128", Q[2 + u][ks], vXaddr, (u * 8 + ks) * 1024))
    for grp in dma_ops(21): prog += grp
    prog += [valu("v_subrev_u32", vK0, HALF, vKaddr), valu("v_add_u32", vV31, HALF, vVaddr), ] + pfpat(vPFa, V(10))
    for u in range(4): prog.append(valu("v_mov_b32", vL[u], 0))
    prog.append(salu("s_mov_b32", sCnt, (LOOP_HI - LOOP_LO) // UNR))
    for so in early[2:]: prog += so
    prog += bar_ops(K0)
    for f in fK0[:NPRE]: prog += f.reads
    nin = min(len(later), 4)
    def extraK0(info):
        it = []
        for k, so in enumerate(later[:nin]): it += [Item(so[0], rel=3 + 16 * k, dl=6 + 16 * k), Item(so[1], rel=4 + 16 * k, dl=7 + 16 * k)]
        return dict(os=it)
    body, carry = section(fK0, NPRE, frags_K(1, SBUF[1], NEGM)[:NPRE], dma_first=23, extra=extraK0)
    prog += body
    for grp in dma_ops(22): prog += grp
    later = later[nin:]
    for u in range(4):
        tm, t2 = vX[0], vX[1]
        prog += rowmax(Sn[u], tm, t2)
        for r in range(8): prog.append(valu("v_sub_f32", Sn[u][r], Sn[u][r], tm))
        for r in range(4): prog.append(valu("v_sub_f32", NEGM[u][r], 0, tm))
        if u % 2 == 1 and later: prog += later.pop(0)
    prog += sprinkle([o_ for it in sm_part(Sn, 0, 0, 0) for o_ in it.ops], later)
    prog += stamp(4) + stamp(1, 10)
    if OPT["stamps"] == 3:
        prog += [salu("s_lshl_b32", S(90), S(2), 2), salu("s_add_u32", S(90), S(90), sWave), salu("s_lshl_b32", S(90), S(90), 7),
                 salu("s_add_u32", S(90), S(90), 2 * PART + 65536)]
    for j in range(31):
        it, carry = iteration(j, carry)
        if j in (0, 1, 28, 29, 30): it += stamp({0: 2, 1: 3, 28: 5, 29: 6, 30: 7}[j], 10)
        if j == 28: it = it[:1] + stamp(4, 10) + it[1:]
        if LOOP_LO <= j < LOOP_HI and (j - LOOP_LO) % UNR == UNR - 1:
            it += [salu("s_sub_u32", sCnt, sCnt, 1), salu("s_cmp_lg_u32", sCnt, 0), raw("s_cbranch_scc1 L_loop", "branch", rd=["scc"])]
        if OPT["stamps"] == 3:
            st3 = [raw("s_memtime s[100:101]", "smem"), wait_lgkm0(), raw("s_waitcnt lgkmcnt(0)", "wait"), salu("s_sub_u32", S(100), S(100), S(sStamp)),
                   valu("v_mov_b32", V(12), S(100)), valu("v_mov_b32", V(14), 0), bstore(V(12), V(14), sWS, S(90)), salu("s_add_u32", S(90), S(90), 4)]
            k = len(it) - 3 if it[-1].kind == "branch" else len(it)
            it = it[:k] + st3 + it[k:]
        prog += it
    prog += last_iteration()
    prog += stamp(5)
    cmb, RX = combine()
    prog += cmb
    prog += stamp(6)
    fW = frags_W()
    prog += bar_ops(W0)
    for f in fW[:len(FRW)]: prog += f.reads
    LEFTW = []
    def extraW(info):
        QW = [V(80 + 4 * i, 4) for i in range(4)] + FREEQ[8:14]
        oc, os_, left = paced_out([info.last[32 * g + 31] + 5 for g in range(7)],
                                  [info.first[32 * (g + 2)] - 3 if g + 2 <= 6 else info.n - 1 for g in range(7)], info.n, sStS, QW, OPT["wpace"])
        LEFTW.extend(left)
        sg = [Item(signal16(0, FREEQ[14][0], FREEQ[14][1], sTmp[6]), rel=info.bar[W0 + 6] + 1, dl=info.bar[W0 + 6] + 1)]
        sg += [Item(valu("v_mov_b32", FREEQ[14][2], 0), rel=info.n - 40, dl=info.n - 36),
               Item(bload(FREEQ[15][0:2], FREEQ[14][2], sWS, sCW, flags="sc1", tag="cnt"), rel=info.n - 34, dl=info.n - 30)]
        fl = []
        for k, g_ in enumerate(FLG[OPT["fl1"] + OPT["fl2"]:]):
            for x_ in g_: fl.append(Item(x_, rel=2 + OPT["flpace"] * k, dl=8 + OPT["flpace"] * k))
        return dict(oc=oc, os=os_, sg=sg, fl=fl)
    body, _ = section(fW, len(FRW), [], extra=extraW, dma_first=W0 + 3, verbose=OPT["verbose"])
    prog += body
    print("deferred s stores:", len(LEFTW))
    for so in LEFTW: prog += so
    prog += stamp(5, 6) + stamp(1, 7) + stamp(7, 9)
    prog += tail()
    prog += stamp(7) + stamp(7, 7)
    if OPT["stamps"] in (1, 2, 4, 5, 6, 7, 9, 10):
        prog += [salu("s_lshl_b32", sTmp[0], S(2), 2), salu("s_add_u32", sTmp[0], sTmp[0], sWave), salu("s_lshl_b32", sTmp[0], sTmp[0], 6),
                 salu("s_add_u32", sTmp[0], sTmp[0], 2 * PART), valu("v_mov_b32", V(20), 0)]
        for k in range(1, 8):
            prog += [salu("s_sub_u32", sTmp[1], S(sStamp + k), S(sStamp)), valu("v_mov_b32", V(21), sTmp[1]),
                     bstore(V(21), V(20), sWS, sTmp[0], off=4 * k)]
    if OPT["dbgout"]:
        prog += [raw("s_mov_b64 exec, 1", "salu")]
        for k, wd in zip(range(1, 8), (1, 2, 3, 5, 6, 7, 9)):
            prog += [salu("s_sub_u32", sTmp[1], S(sStamp + k), S(sStamp)), valu("v_mov_b32", V(21), sTmp[1]), valu("v_mov_b32", V(20), 4 * wd),
                     raw(f"buffer_atomic_umax v21, v20, {sDBG}, 0 offen", "salu")]
    prog += [label("L_done"), raw("s_endpgm", "branch")]
    return prog

def finish(prog):
    for tag in ("stA", "stF"):
        w = [i for i, o in enumerate(prog) if o.kind == "pseudo" and o.tag and o.tag[0] == "waitvm" and tag in o.tag[1]]
        st = [i for i, o in enumerate(prog) if o.tag == tag]
        assert len(w) == 1 and max(st) < w[0], (tag, w, max(st))
    prog = insert_waits(prog)
    rep = []
    prog = pad_hazards(prog, report=rep)
    segs = []; cur = ("pro", [])
    segs.append(cur)
    for op in prog:
        if op.kind == "pseudo" and op.tag and op.tag[0] == "mark":
            cur = (op.tag[1][1], []); segs.append(cur)
        cur[1].append(op)
    d = dict(segs)
    for j in range(LOOP_LO + UNR, LOOP_HI):
        a, b = text_of(d[j]), text_of(d[j - UNR])
        if a != b:
            import difflib
            print("MISMATCH iter", j); print("\n".join(list(difflib.unified_diff(b.split("\n"), a.split("\n"), lineterm=""))[:40])); sys.exit(1)
    body = ""
    for k, ops in segs:
        if isinstance(k, int) and LOOP_LO + UNR <= k < LOOP_HI: continue
        if k == LOOP_LO: body += ".p2align 6\nL_loop:\n"
        body += text_of(ops) + "\n"
    tail = []
    for nm, tgt in stubs:
        tail += [label(f"L_stub_{nm}"), raw(f"s_call_b64 {sRet}, {tgt}", "branch"), raw(f"s_branch L_ret_{nm}", "branch")]
    tail += SUBS
    tail += pad_hazards(rare1(0)) + pad_hazards(rare1(1)) + pad_hazards(rare2())
    body += text_of(tail) + "\nL_end:\n"
    print("nops inserted:", len(rep), "in loop:", [o.text for o in d[LOOP_LO] if o.kind == "nop"], "total instrs", body.count("\n"))
    return body

def build_reduce():
    o = []; e = o.append
    e(raw("s_cmp_ge_u32 s2, 448")); e(raw("s_cbranch_scc1 L_rdone", "branch"))
    e(raw("s_load_dwordx2 s[4:5], s[0:1], 0", "smem")); e(raw("s_load_dwordx2 s[6:7], s[0:1], 72", "smem")); e(raw("s_load_dwordx2 s[20:21], s[0:1], 88", "smem"))
    rX, rO, rW = S(8, 4), S(12, 4), S(16, 4)
    e(valu("v_lshrrev_b32", V(1), 6, V(0))); e(valu("v_and_b32", V(0), 63, V(0)))
    e(valu("v_readfirstlane_b32", S(22), V(1)))
    e(salu("s_lshl_b32", S(23), S(2), 2)); e(salu("s_add_u32", S(23), S(23), S(22)))
    e(valu("v_lshlrev_b32", V(2), 4, V(0)))
    e(salu("s_lshl_b32", S(24), S(23), 14))
    e(salu("s_add_u32", S(25), S(24), PART))
    e(raw("s_waitcnt lgkmcnt(0)", "wait"))
    for d, lo, sz in ((rX, 4, 2048 * 896), (rO, 6, 2048 * 896), (rW, 20, 2 * PART)):
        e(salu("s_mov_b32", d[0], S(lo))); e(salu("s_mov_b32", d[1], S(lo + 1))); e(salu("s_mov_b32", d[2], sz)); e(salu("s_mov_b32", d[3], 0x20000))
    LD = [[V(32 + (m * 16 + h) * 4, 4) for h in range(16)] for m in range(2)]
    for h4 in range(4):
        for m in range(2):
            for hh in range(4): e(bload(LD[m][4 * h4 + hh], V(2), rW, S(24 + (1 if OPT["rednof"] else m)), off=hh * 1024))
        if h4 < 3:
            e(salu("s_add_u32", S(24), S(24), 4096)); e(salu("s_add_u32", S(25), S(25), 4096))
    e(salu("s_mul_i32", S(26), S(23), 4682)); e(salu("s_lshr_b32", S(26), S(26), 16))
    e(salu("s_mul_i32", S(27), S(26), 14)); e(salu("s_sub_u32", S(27), S(23), S(27)))
    e(salu("s_mul_i32", S(26), S(26), 16 * 896)); e(salu("s_lshl_b32", S(27), S(27), 6)); e(salu("s_add_u32", S(26), S(26), S(27)))
    e(valu("v_and_b32", V(3), 15, V(0))); e(valu("v_mul_u32_u24", V(3), 896, V(3)))
    e(valu("v_lshrrev_b32", V(4), 4, V(0))); e(valu("v_lshl_add_u32", V(3), V(4), 3, V(3)))
    XV = [V(6, 2), V(8, 2)]
    for t in range(2): e(bload(XV[t], V(3), rX, S(26), off=32 * t))
    ACC = [[V(10 + m * 8 + i) for i in range(8)] for m in range(2)]
    tmp = [V(26 + i) for i in range(4)]
    for h in range(16):
        for m in range(2):
            for p in range(4):
                x = LD[m][h][p]
                if h == 0:
                    e(valu("v_lshlrev_b32", ACC[m][2 * p], 16, x)); e(valu("v_and_b32", ACC[m][2 * p + 1], 0xffff0000, x))
                else:
                    a, b = tmp[2 * (p & 1)], tmp[2 * (p & 1) + 1]
                    e(valu("v_lshlrev_b32", a, 16, x)); e(valu("v_and_b32", b, 0xffff0000, x))
                    e(valu("v_add_f32", ACC[m][2 * p], ACC[m][2 * p], a)); e(valu("v_add_f32", ACC[m][2 * p + 1], ACC[m][2 * p + 1], b))
    F, Sx = ACC[0], ACC[1]
    T_ = [V(32 + i) for i in range(8)]
    for i in range(8): o += round_bf16(F[i]) + round_bf16(Sx[i])
    for i in range(8): e(valu("v_mul_f32", T_[i], -LOG2E, F[i]))
    for i in range(8): e(valu("v_exp_f32", T_[i], T_[i]))
    for i in range(8): e(valu("v_add_f32", T_[i], 1.0, T_[i]))
    for i in range(8): e(valu("v_rcp_f32", T_[i], T_[i]))
    for i in range(8): e(valu("v_mul_f32", F[i], F[i], T_[i]))
    for i in range(8): o += round_bf16(F[i])
    for i in range(8): e(valu("v_mul_f32", F[i], F[i], Sx[i]))
    for i in range(8): o += round_bf16(F[i])
    for t in range(2):
        for p in range(2):
            x = XV[t][p]
            e(valu("v_lshlrev_b32", tmp[0], 16, x)); e(valu("v_and_b32", tmp[1], 0xffff0000, x))
            e(valu("v_add_f32", tmp[0], tmp[0], F[4 * t + 2 * p])); e(valu("v_add_f32", tmp[1], tmp[1], F[4 * t + 2 * p + 1]))
            e(valu("v_cvt_pk_bf16_f32", x, tmp[0], tmp[1]))
        e(bstore(XV[t], V(3), rO, S(26), off=32 * t))
    e(label("L_rdone")); e(raw("s_endpgm", "branch"))
    return text_of(pad_hazards(insert_waits(o))) + "\n"
assert all((w * 4682) >> 16 == w // 14 for w in range(1792))

HDR = open("recurrent_scan__mha_block_cached__glu_gated_swiglu__prompt.s.ref").read().split("; Override")[0]
def kd(name, vg, acc, sg):
    return f""".amdhsa_kernel {name}
  .amdhsa_next_free_vgpr {vg}
  .amdhsa_next_free_sgpr {sg}
  .amdhsa_accum_offset {acc}
  .amdhsa_group_segment_fixed_size 0
  .amdhsa_kernarg_size 96
  .amdhsa_user_sgpr_count 2
  .amdhsa_user_sgpr_kernarg_segment_ptr 1
  .amdhsa_system_sgpr_workgroup_id_x 1
.end_amdhsa_kernel
"""
main = finish(build_main())
NAME = "recurrent_scan__mha_block_cached__glu_gated_swiglu__prompt_kernel"
txt = HDR + f"""; @launch {'kernel=' + NAME + ' ' if OPT['aslist'] else ''}grid=(256,1,1) block=(256,1,1) lds=163840
.amdgcn_target "amdgcn-amd-amdhsa--gfx950"
.text
.globl {NAME}
.p2align 8
.type {NAME},@function
{NAME}:
""" + main + """.section .rodata,"a"
.p2align 6
""" + kd(NAME, 512, 256, 102)
open(sys.argv[1], "w").write(txt)
```
